```python
import torch

def _softmax(x, axis=-1):
    return torch.softmax(x, dim=axis)
def _gelu(x):
    return torch.nn.functional.gelu(x, approximate="tanh")
def _silu(x):
    return torch.nn.functional.silu(x)
def _sigmoid(x):
    return torch.sigmoid(x)
def _layernorm(x, axis=-1, eps=1e-5):
    m = x.mean(dim=axis, keepdim=True)
    v = x.var(dim=axis, keepdim=True, unbiased=False)
    return (x - m) / torch.sqrt(v + eps)
def _scatter_add(tgt, idx, src, axis=0):
    return tgt.clone().index_add_(axis, idx, src)
def _segment_sum(src, seg, n):
    out = torch.zeros((n,) + src.shape[1:], dtype=src.dtype)
    return out.index_add_(0, seg, src)
def _pad(x, pw):
    flat = tuple(v for pair in reversed(pw) for v in pair)
    return torch.nn.functional.pad(x, flat)

kernel_name = 'interleave_layers__linear_kernel_hedgehog__dense_activation_squared_relu__prompt'

def setup_inputs():

    _w = (lambda a: (lambda t: t.to(torch.bfloat16) if t.is_floating_point() else t)(torch.as_tensor(a)))
    def _A_setup():
        B, S, D, H = 1, 2048, 640, 32
        Dh = D // H
        return {
            "x": _w((lambda *s: torch.randn(*s, dtype=torch.bfloat16) * 0.05)(B, S, D)),
            "wqkv": _w((lambda *s: torch.randn(*s, dtype=torch.bfloat16) * 0.2)(D, 3 * D)),
            "w_phi": _w((lambda *s: torch.randn(*s, dtype=torch.bfloat16) * 0.2)(H, Dh, Dh) * (Dh ** -0.5)),
            "wo": _w((lambda *s: torch.randn(*s, dtype=torch.bfloat16) * 0.05)(D, D)),
        }
    _A_in = _A_setup()

    def _B_setup():
        B, S, D, F = 1, 2048, 640, 1728
        return {
            "x": _w((lambda *s: torch.randn(*s, dtype=torch.bfloat16) * 0.05)(B, S, D)),
            "w1": _w((lambda *s: torch.randn(*s, dtype=torch.bfloat16) * 0.05)(D, F)),
            "b1": _w((lambda *s: torch.randn(*s, dtype=torch.bfloat16) * 0.2)(F)),
            "w2": _w((lambda *s: torch.randn(*s, dtype=torch.bfloat16) * 0.05)(F, D)),
            "b2": _w((lambda *s: torch.randn(*s, dtype=torch.bfloat16) * 0.8)(D)),
        }
    _B_in = _B_setup()

    return {
        "A_x": _A_in["x"],
        "A_wqkv": _A_in["wqkv"],
        "A_w_phi": _A_in["w_phi"],
        "A_wo": _A_in["wo"],
        "B_x": _B_in["x"],
        "B_w1": _B_in["w1"],
        "B_b1": _B_in["b1"],
        "B_w2": _B_in["w2"],
        "B_b2": _B_in["b2"],
    }

def reference(A_x, A_wqkv, A_w_phi, A_wo, B_x, B_w1, B_b1, B_w2, B_b2):
    def _A_ref(x, wqkv, w_phi, wo):
        B, S, D = x.shape
        H = 32; Dh = D // H
        qkv = (lambda x, *d: x.permute(*d))((x @ wqkv).reshape(B, S, 3, H, Dh), 2, 0, 3, 1, 4)
        q, k, v = qkv[0], qkv[1], qkv[2]
        pq = torch.einsum("bhsd,hdf->bhsf", q, w_phi)
        pk = torch.einsum("bhsd,hdf->bhsf", k, w_phi)
        phi_q = torch.concatenate([_softmax(pq, axis=-1), _softmax(-pq, axis=-1)], axis=-1)
        phi_k = torch.concatenate([_softmax(pk, axis=-1), _softmax(-pk, axis=-1)], axis=-1)
        kv = torch.einsum("bhsf,bhsd->bhfd", phi_k, v)
        z  = torch.einsum("bhsf->bhf", phi_k)
        num = torch.einsum("bhqf,bhfd->bhqd", phi_q, kv)
        den = torch.einsum("bhqf,bhf->bhq", phi_q, z)[..., None] + 1e-6
        o = num / den
        return (lambda x, *d: x.permute(*d))(o, 0, 2, 1, 3).reshape(B, S, D) @ wo

    def _B_ref(x, w1, b1, w2, b2):
        h = torch.einsum("bsd,df->bsf", x, w1) + b1
        zero = torch.zeros_like(h)
        r = torch.where(h > zero, h, zero)
        h = r * r
        out = torch.einsum("bsf,fd->bsd", h, w2) + b2
        return out

    x = A_x
    x = x + _A_ref(_layernorm(x, axis=-1), A_wqkv, A_w_phi, A_wo)
    x = x + _B_ref(_layernorm(x, axis=-1), B_w1, B_b1, B_w2, B_b2)
    x = x + _A_ref(_layernorm(x, axis=-1), A_wqkv, A_w_phi, A_wo)
    x = x + _B_ref(_layernorm(x, axis=-1), B_w1, B_b1, B_w2, B_b2)
    return x
```

```python
import re

REG = re.compile(r'(?<![\w.])([vas])(?:\[(\d+):(\d+)\]|(\d+))(?![\w])')


def regs_of(op):
    out = set()
    for m in REG.finditer(op):
        f = m.group(1)
        if m.group(2) is not None:
            out |= {(f, i) for i in range(int(m.group(2)), int(m.group(3)) + 1)}
        else:
            out.add((f, int(m.group(4))))
    if re.search(r'\bvcc\b', op):
        out.add(('s', 'vcc'))
    if re.search(r'\bexec\b', op):
        out.add(('s', 'exec'))
    if re.search(r'\bm0\b', op):
        out.add(('s', 'm0'))
    return out


TRANS = ('v_exp_f32', 'v_log_f32', 'v_rcp_f32', 'v_rsq_f32', 'v_sqrt_f32')


class Ins:
    __slots__ = ('text', 'op', 'ops', 'w', 'r', 'kind', 'passes', 'srcc', 'srcab', 'states')

    def __init__(self, text):
        self.text = text
        t = text.split(';')[0].strip()
        self.op = t.split()[0] if t else ''
        rest = t[len(self.op):].strip()
        ops = []
        depth = 0
        cur = ''
        for ch in rest:
            if ch == '[':
                depth += 1
            if ch == ']':
                depth -= 1
            if ch == ',' and depth == 0:
                ops.append(cur.strip())
                cur = ''
            else:
                cur += ch
        if cur.strip():
            ops.append(cur.strip())
        self.ops = ops
        self.w = set()
        self.r = set()
        self.kind = 'other'
        self.passes = 0
        self.srcc = set()
        self.srcab = set()
        self.states = 1
        op = self.op
        if op.endswith(':') or op.startswith('.') or op == '':
            self.kind = 'label'
            self.states = 0
            return
        R = [regs_of(o) for o in ops]

        def allr(lst):
            s = set()
            for x in lst:
                s |= x
            return s
        if op == 's_nop':
            self.kind = 'nop'
            self.states = int(ops[0]) + 1
        elif op.startswith('v_mfma'):
            self.kind = 'mfma'
            self.passes = 8 if '32x32' in op else 4
            self.w = R[0]
            self.srcab = R[1] | R[2]
            self.srcc = R[3]
            self.r = self.srcab | self.srcc
        elif op.startswith('v_'):
            self.kind = 'valu'
            if op.startswith('v_cmp'):
                self.w = R[0]
                self.r = allr(R[1:])
            elif op.startswith('v_permlane'):
                self.w = R[0] | R[1]
                self.r = R[0] | R[1]
            elif op.startswith(('v_fmac', 'v_dot2c', 'v_writelane')):
                self.w = R[0]
                self.r = allr(R)
            elif '_co_' in op:
                self.w = R[0] | R[1]
                self.r = allr(R[2:])
            else:
                self.w = R[0]
                self.r = allr(R[1:])
        elif op.startswith('ds_read'):
            self.kind = 'ds'
            self.w = R[0]
            self.r = allr(R[1:])
        elif op.startswith('ds_'):
            self.kind = 'ds'
            self.r = allr(R)
        elif op.startswith(('buffer_load', 'global_load')):
            self.kind = 'vmem'
            if re.search(r'\blds\b', t):
                self.r = allr(R) | {('s', 'm0')}
                self.kind = 'dma'
            else:
                self.w = R[0]
                self.r = allr(R[1:])
        elif op.startswith(('buffer_store', 'global_store')):
            self.kind = 'vmem'
            self.r = allr(R)
        elif op.startswith(('buffer_', 'global_')):
            self.kind = 'vmem'
            self.r = allr(R)
        elif op.startswith('s_'):
            self.kind = 'salu'
            if op.startswith(('s_cmp', 's_cbranch', 's_branch', 's_waitcnt', 's_barrier', 's_endpgm', 's_sleep',
                              's_setprio', 's_setpc', 's_bitcmp')):
                self.r = allr(R)
            else:
                self.w = R[0] if R else set()
                self.r = allr(R[1:])
                if 'saveexec' in op:
                    self.w = self.w | {('s', 'exec')}


def vec(s):
    return {x for x in s if x[0] in 'va'}


def sca(s):
    return {x for x in s if x[0] == 's'}


def need_states(a, b):
    n = 0
    if a.kind == 'mfma':
        big = 12 if a.passes == 8 else 8
        if b.kind == 'mfma':
            if a.w & b.srcab:
                n = max(n, big)
            if a.w & b.srcc and not (a.w == b.srcc and a.passes == b.passes):
                n = max(n, big - 2)
            if a.w & b.w and not (a.w == b.srcc and a.passes == b.passes):
                n = max(n, big)
        elif b.kind in ('valu', 'ds', 'vmem', 'dma'):
            if a.w & (b.r | b.w):
                n = max(n, big)
            if a.srcc & b.w:
                n = max(n, 7 if a.passes == 8 else 3)
    if a.kind == 'valu':
        vw = vec(a.w)
        sw = sca(a.w)
        if b.kind == 'mfma' and vw & b.r:
            n = max(n, 3 if a.op.startswith('v_dot') else 2)
        if b.kind == 'mfma' and ('s', 'exec') in sw:
            n = max(n, 4)
        if b.kind == 'valu':
            if b.op.startswith('v_permlane') and vw & b.r:
                n = max(n, 2)
            if ('dpp' in b.text) and vw & b.r:
                n = max(n, 2)
            if b.op.startswith(('v_readlane', 'v_readfirstlane')) and vw & b.r:
                n = max(n, 1)
            if a.op in TRANS and vw & b.r:
                n = max(n, 1)
            if sw & b.r:
                n = max(n, 4 if b.op.startswith(('v_readlane', 'v_writelane')) else 2)
            if a.op.startswith('v_dot') and vw & (b.r | b.w):
                same = a.op == b.op and not (vw & (regs_of(b.ops[1]) | regs_of(b.ops[2])))
                if not same:
                    n = max(n, 3)
        if b.kind in ('vmem', 'dma', 'ds'):
            if sw & b.r:
                n = max(n, 5)
            if a.op.startswith('v_dot') and vw & b.r:
                n = max(n, 3)
            if a.op in TRANS and vw & b.r:
                n = max(n, 1)
        if b.kind == 'salu' and sw & b.r:
            n = max(n, 1)
    if a.kind == 'salu' and ('s', 'm0') in a.w and b.kind == 'dma':
        n = max(n, 1)
    if a.kind == 'vmem' and ('store' in a.op) and a.op.endswith(('x4', 'x3')):
        data = regs_of(a.ops[0] if a.op.startswith('buffer') else a.ops[1])
        if data & b.w:
            n = max(n, 2)
    return n


def fix_hazards(lines):
    out = []
    added = 0
    for text in lines:
        b = Ins(text)
        if b.kind not in ('label', 'nop'):
            dist = 0
            need = 0
            for a in reversed(out):
                if dist >= 12:
                    break
                if a.kind not in ('label', 'nop'):
                    need = max(need, need_states(a, b) - dist)
                dist += a.states
            if need > 0:
                assert 'nopad' not in text, 'pad needed inside a two-way block: ' + text
                out.append(Ins('s_nop %d' % (need - 1)))
                added += need
        out.append(b)
    return [x.text for x in out], added


class Gen:
    def __init__(self, nquads):
        self.L = []
        self.vmq = []
        self.lgq = []
        self.uid = 0
        self.q = [dict(c=None, tag=None, vis=False, reads=set(), done=True, free=True) for _ in range(nquads)]
        self.maxvm = 0

    def I(self, t):
        for x in t.split('\n'):
            x = x.strip()
            if x:
                self.L.append(x)

    def label(self, base):
        self.uid += 1
        return '%s_%d' % (base, self.uid)

    def vm(self, t, tag=None):
        self.I(t)
        if tag is None:
            self.uid += 1
            tag = ('anon', self.uid)
        self.vmq.append(tag)
        self.maxvm = max(self.maxvm, len(self.vmq))
        assert len(self.vmq) <= 60, 'vm queue overflow'
        return tag

    def lg(self, t, tag=None):
        self.I(t)
        if tag is None:
            self.uid += 1
            tag = ('anon', self.uid)
        self.lgq.append(tag)
        return tag

    @staticmethod
    def _cnt(q, tags):
        idx = -1
        for i, t in enumerate(q):
            if t in tags:
                idx = i
        return idx

    def wait(self, vm=(), lg=(), vm_all=False, lg_all=False):
        parts = []
        iv = len(self.vmq) - 1 if vm_all else self._cnt(self.vmq, set(vm))
        il = len(self.lgq) - 1 if lg_all else self._cnt(self.lgq, set(lg))
        if iv >= 0:
            parts.append('vmcnt(%d)' % (len(self.vmq) - 1 - iv))
            self.vmq = self.vmq[iv + 1:]
        if il >= 0:
            n = len(self.lgq) - 1 - il
            if n > 14:
                n = 14
                il = len(self.lgq) - 15
            parts.append('lgkmcnt(%d)' % n)
            self.lgq = self.lgq[il + 1:]
        if parts:
            self.I('s_waitcnt ' + ' '.join(parts))

    def force_wait(self, text):
        self.I('s_waitcnt ' + text)
        if 'vmcnt(0)' in text:
            self.vmq = []
        if 'lgkmcnt(0)' in text:
            self.lgq = []

    def barrier(self):
        self.I('s_barrier')
        for q in self.q:
            if q['tag'] is not None and not any(t in self.vmq or t in self.lgq for t in q['tag']):
                q['vis'] = True
                q['tag'] = None
            q['reads'] = {t for t in q['reads'] if t in self.lgq}
            if q['done'] and not q['reads'] and q['tag'] is None:
                q['free'] = True

    def q_fill(self, qi, content, tag):
        q = self.q[qi]
        if q['c'] == content and not q['free'] and q['tag'] is not None:
            q['tag'].append(tag)
            return
        assert q['free'], 'fill of busy quad %d (%s) with %s' % (qi, q['c'], content)
        q.update(c=content, tag=[tag], vis=False, reads=set(), done=False, free=False)

    def q_read(self, qi, content, tag, private=False):
        q = self.q[qi]
        assert q['c'] == content, 'quad %d holds %s, wanted %s' % (qi, q['c'], content)
        if private:
            assert q['tag'] is None or not any(t in self.vmq or t in self.lgq for t in q['tag'])
        else:
            assert q['vis'], 'quad %d (%s) read before visible' % (qi, content)
        q['reads'].add(tag)

    def q_done(self, qi):
        self.q[qi]['done'] = True

    def q_is_free(self, qi):
        return self.q[qi]['free']

    def snapshot(self):
        return (list(self.vmq), list(self.lgq),
                [(q['c'] if not q['done'] else None, q['vis'] if not q['done'] else None, q['free'],
                  bool(q['reads'] & set(self.lgq))) for q in self.q])
```

```python
import sys
import os
sys.path.insert(0, os.path.dirname(os.path.abspath(__file__)))
from asmlib import Gen, fix_hazards

NAME = 'interleave_layers__linear_kernel_hedgehog__dense_activation_squared_relu__prompt'

EPOCH, IDW, PREF, KVF, CSP = 0, 0x1000, 0x2000, 0x4000, 0x8000
KVP, WOT, W1T, W2T, WQC, STAMPS = 0x100000, 0x300000, 0x400000, 0x700000, 0xA00000, 0xD00000
ARENA = 0x1000000
XA, X1A, OA, HA, ST, FL = 0, 0x280000, 0x500000, 0x780000, 0xE40000, 0xE80000
F_XA, F_OA, F_X1, F_HA = 0, 64, 128, 192
OOB = 0x7ffffff0
NQ = 39
PA = NQ * 4096
TCS1, TCS3, TB1, TB2, TPHI = PA, PA + 512, PA + 1024, PA + 1536, PA + 2048
T_Q0 = 14
KS_Q = 27
STG_Q0 = 34
slotQ = lambda i: i % NQ
slotO = lambda i: (i + 28) % NQ
slotF1 = lambda i: (i + 14) % NQ
slotF2 = lambda i: (i + 10) % NQ
sWS, sACT, sWQ, sXO, sPS, sT2 = 4, 8, 12, 16, 20, 24
srd = lambda b: 's[%d:%d]' % (b, b + 3)
sK4 = lambda i: '0' if i == 0 else 's%d' % (31 + i)
sH54 = 's47'
(sTagG, sW, sW1k, sLayer, sSlow, sJ, sRb, sC, sTO, sTagL, sFl32, sFl16, sFlP16, sFlP32, sQoff, sKVFc, sKVFp,
 sOb, sF1b, sF2b, sPreP, sTy) = ['s%d' % i for i in range(72, 94)]
sPst = ['s28', 's29', 's30', 's31', 's94']
t0, t1, t2, t3, t4, t5, t6 = 's95', 's96', 's97', 's98', 's99', 's100', 's101'
_names = ('Rd0 Rd1 Rd2 TrA0 TrA1 TrA2 TrB0 TrB1 TrB2 A1 A3 A2 A4 SX1 SX3 S11 S13 SSt LSt1 LSt3 SO1 SO2 SH1 SH2 X1 X3 '
          'Fl TagL TagG DQ DO DF1 DF2 KS1 KS2 KG KFl TW KA KB R1 R20 R21 Tb1 Tb4 KW Cs Stamp Stamp0').split()
V = {n: 'v%d' % (i + 2) for i, n in enumerate(_names)}
assert len(_names) + 2 <= 52
RES, ACC, BF, TMP = 52, 72, 136, 200
aPHI = 160


def v(i, n=1):
    return 'v%d' % i if n == 1 else 'v[%d:%d]' % (i, i + n - 1)


def a(i, n=1):
    return 'a%d' % i if n == 1 else 'a[%d:%d]' % (i, i + n - 1)


LOG2E = 0x3fb8aa3b


class K(Gen):
    def __init__(self, cfg):
        super().__init__(NQ)
        self.cfg = cfg
        self.nstamp = 0
        self.stream_pos = {}

    def stamp(self, idx):
        if not self.cfg.get('stamps'):
            return
        self.wait(lg_all=True)
        self.I('s_memtime s[100:101]')
        self.I('s_waitcnt lgkmcnt(0)')
        self.I('v_writelane_b32 %s, s100, %d' % (V['Stamp'], idx))

    def stop(self, name):
        if self.cfg.get('stop') == name:
            self.I('s_branch L_end')

    def ldsaddr(self, byte, kind='Rd'):
        return V['%s%d' % (kind, byte >> 16)], byte & 0xffff

    def dual(self, stores, wait_then_flag=None):
        lab = self.label('L_st')
        self.I('s_cmp_eq_u32 %s, 0' % sSlow)
        self.I('s_cbranch_scc0 %s_s' % lab)
        for s in stores:
            self.I(s + ' ; nopad')
        self.I('s_branch %s_e' % lab)
        self.I('%s_s:' % lab)
        tags = []
        for s in stores:
            tags.append(self.vm(s + ' sc1'))
        self.I('%s_e:' % lab)
        return tags

    def one_wave_store(self, cond_reg, text):
        lab = self.label('L_ow')
        self.I('s_cmp_eq_u32 %s, 0' % cond_reg)
        self.I('s_cbranch_scc0 %s' % lab)
        self.I('s_mov_b64 exec, 1')
        self.I(text)
        self.I('s_mov_b64 exec, -1')
        self.I('%s:' % lab)

    def flag_local(self, soff, imm):
        self.I('s_mov_b64 exec, 1')
        self.dual(['buffer_store_dword %s, off, %s, %s offset:%d' % (V['TagL'], srd(sACT), soff, imm)])
        self.I('s_mov_b64 exec, -1')

    def poll(self, addr, sd, soff, imm, tag, width=1):
        lab = self.label('L_poll')
        T = TMP + 52
        self.I('%s:' % lab)
        if width == 1:
            self.I('buffer_load_dword %s, %s, %s, %s offen offset:%d sc1' % (v(T), addr, srd(sd), soff, imm))
        else:
            self.I('buffer_load_dwordx4 %s, %s, %s, %s offen offset:%d sc1' % (v(T, 4), addr, srd(sd), soff, imm))
        self.I('s_sub_u32 %s, %s, 1' % (sTO, sTO))
        self.I('s_cbranch_scc1 L_end')
        self.force_wait('vmcnt(0)')
        if width == 4:
            for i in range(4):
                self.I('v_xor_b32 %s, %s, %s' % (v(T + i), tag, v(T + i)))
            self.I('v_or3_b32 %s, %s, %s, %s' % (v(T), v(T), v(T + 1), v(T + 2)))
            self.I('v_or_b32 %s, %s, %s' % (v(T), v(T), v(T + 3)))
            self.I('v_cmp_ne_u32 vcc, 0, %s' % v(T))
        else:
            self.I('v_cmp_ne_u32 vcc, %s, %s' % (tag, v(T)))
        self.I('s_cbranch_vccnz %s' % lab)

    def stream_reset(self, st):
        base, slot = {'O': (sOb, slotO), 'F1': (sF1b, slotF1), 'F2': (sF2b, slotF2)}[st]
        self.I('v_add_u32 %s, %s, %s' % (V['D' + st], base, V['Rd0']))
        self.stream_pos[st] = -slot(0)

    def dma(self, st, n):
        slot = {'Q': slotQ, 'O': slotO, 'F1': slotF1, 'F2': slotF2}[st](n)

        def pre():
            self.I('s_add_u32 m0, %s, %d' % (sW1k, slot * 4096))
            if st == 'Q':
                if n == 0:
                    self.I('s_mov_b32 %s, 0' % sQoff)
                else:
                    self.I('s_add_u32 %s, %s, %d' % (sQoff, sQoff, 16 * 3840))
            elif n - slot != self.stream_pos[st]:
                d = (n - slot - self.stream_pos[st]) * 4096
                self.I('v_add_u32 %s, 0x%x, %s' % (V['D' + st], d, V['D' + st]))
                self.stream_pos[st] = n - slot

        def issue():
            if st == 'Q':
                tag = self.vm('buffer_load_dwordx4 %s, %s, %s offen lds' % (V['DQ'], srd(sWQ), sQoff), (st, n))
            else:
                tag = self.vm('buffer_load_dwordx4 %s, %s, m0 offen lds' % (V['D' + st], srd(sWS)), (st, n))
            self.q_fill(slot, (st, n), tag)
        return slot, pre, issue

    def dma_now(self, st, n):
        slot, pre, issue = self.dma(st, n)
        pre()
        issue()

    def gemm(self, name, steps, nfr, st, areg, avaddr, nA, mf, L, we, bars, jobs, a0, arate, jobrate, jobstart=0,
             hooks=None, tr=False, first_c=None):
        hooks = hooks or {}
        slotf = {'Q': slotQ, 'O': slotO, 'F1': slotF1, 'F2': slotF2}[st]
        total = steps * nfr
        P = L + 1
        pool = lambda n: BF + 4 * (n % P)
        nAtot = steps * nA
        state = dict(cur=0, an=0, jacc=0.0, aacc=0.0, pend=None)
        jobs = list(jobs)

        def quad_of(n):
            return (n // nfr) if tr else (n >> 2)

        def aload():
            i = state['an']
            state['an'] += 1
            assert all(areg(m) != areg(i) for m in range(state['cur'] * nA, i)), 'A window overrun'
            self.vm('buffer_load_dwordx4 %s, %s, %s, %s offen offset:%d sc1' %
                    (a(areg(i), 4), avaddr, srd(sACT), sK4(i >> 2), (i & 3) * 1024), (name, 'A', i))

        def read(n):
            s, f = divmod(n, nfr)
            if f == 0 and s in bars:
                nxt = min([b for b in bars if b > s] + [steps])
                need = {(st, quad_of(m)) for m in range(n, nxt * nfr)}
                self.wait(vm=need)
                self.barrier()
            qn = quad_of(n)
            r = pool(n)
            if tr:
                byte = slotf(qn) * 4096 + 256 * f
                base, off = self.ldsaddr(byte, 'TrB' if f == 3 else 'TrA')
                for ab in range(2):
                    tag = self.lg('ds_read_b64_tr_b16 %s, %s offset:%d' % (v(r + 2 * ab, 2), base, off + 1024 * ab),
                                  (name, 'B', n))
                    self.q_read(slotf(qn), (st, qn), tag)
            else:
                base, off = self.ldsaddr(slotf(qn) * 4096 + (n & 3) * 1024)
                tag = self.lg('ds_read_b128 %s, %s offset:%d' % (v(r, 4), base, off), (name, 'B', n))
                self.q_read(slotf(qn), (st, qn), tag)
            if n + 1 == total or quad_of(n + 1) != qn:
                if not (name == 'P1a'):
                    self.q_done(slotf(qn))

        def filler(s):
            if state['pend'] is not None:
                state['pend']()
                state['pend'] = None
                return
            if state['aacc'] >= 1 and state['an'] < nAtot:
                state['aacc'] -= 1
                aload()
            if state['jacc'] >= 1 and jobs and s >= jobstart:
                slot, pre, issue = self.dma(*jobs[0])
                if self.q_is_free(slot):
                    jobs.pop(0)
                    state['jacc'] -= 1
                    pre()
                    state['pend'] = issue

        for _ in range(min(a0, nAtot)):
            aload()
        if -1 in hooks:
            hooks[-1]()
        for n in range(L):
            read(n)
        for n in range(total):
            s, f = divmod(n, nfr)
            if f == 0:
                state['cur'] = s
                if s in hooks:
                    if state['pend'] is not None:
                        state['pend']()
                        state['pend'] = None
                    hooks[s]()
                state['aacc'] += arate
                state['jacc'] = min(state['jacc'] + jobrate, max(2.0, 2 * jobrate))
            vt = [(name, 'A', s * nA + q) for q in range(nA)] if f == 0 else []
            while f == 0 and state['an'] < (s + 1) * nA:
                aload()
            lt = [(name, 'B', m) for m in range(n, min(n + we, total))] if n % we == 0 else []
            self.wait(vm=vt, lg=lt)
            ms = mf(s, f, pool(n))
            self.I(ms[0])
            if n + L < total:
                read(n + L)
            if len(ms) > 1:
                self.I(ms[1])
            filler(s)
        if state['pend'] is not None:
            state['pend']()
        return jobs

    def prologue(self):
        I = self.I
        I('s_cmp_ge_u32 s2, 256')
        I('s_cbranch_scc1 L_end')
        I('s_load_dwordx16 s[48:63], s[0:1], 0')
        I('s_load_dwordx8 s[64:71], s[0:1], 64')
        T = TMP
        lane, g, tok, x0, x1, x2 = v(T), v(T + 1), v(T + 2), v(T + 3), v(T + 4), v(T + 5)
        self.lane, self.g, self.tok = lane, g, tok
        I('v_lshrrev_b32 %s, 6, v0' % x0)
        I('v_and_b32 %s, 63, v0' % lane)
        I('v_readfirstlane_b32 %s, %s' % (sW, x0))
        I('s_and_b32 %s, s2, 7' % t0)
        I('s_lshr_b32 %s, s2, 7' % t1)
        I('s_lshl_b32 %s, %s, 1' % (t0, t0))
        I('s_add_u32 %s, %s, %s' % (sRb, t0, t1))
        I('s_bfe_u32 %s, s2, 0x40003' % sJ)
        I('s_and_b32 %s, %s, 7' % (sC, sJ))
        I('s_lshl_b32 %s, %s, 10' % (sW1k, sW))
        I('s_lshr_b32 %s, %s, 3' % (t2, sJ))
        I('s_lshl_b32 %s, %s, 2' % (t2, t2))
        I('s_add_u32 %s, %s, %s' % (t2, t2, sW))
        I('s_lshl_b32 %s, %s, 3' % (t3, sRb))
        I('s_add_u32 %s, %s, %s' % (t3, t3, t2))
        I('s_mul_i32 %s, %s, %d' % (t0, t3, 16 * 1280))
        I('s_mul_i32 %s, %s, 160' % (t1, sC))
        I('s_add_u32 %s, %s, %s' % (t0, t0, t1))
        I('v_lshrrev_b32 %s, 4, %s' % (g, lane))
        I('v_and_b32 %s, 15, %s' % (tok, lane))
        I('v_mul_u32_u24 %s, 1280, %s' % (x0, tok))
        I('v_add_u32 %s, %s, %s' % (x0, t0, x0))
        I('v_lshl_add_u32 %s, %s, 4, %s' % (V['X1'], g, x0))
        I('v_lshl_add_u32 %s, %s, 3, %s' % (V['X3'], g, x0))
        I('v_lshlrev_b32 %s, 4, %s' % (V['Rd0'], lane))
        I('v_and_b32 %s, 3, %s' % (x0, lane))
        I('v_lshrrev_b32 %s, 1, %s' % (x1, x0))
        I('v_add_u32 %s, %s, %s' % (x1, x0, x1))
        I('v_cmp_eq_u32 vcc, 3, %s' % g)
        I('v_cndmask_b32 %s, %s, 2, vcc' % (x1, x1))
        I('v_cndmask_b32 %s, %s, %s, vcc' % (x0, g, x0))
        I('v_add_u32 %s, 1, %s' % (x2, x0))
        I('v_cmp_gt_u32 vcc, 2, %s' % x0)
        I('v_cndmask_b32 %s, 0, %s, vcc' % (x2, x2))
        I('v_mul_u32_u24 %s, 1280, %s' % (x2, x2))
        I('v_lshl_add_u32 %s, %s, 4, %s' % (x2, x1, x2))
        I('v_bfe_u32 %s, %s, 2, 2' % (x0, lane))
        I('v_mul_u32_u24 %s, 3840, %s' % (x0, x0))
        I('s_mul_i32 %s, %s, %d' % (t0, sW, 4 * 3840))
        I('s_mul_i32 %s, %s, 80' % (t1, sJ))
        I('s_add_u32 %s, %s, %s' % (t0, t0, t1))
        I('v_add3_u32 %s, %s, %s, %s' % (V['DQ'], x0, x2, t0))
        I('s_waitcnt lgkmcnt(0)')
        I('s_load_dword %s, s[70:71], 0' % sTagG)

        def mk(b, p, size):
            I('s_mov_b32 s%d, s%d' % (b, p))
            I('s_mov_b32 s%d, s%d' % (b + 1, p + 1))
            I('s_mov_b32 s%d, 0x%x' % (b + 2, size))
            I('s_mov_b32 s%d, 0x20000' % (b + 3))
        mk(sXO, 48, 2048 * 1280)
        XL = TMP + 40
        self.XL = XL
        self.vm('buffer_load_dwordx4 %s, %s, %s, 0 offen' % (v(XL, 4), V['X1'], srd(sXO)), 'x')
        self.vm('buffer_load_dwordx4 %s, %s, %s, 0 offen offset:64' % (v(XL + 4, 4), V['X1'], srd(sXO)), 'x')
        self.vm('buffer_load_dwordx2 %s, %s, %s, 0 offen offset:128' % (v(XL + 8, 2), V['X3'], srd(sXO)), 'x')
        mk(sWQ, 50, 640 * 3840)
        mk(sWS, 70, 0x1000000)
        I('s_add_u32 s%d, s70, 0x%x' % (sACT, ARENA))
        I('s_addc_u32 s%d, s71, 0' % (sACT + 1))
        I('s_mov_b32 s%d, 0x%x' % (sACT + 2, ARENA))
        I('s_mov_b32 s%d, 0x20000' % (sACT + 3))
        nq0 = self.cfg.get('q_first', 6)
        for n in range(nq0):
            self.dma_now('Q', n)
        self.prepass1()
        self.small_loads()
        for n in range(nq0, self.cfg.get('q_pre', 12)):
            self.dma_now('Q', n)
        self.addresses()

    def prepass1(self):
        I = self.I
        lane = self.lane
        T = TMP + 8
        po = [v(T + i) for i in range(5)]
        e, row, u, y = v(T + 5), v(T + 6), v(T + 7), v(T + 8)
        I('s_mov_b32 s%d, 0x20000' % (sPS + 3))
        I('s_cmp_lt_u32 s2, 40')
        I('s_cbranch_scc1 L_pp_wo')
        I('s_cmp_lt_u32 s2, 148')
        I('s_cbranch_scc1 L_pp_w1')
        I('s_sub_u32 %s, s2, 148' % t0)
        I('s_lshl_b32 %s, %s, 2' % (t0, t0))
        I('s_add_u32 %s, %s, %s' % (t0, t0, sW))
        I('s_and_b32 %s, %s, 7' % (t1, t0))
        I('s_lshr_b32 %s, %s, 3' % (t0, t0))
        I('s_mul_i32 %s, %s, 272' % (t4, t1))
        I('s_mul_i32 %s, %s, 5' % (t5, t0))
        I('s_add_u32 %s, %s, %s' % (t4, t4, t5))
        I('s_lshl_b32 %s, %s, 10' % (t4, t4))
        I('s_add_u32 %s, %s, 0x%x' % (sPst[0], t4, W2T))
        I('s_lshl_b32 %s, %s, 5' % (t0, t0))
        I('s_mov_b32 %s, 4' % t4)
        I('s_mov_b32 %s, 0' % t5)
        I('s_mov_b32 %s, 16' % t6)
        I('s_mov_b32 s%d, s62' % sPS)
        I('s_mov_b32 s%d, s63' % (sPS + 1))
        I('s_mov_b32 s%d, 0x%x' % (sPS + 2, 1728 * 1280))
        I('s_branch L_pp_80')
        I('L_pp_wo:')
        I('s_lshl_b32 %s, s2, 2' % t0)
        I('s_add_u32 %s, %s, %s' % (t0, t0, sW))
        I('s_and_b32 %s, %s, 7' % (t1, t0))
        I('s_lshr_b32 %s, %s, 3' % (t0, t0))
        I('s_mul_i32 %s, %s, 100' % (t4, t1))
        I('s_mul_i32 %s, %s, 5' % (t5, t0))
        I('s_add_u32 %s, %s, %s' % (t4, t4, t5))
        I('s_lshl_b32 %s, %s, 10' % (t4, t4))
        I('s_add_u32 %s, %s, 0x%x' % (sPst[0], t4, WOT))
        I('s_mul_i32 %s, %s, 52' % (t4, t0))
        I('s_lshr_b32 %s, %s, 8' % (t4, t4))
        I('s_mul_i32 %s, %s, 5' % (t5, t4))
        I('s_sub_u32 %s, %s, %s' % (t5, t0, t5))
        I('s_mul_i32 %s, %s, 160' % (t0, t4))
        I('s_mul_i32 %s, %s, 40' % (t6, t5))
        I('s_cmp_eq_u32 %s, 4' % t5)
        I('s_cselect_b32 %s, 16, %s' % (t6, t6))
        I('s_cselect_b32 %s, 40, 8' % t4)
        I('s_cselect_b32 %s, 0, 8' % t5)
        I('s_add_u32 %s, %s, %s' % (t0, t0, t6))
        I('s_mov_b32 %s, 4' % t6)
        I('s_mov_b32 s%d, s54' % sPS)
        I('s_mov_b32 s%d, s55' % (sPS + 1))
        I('s_mov_b32 s%d, 0x%x' % (sPS + 2, 640 * 1280))
        I('L_pp_80:')
        I('s_mul_i32 %s, %s, 160' % (t1, t1))
        I('s_mov_b32 %s, 0' % sTy)
        for n in range(5):
            I('v_add_u32 %s, %d, %s' % (e, 64 * n, lane))
            I('v_mul_u32_u24 %s, 6554, %s' % (row, e))
            I('v_lshrrev_b32 %s, 16, %s' % (row, row))
            I('v_mul_u32_u24 %s, 10, %s' % (u, row))
            I('v_sub_u32 %s, %s, %s' % (u, e, u))
            I('v_and_b32 %s, 3, %s' % (e, row))
            I('v_add_u32 %s, %s, %s' % (e, t0, e))
            I('v_lshrrev_b32 %s, 3, %s' % (y, row))
            I('v_mad_u32_u24 %s, %s, %s, %s' % (e, y, t4, e))
            I('v_lshrrev_b32 %s, 4, %s' % (y, row))
            I('v_mad_u32_u24 %s, %s, %s, %s' % (e, y, t5, e))
            I('v_bfe_u32 %s, %s, 2, 1' % (y, row))
            I('v_mad_u32_u24 %s, %s, %s, %s' % (e, y, t6, e))
            I('v_mul_u32_u24 %s, 1280, %s' % (e, e))
            I('v_lshl_add_u32 %s, %s, 4, %s' % (e, u, e))
            I('v_add_u32 %s, %s, %s' % (po[n], t1, e))
        I('s_mov_b32 %s, 1024' % t0)
        I('v_mov_b32 %s, 0x%x' % (V['Cs'], OOB))
        I('s_branch L_pp_go')
        I('L_pp_w1:')
        I('s_sub_u32 %s, s2, 40' % t0)
        I('s_and_b32 %s, %s, 3' % (t1, t0))
        I('s_lshr_b32 %s, %s, 2' % (t0, t0))
        I('s_lshl_b32 %s, %s, 2' % (t4, t0))
        I('s_add_u32 %s, %s, %s' % (t4, t4, sW))
        I('s_lshl_b32 %s, %s, 8' % (t5, t4))
        I('s_lshl_b32 %s, %s, 2' % (t6, t1))
        I('s_add_u32 %s, %s, %s' % (t5, t5, t6))
        I('s_add_u32 %s, %s, 0x%x' % (t5, t5, CSP))
        I('v_add_u32 %s, %s, %s' % (e, t5, V['Rd0']))
        I('v_mov_b32 %s, 0x%x' % (V['Cs'], OOB))
        I('v_cmp_gt_u32 vcc, 16, %s' % lane)
        I('v_cndmask_b32 %s, %s, %s, vcc' % (V['Cs'], V['Cs'], e))
        I('s_mul_i32 %s, %s, 43' % (t5, t4))
        I('s_lshr_b32 %s, %s, 8' % (t5, t5))
        I('s_mul_i32 %s, %s, 6' % (t6, t5))
        I('s_sub_u32 %s, %s, %s' % (t6, t4, t6))
        I('s_sub_u32 s3, %s, 96' % t4)
        I('s_cmp_ge_u32 %s, 96' % t4)
        I('s_cselect_b32 %s, s3, %s' % (t5, t5))
        I('s_cselect_b32 %s, 6, %s' % (t6, t6))
        I('s_mul_i32 %s, %s, 140' % (t5, t5))
        I('s_mul_i32 s3, %s, 35' % t1)
        I('s_add_u32 %s, %s, s3' % (t5, t5))
        I('s_add_u32 %s, %s, %s' % (t5, t5, t6))
        I('s_lshl_b32 %s, %s, 10' % (t5, t5))
        I('s_add_u32 %s, %s, 0x%x' % (sPst[0], t5, W1T))
        I('s_mul_i32 %s, %s, 160' % (t1, t1))
        I('s_mul_i32 %s, %s, 40' % (t5, sW))
        I('s_add_u32 %s, %s, %s' % (t1, t1, t5))
        I('s_mul_i32 %s, %s, 3456' % (t1, t1))
        I('s_lshl_b32 %s, %s, 7' % (t0, t0))
        I('s_add_u32 %s, %s, %s' % (t1, t1, t0))
        I('v_lshrrev_b32 %s, 3, %s' % (row, lane))
        I('v_mul_u32_u24 %s, 3456, %s' % (row, row))
        I('v_and_b32 %s, 7, %s' % (u, lane))
        I('v_lshl_add_u32 %s, %s, 4, %s' % (row, u, row))
        I('v_add_u32 %s, %s, %s' % (po[0], t1, row))
        for n in range(1, 5):
            I('v_add_u32 %s, %d, %s' % (po[n], 8 * 3456 * n, po[0]))
        I('s_mov_b32 s%d, s58' % sPS)
        I('s_mov_b32 s%d, s59' % (sPS + 1))
        I('s_mov_b32 s%d, 0x%x' % (sPS + 2, 640 * 3456))
        I('s_mov_b32 %s, 1' % sTy)
        I('s_mov_b32 %s, 7168' % t0)
        I('L_pp_go:')
        for n in range(1, 5):
            I('s_add_u32 %s, %s, %s' % (sPst[n], sPst[n - 1], t0))
        I('s_mul_i32 %s, %s, 5' % (t0, sW1k))
        for n in range(5):
            I('s_add_u32 m0, %s, %d' % (t0, STG_Q0 * 4096 + 1024 * n))
            tag = self.vm('buffer_load_dwordx4 %s, %s, 0 offen lds' % (po[n], srd(sPS)), ('stg', n))
            for q in range(5):
                self.q_fill(STG_Q0 + q, 'stg', tag)

    def prepass2(self):
        I = self.I
        T = TMP
        fr = T
        bA, bB, x0, x1, one, cs = v(T + 20), v(T + 21), v(T + 22), v(T + 23), T + 24, T + 28
        I('v_lshrrev_b32 %s, 8, %s' % (x0, V['Rd0']))
        I('v_bfe_u32 %s, %s, 6, 2' % (x1, V['Rd0']))
        for i in range(4):
            I('v_mov_b32 %s, 0x3f803f80' % v(one + i))
        I('s_cmp_eq_u32 %s, 1' % sTy)
        I('s_cbranch_scc1 L_p2_w1')
        I('v_lshl_add_u32 %s, %s, 3, %s' % (x0, x0, x1))
        I('v_mul_u32_u24 %s, 160, %s' % (x0, x0))
        I('s_mul_i32 %s, %s, 5' % (t0, sW1k))
        I('s_add_u32 %s, %s, %d' % (t0, t0, STG_Q0 * 4096))
        I('v_add_u32 %s, %s, %s' % (x0, t0, x0))
        I('v_and_b32 %s, 48, %s' % (x1, V['Rd0']))
        I('v_add_u32 %s, %s, %s' % (bA, x0, x1))
        I('v_lshrrev_b32 %s, 1, %s' % (x1, x1))
        I('v_add_u32 %s, %s, %s' % (bB, x0, x1))
        for t in range(5):
            for ab in range(2):
                off = 640 * ab + (64 * (t >> 1) + 8 * (t & 1) if t < 4 else 128)
                I('ds_read_b64_tr_b16 %s, %s offset:%d' % (v(fr + 4 * t + 2 * ab, 2), bA if t < 4 else bB, off))
        I('s_branch L_p2_go')
        I('L_p2_w1:')
        I('v_lshl_add_u32 %s, %s, 3, %s' % (bA, x0, x1))
        I('v_lshl_add_u32 %s, %s, 2, %s' % (bB, x0, x1))
        I('v_and_b32 %s, 48, %s' % (x1, V['Rd0']))
        I('v_lshrrev_b32 %s, 1, %s' % (x1, x1))
        I('s_lshl_b32 %s, %s, 5' % (t0, sW))
        I('s_add_u32 %s, %s, %d' % (t0, t0, STG_Q0 * 4096))
        I('v_add_u32 %s, %s, %s' % (x1, t0, x1))
        I('v_lshl_add_u32 %s, %s, 7, %s' % (bA, bA, x1))
        I('v_lshl_add_u32 %s, %s, 7, %s' % (bB, bB, x1))
        for i in range(5):
            for ab in range(2):
                off = ((80 * (i >> 1) + 32 * (i & 1) + 4 * ab) if i < 4 else (80 * ab + 64)) * 128
                tag = self.lg('ds_read_b64_tr_b16 %s, %s offset:%d' % (v(fr + 4 * i + 2 * ab, 2), bA if i < 4 else bB, off),
                              'stgr')
                for q in range(5):
                    self.q_read(STG_Q0 + q, 'stg', tag)
        I('L_p2_go:')
        for q in range(5):
            self.q_done(STG_Q0 + q)
        self.wait(lg=['stgr'])
        for i in range(5):
            self.vm('buffer_store_dwordx4 %s, %s, %s, %s offen sc1' % (v(fr + 4 * i, 4), V['Rd0'], srd(sWS), sPst[i]), 'pre')
            I('v_mfma_f32_16x16x32_bf16 %s, %s, %s, %s' % (v(cs, 4), v(one, 4), v(fr + 4 * i, 4), v(cs, 4) if i else '0'))
        self.vm('buffer_store_dword %s, %s, %s, 0 offen sc1' % (v(cs), V['Cs'], srd(sWS)), 'pre')

    def small_loads(self):
        I = self.I
        T = TMP + 20
        x0, x1, x2 = v(T), v(T + 1), v(T + 2)
        self.B1L, self.B2L = T + 3, T + 4
        I('s_mov_b32 s%d, s52' % sT2)
        I('s_mov_b32 s%d, s53' % (sT2 + 1))
        I('s_mov_b32 s%d, %d' % (sT2 + 2, 32 * 800))
        I('s_mov_b32 s%d, 0x20000' % (sT2 + 3))
        I('s_mul_i32 %s, %s, 1600' % (t0, sJ))
        I('v_lshl_add_u32 %s, v0, 2, %s' % (x0, t0))
        I('s_lshr_b32 %s, %s, 2' % (t1, sW1k))
        I('s_add_u32 m0, %s, %d' % (t1, TPHI))
        self.vm('buffer_load_dword %s, %s, 0 offen lds' % (x0, srd(sT2)), 'phi')
        self.vm('buffer_load_dword %s, %s, 0 offen offset:1024 lds' % (x0, srd(sT2)), 'phi')
        I('s_mul_i32 %s, %s, 96' % (t0, sJ))
        I('s_lshl_b32 %s, %s, 4' % (t1, sJ))
        I('s_add_u32 %s, %s, %d' % (t1, t1, 1536 - 96))
        I('v_add_u32 %s, %s, v0' % (x0, t0))
        I('v_add_u32 %s, %s, v0' % (x1, t1))
        I('v_cmp_gt_u32 vcc, 96, v0')
        I('v_cndmask_b32 %s, %s, %s, vcc' % (x0, x1, x0))
        I('v_lshlrev_b32 v1, 4, %s' % x0)
        I('v_lshlrev_b32 %s, 1, %s' % (x0, x0))
        I('s_mov_b32 s%d, s60' % sPS)
        I('s_mov_b32 s%d, s61' % (sPS + 1))
        I('s_mov_b32 s%d, %d' % (sPS + 2, 1728 * 2))
        self.vm('buffer_load_ushort %s, %s, %s, 0 offen' % (v(self.B1L), x0, srd(sPS)), 'bias')
        I('v_bfe_u32 %s, v0, 2, 2' % x0)
        I('v_lshlrev_b32 %s, 3, %s' % (x0, x0))
        I('v_bfe_u32 %s, v0, 4, 1' % x1)
        I('v_lshl_add_u32 %s, %s, 2, %s' % (x0, x1, x0))
        I('v_and_b32 %s, 0x23, v0' % x1)
        I('v_add_u32 %s, %s, %s' % (x0, x0, x1))
        I('v_cmp_gt_u32 vcc, 64, v0')
        I('v_cndmask_b32 %s, v0, %s, vcc' % (x0, x0))
        I('s_mul_i32 %s, %s, 80' % (t0, sC))
        I('v_add_lshl_u32 %s, %s, %s, 1' % (x0, x0, t0))
        I('s_mov_b32 s%d, s64' % sT2)
        I('s_mov_b32 s%d, s65' % (sT2 + 1))
        I('s_mov_b32 s%d, %d' % (sT2 + 2, 640 * 2))
        self.vm('buffer_load_ushort %s, %s, %s, 0 offen' % (v(self.B2L), x0, srd(sT2)), 'bias')

    def addresses(self):
        I = self.I
        lane, g, tok = self.lane, self.g, self.tok
        T = TMP + 3
        x0, x1, x2, x3 = v(T), v(T + 1), v(T + 2), v(T + 3)
        for i in range(1, 16):
            I('s_mov_b32 %s, %d' % (sK4(i), 4096 * i))
        I('s_mov_b32 %s, %d' % (sH54, 54 * 1024))
        I('s_mov_b32 %s, 0' % sLayer)
        I('s_mov_b32 %s, 0' % sSlow)
        I('s_mov_b32 %s, 0x%x' % (sTO, self.cfg.get('timeout', 0x20000)))
        I('v_add_u32 %s, 0x10000, %s' % (V['Rd1'], V['Rd0']))
        I('v_add_u32 %s, 0x20000, %s' % (V['Rd2'], V['Rd0']))
        I('v_lshrrev_b32 %s, 5, %s' % (x0, lane))
        I('v_lshlrev_b32 %s, 11, %s' % (x0, x0))
        I('v_bfe_u32 %s, %s, 2, 2' % (x1, lane))
        I('v_lshl_add_u32 %s, %s, 6, %s' % (x0, x1, x0))
        I('v_and_b32 %s, 1, %s' % (x1, lane))
        I('v_lshl_add_u32 %s, %s, 5, %s' % (x2, x1, x0))
        I('v_and_b32 %s, 16, %s' % (x1, lane))
        I('v_add_u32 %s, %s, %s' % (x2, x2, x1))
        I('v_lshl_add_u32 %s, %s, 1, %s' % (x0, x1, x0))
        I('v_and_b32 %s, 2, %s' % (x1, lane))
        I('v_lshl_add_u32 %s, %s, 2, %s' % (V['TrA0'], x1, x2))
        I('v_and_b32 %s, 3, %s' % (x1, lane))
        I('v_lshl_add_u32 %s, %s, 3, %s' % (V['TrB0'], x1, x0))
        for k in 'AB':
            I('v_add_u32 %s, 0x10000, %s' % (V['Tr%s1' % k], V['Tr%s0' % k]))
            I('v_add_u32 %s, 0x20000, %s' % (V['Tr%s2' % k], V['Tr%s0' % k]))
        I('s_lshl_b32 %s, %s, 2' % (t4, sRb))
        I('s_add_u32 %s, %s, %s' % (t4, t4, sW))
        I('s_lshr_b32 %s, %s, 1' % (t5, t3))
        I('s_and_b32 %s, %s, 1' % (t6, t2))
        I('s_mul_i32 %s, %s, %d' % (t0, t4, 40960))
        I('v_add_u32 %s, %s, %s' % (V['A1'], t0, V['Rd0']))
        I('v_add_u32 %s, 0x%x, %s' % (V['A3'], X1A, V['A1']))
        I('s_mul_i32 %s, %s, %d' % (t0, t3, 20480))
        I('s_add_u32 %s, %s, 0x%x' % (t0, t0, OA))
        I('v_add_u32 %s, %s, %s' % (V['A2'], t0, V['Rd0']))
        I('s_mul_i32 %s, %s, %d' % (t0, t3, 54 * 1024))
        I('s_add_u32 %s, %s, 0x%x' % (t0, t0, HA))
        I('v_add_u32 %s, %s, %s' % (V['A4'], t0, V['Rd0']))
        I('s_mul_i32 %s, %s, %d' % (t0, t5, 40960))
        I('s_mul_i32 %s, %s, %d' % (t1, sC, 5120))
        I('s_add_u32 %s, %s, %s' % (t1, t1, t0))
        I('s_lshl_b32 s3, %s, 8' % t6)
        I('s_add_u32 %s, %s, s3' % (t1, t1))
        I('v_lshl_add_u32 %s, %s, 4, %s' % (x0, tok, t1))
        I('v_lshl_add_u32 %s, %s, 9, %s' % (V['SX1'], g, x0))
        I('v_lshrrev_b32 %s, 1, %s' % (x1, g))
        I('v_lshl_add_u32 %s, %s, 9, %s' % (x0, x1, x0))
        I('v_and_b32 %s, 1, %s' % (x2, g))
        I('v_lshl_add_u32 %s, %s, 3, %s' % (x0, x2, x0))
        I('v_add_u32 %s, 4096, %s' % (V['SX3'], x0))
        I('s_lshr_b32 %s, %s, 1' % (t1, sC))
        I('s_mul_i32 %s, %s, 10' % (t1, t1))
        I('s_add_u32 %s, %s, %s' % (t1, t1, t6))
        I('s_lshl_b32 %s, %s, 10' % (t1, t1))
        I('s_add_u32 %s, %s, %s' % (t0, t0, t1))
        I('s_add_u32 %s, %s, 0x%x' % (t0, t0, X1A))
        I('s_and_b32 %s, %s, 1' % (t1, sC))
        I('s_lshl_b32 s3, %s, 12' % t1)
        I('s_add_u32 s3, s3, %s' % t0)
        I('v_add_u32 %s, s3, %s' % (V['S11'], V['Rd0']))
        I('s_lshl_b32 s3, %s, 3' % t1)
        I('s_add_u32 s3, s3, %s' % t0)
        I('s_add_u32 s3, s3, 8192')
        I('v_add_u32 %s, s3, %s' % (V['S13'], V['Rd0']))
        I('s_lshl_b32 %s, %s, 12' % (t0, t5))
        I('s_lshl_b32 s3, %s, 3' % t1)
        I('s_add_u32 %s, %s, s3' % (t0, t0))
        I('s_lshr_b32 s3, %s, 1' % sC)
        I('s_lshl_b32 s3, s3, 9')
        I('s_add_u32 %s, %s, s3' % (t0, t0))
        I('s_lshl_b32 s3, %s, 8' % t6)
        I('s_add_u32 %s, %s, s3' % (t0, t0))
        I('s_add_u32 %s, %s, 0x%x' % (t0, t0, ST))
        I('v_lshl_add_u32 %s, %s, 4, %s' % (x0, tok, t0))
        I('v_lshl_add_u32 %s, %s, 2, %s' % (V['SSt'], x1, x0))
        I('s_lshl_b32 %s, %s, 12' % (t0, t4))
        I('s_add_u32 %s, %s, 0x%x' % (t0, t0, ST))
        I('v_add_u32 %s, %s, %s' % (V['LSt1'], t0, V['Rd0']))
        I('v_lshl_add_u32 %s, %s, 4, %s' % (x0, tok, t0))
        I('v_lshl_add_u32 %s, %s, 9, %s' % (V['LSt3'], g, x0))
        I('s_lshl_b32 %s, %s, 8' % (sFl32, t4))
        I('s_add_u32 %s, %s, 0x%x' % (sFl32, sFl32, FL))
        I('s_lshl_b32 %s, %s, 8' % (sFl16, t5))
        I('s_add_u32 %s, %s, 0x%x' % (sFl16, sFl16, FL))
        I('s_lshl_b32 s3, %s, 3' % t6)
        I('s_add_u32 s3, s3, %s' % sC)
        I('s_lshl_b32 s3, s3, 2')
        I('s_add_u32 %s, %s, s3' % (sFlP16, sFl16))
        I('s_lshl_b32 s3, %s, 2' % sJ)
        I('s_add_u32 %s, %s, s3' % (sFlP32, sFl32))
        I('v_lshlrev_b32 %s, 2, %s' % (V['Fl'], tok))
        I('v_lshlrev_b32 %s, 2, %s' % (V['KFl'], lane))
        I('s_lshl_b32 %s, %s, 8' % (sKVFc, sJ))
        I('s_add_u32 %s, %s, 0x%x' % (sKVFc, sKVFc, KVF))
        I('s_lshl_b32 s3, %s, 2' % t4)
        I('s_add_u32 %s, %s, s3' % (sKVFp, sKVFc))
        I('s_lshl_b32 %s, s2, 2' % sPreP)
        I('s_add_u32 %s, %s, 0x%x' % (sPreP, sPreP, PREF))
        I('s_mul_i32 %s, %s, %d' % (t0, t4, 40960))
        I('s_lshr_b32 %s, %s, 2' % (t1, sJ))
        I('s_mul_i32 %s, %s, 5120' % (t1, t1))
        I('s_add_u32 %s, %s, %s' % (t0, t0, t1))
        I('s_add_u32 %s, %s, 0x%x' % (t0, t0, OA))
        I('s_and_b32 %s, %s, 3' % (t1, sJ))
        I('v_mul_u32_u24 %s, 20480, %s' % (x0, x2))
        I('v_lshl_add_u32 %s, %s, 4, %s' % (x0, tok, x0))
        I('s_lshl_b32 s3, %s, 10' % t1)
        I('s_add_u32 s3, s3, %s' % t0)
        I('v_add_u32 %s, s3, %s' % (x3, x0))
        I('v_lshl_add_u32 %s, %s, 8, %s' % (V['SO1'], x1, x3))
        I('s_lshl_b32 s3, %s, 8' % t1)
        I('s_add_u32 s3, s3, %s' % t0)
        I('s_add_u32 s3, s3, 4096')
        I('v_add_u32 %s, s3, %s' % (x3, x0))
        I('v_mov_b32 %s, 0x%x' % (V['SO2'], OOB))
        I('v_cmp_gt_u32 vcc, 32, %s' % lane)
        I('v_cndmask_b32 %s, %s, %s, vcc' % (V['SO2'], V['SO2'], x3))
        I('s_mul_i32 %s, %s, %d' % (t0, t4, 108 * 1024))
        I('s_add_u32 %s, %s, 0x%x' % (t0, t0, HA))
        I('s_mul_i32 s3, %s, 3072' % sJ)
        I('s_add_u32 s3, s3, %s' % t0)
        I('v_add_u32 %s, s3, %s' % (V['SH1'], V['Rd0']))
        I('s_lshr_b32 s3, %s, 1' % sJ)
        I('s_add_u32 s3, s3, 48')
        I('s_lshl_b32 s3, s3, 10')
        I('s_add_u32 %s, %s, s3' % (t0, t0))
        I('s_and_b32 s3, %s, 1' % sJ)
        I('s_lshl_b32 s3, s3, 3')
        I('s_add_u32 %s, %s, s3' % (t0, t0))
        I('s_cmp_ge_u32 %s, 12' % sJ)
        I('s_cselect_b32 %s, 0x40000000, %s' % (t0, t0))
        I('v_add_u32 %s, %s, %s' % (V['SH2'], t0, V['Rd0']))
        I('s_mul_i32 %s, %s, %d' % (sOb, sC, 100 * 1024))
        I('s_add_u32 %s, %s, 0x%x' % (sOb, sOb, WOT - slotO(0) * 4096))
        I('s_mul_i32 %s, %s, %d' % (sF1b, sJ, 140 * 1024))
        I('s_add_u32 %s, %s, 0x%x' % (sF1b, sF1b, W1T - slotF1(0) * 4096))
        I('s_mul_i32 %s, %s, %d' % (sF2b, sC, 272 * 1024))
        I('s_add_u32 %s, %s, 0x%x' % (sF2b, sF2b, W2T - slotF2(0) * 4096))
        I('s_lshl_b32 %s, %s, 16' % (t0, sJ))
        I('s_add_u32 %s, %s, 0x%x' % (t0, t0, KVP))
        I('v_lshl_add_u32 %s, v0, 4, %s' % (x0, t0))
        I('v_mov_b32 %s, 0x40000000' % V['KG'])
        I('v_cmp_gt_u32 vcc, 240, v0')
        I('v_cndmask_b32 %s, %s, %s, vcc' % (V['KG'], V['KG'], x0))
        I('s_lshl_b32 s3, %s, 12' % sRb)
        I('s_add_u32 %s, %s, s3' % (t0, t0))
        I('s_lshr_b32 %s, %s, 1' % (t5, sW))
        I('s_and_b32 %s, %s, 1' % (t6, sW))
        I('s_mul_i32 s3, %s, 1920' % t5)
        I('s_add_u32 %s, %s, s3' % (t0, t0))
        I('s_lshl_b32 s3, %s, 4' % t6)
        I('v_add_u32 %s, s3, %s' % (x0, tok))
        I('v_cmp_gt_u32 vcc, 24, %s' % x0)
        I('v_lshl_add_u32 %s, %s, 4, %s' % (x0, x0, t0))
        I('v_mov_b32 %s, 0x40000000' % x3)
        I('v_cndmask_b32 %s, %s, %s, vcc' % (x0, x3, x0))
        I('v_mul_u32_u24 %s, 384, %s' % (V['KS1'], g))
        I('v_add_u32 %s, %s, %s' % (V['KS1'], V['KS1'], x0))
        I('v_lshl_add_u32 %s, %s, 3, %s' % (x0, g, x0))
        I('v_add_u32 %s, 1536, %s' % (x0, x0))
        I('v_cmp_gt_u32 vcc, 32, %s' % lane)
        I('v_cndmask_b32 %s, %s, %s, vcc' % (V['KS2'], x3, x0))
        I('v_lshlrev_b32 %s, 4, v0' % V['KW'])
        I('v_add_u32 %s, %d, %s' % (V['KW'], KS_Q * 4096, V['KW']))
        I('v_and_b32 %s, 31, %s' % (x0, lane))
        I('v_lshlrev_b32 %s, 7, %s' % (x0, x0))
        I('v_lshl_add_u32 %s, %s, 14, %s' % (x0, x1, x0))
        I('v_and_b32 %s, 7, %s' % (x3, lane))
        I('v_lshl_add_u32 %s, %s, 4, %s' % (x0, x3, x0))
        I('s_lshl_b32 s3, %s, 12' % sW)
        I('s_add_u32 s3, s3, %d' % (T_Q0 * 4096))
        I('v_add_u32 %s, s3, %s' % (V['TW'], x0))
        I('v_bfe_u32 %s, %s, 2, 3' % (x0, lane))
        I('v_lshl_add_u32 %s, %s, 4, %s' % (x3, x1, x0))
        I('v_lshlrev_b32 %s, 7, %s' % (x3, x3))
        I('s_lshl_b32 s3, %s, 14' % t5)
        I('s_add_u32 s3, s3, %d' % (T_Q0 * 4096))
        I('v_add_u32 %s, s3, %s' % (x3, x3))
        I('v_and_b32 %s, 1, %s' % (x2, lane))
        I('v_lshl_add_u32 %s, %s, 3, %s' % (x3, x2, x3))
        I('v_bfe_u32 %s, %s, 1, 1' % (x2, lane))
        I('v_xor_b32 %s, %s, %s' % (V['KA'], x2, x0))
        I('v_lshl_add_u32 %s, %s, 4, %s' % (V['KA'], V['KA'], x3))
        I('v_add_u32 %s, 5, %s' % (x2, x2))
        I('s_cmp_eq_u32 %s, 1' % t6)
        I('s_cselect_b64 vcc, -1, 0')
        I('v_cndmask_b32 %s, %s, 7, vcc' % (x2, x2))
        I('v_xor_b32 %s, %s, %s' % (x2, x2, x0))
        I('v_lshl_add_u32 %s, %s, 4, %s' % (V['KB'], x2, x3))
        I('v_bfe_u32 %s, %s, 3, 2' % (x0, lane))
        I('v_bfe_u32 %s, %s, 2, 1' % (x2, lane))
        I('v_cmp_gt_u32 vcc, 2, %s' % x0)
        I('v_cndmask_b32 %s, 1, %s, vcc' % (x2, x2))
        I('v_lshlrev_b32 %s, 3, %s' % (x2, x2))
        I('v_lshl_add_u32 %s, %s, 2, %s' % (x2, x0, x2))
        I('v_and_b32 %s, 3, %s' % (x0, lane))
        I('v_add_u32 %s, %s, %s' % (x2, x2, x0))
        I('v_mul_u32_u24 %s, 24, %s' % (x0, x1))
        I('v_add_lshl_u32 %s, %s, %s, 4' % (x0, x0, x2))
        I('v_add_u32 %s, %d, %s' % (V['R1'], KS_Q * 4096, x0))
        I('v_cmp_gt_u32 vcc, 32, %s' % lane)
        I('v_cndmask_b32 %s, 21, %s, vcc' % (x0, x2))
        I('v_cndmask_b32 %s, %s, 21, vcc' % (x3, x2))
        I('v_lshlrev_b32 %s, 4, %s' % (x0, x0))
        I('v_lshlrev_b32 %s, 4, %s' % (x3, x3))
        I('v_add_u32 %s, %d, %s' % (V['R20'], KS_Q * 4096 + 1536, x0))
        I('v_add_u32 %s, %d, %s' % (V['R21'], KS_Q * 4096 + 1536 + 1920, x3))
        I('v_lshlrev_b32 %s, 4, %s' % (x0, x1))
        I('v_add_u32 %s, %d, %s' % (V['Tb1'], PA, x0))
        I('v_lshlrev_b32 %s, 4, %s' % (x0, g))
        I('v_add_u32 %s, %d, %s' % (V['Tb4'], PA, x0))
        self.force_wait('lgkmcnt(0)')
        I('s_add_u32 %s, %s, 0x9e3779a0' % (sTagG, sTagG))
        I('s_and_b32 %s, %s, 0xffffffe0' % (sTagG, sTagG))
        I('s_getreg_b32 s3, hwreg(HW_REG_XCC_ID)')
        I('s_and_b32 s3, s3, 15')
        I('s_or_b32 s3, s3, 16')
        I('s_or_b32 %s, %s, s3' % (sTagL, sTagG))
        I('v_mov_b32 %s, %s' % (V['TagG'], sTagG))
        I('v_mov_b32 %s, %s' % (V['TagL'], sTagL))

    def stats(self):
        I = self.I
        T = TMP
        I('v_pk_add_f32 %s, %s, %s' % (v(T, 2), v(RES, 2), v(RES + 2, 2)))
        I('v_pk_mul_f32 %s, %s, %s' % (v(T + 2, 2), v(RES, 2), v(RES, 2)))
        for i in range(1, 10):
            if i > 1:
                I('v_pk_add_f32 %s, %s, %s' % (v(T, 2), v(T, 2), v(RES + 2 * i, 2)))
            I('v_pk_fma_f32 %s, %s, %s, %s' % (v(T + 2, 2), v(RES + 2 * i, 2), v(RES + 2 * i, 2), v(T + 2, 2)))
        I('v_add_f32 %s, %s, %s' % (v(T), v(T), v(T + 1)))
        I('v_add_f32 %s, %s, %s' % (v(T + 2), v(T + 2), v(T + 3)))
        I('v_permlane32_swap_b32 %s, %s' % (v(T), v(T + 2)))
        I('v_add_f32 %s, %s, %s' % (v(T), v(T), v(T + 2)))
        I('v_mov_b32 %s, %s' % (v(T + 2), v(T)))
        I('v_permlane16_swap_b32 %s, %s' % (v(T), v(T + 2)))
        I('v_add_f32 %s, %s, %s' % (v(T + 2), v(T), v(T + 2)))

    def pack_res(self, P):
        for i in range(10):
            self.I('v_cvt_pk_bf16_f32 %s, %s, %s' % (v(P + i), v(RES + 2 * i), v(RES + 2 * i + 1)))

    def publish_x(self, P, which):
        a1, a3, sto, fl = (V['SX1'], V['SX3'], 0, F_XA) if which == 'XA' else (V['S11'], V['S13'], 2048, F_X1)
        tags = self.dual([
            'buffer_store_dwordx4 %s, %s, %s, 0 offen' % (v(P, 4), a1, srd(sACT)),
            'buffer_store_dwordx4 %s, %s, %s, 0 offen offset:2048' % (v(P + 4, 4), a1, srd(sACT)),
            'buffer_store_dwordx2 %s, %s, %s, 0 offen' % (v(P + 8, 2), a3, srd(sACT))])
        self.stats()
        tags += self.dual(['buffer_store_dword %s, %s, %s, 0 offen offset:%d' % (v(TMP + 2), V['SSt'], srd(sACT), sto)])
        self.wait(vm=tags)
        self.flag_local(sFlP16, fl)

    def p0(self):
        I = self.I
        XL = self.XL
        I('s_lshl_b32 %s, %s, 4' % (t0, sRb))
        I('s_add_u32 %s, %s, %s' % (t0, t0, sJ))
        I('s_lshl_b32 %s, %s, 2' % (t0, t0))
        I('s_add_u32 %s, %s, 0x%x' % (t0, t0, IDW))
        self.wait(vm=['x'])
        for i in range(10):
            I('v_lshlrev_b32 %s, 16, %s' % (v(RES + 2 * i), v(XL + i)))
            I('v_and_b32 %s, 0xffff0000, %s' % (v(RES + 2 * i + 1), v(XL + i)))
        I('s_mov_b32 s%d, s66' % sXO)
        I('s_mov_b32 s%d, s67' % (sXO + 1))
        I('L_p0_pub:')
        self.publish_x(XL, 'XA')
        I('s_or_b32 %s, %s, %s' % (t1, sW, sSlow))
        self.one_wave_store(t1, 'buffer_store_dword %s, off, %s, %s sc1' % (V['TagL'], srd(sWS), t0))
        I('v_lshlrev_b32 %s, 16, %s' % (v(TMP + 4), v(self.B1L)))
        I('v_lshlrev_b32 %s, 16, %s' % (v(TMP + 5), v(self.B2L)))
        I('v_min_u32 %s, 127, v0' % v(TMP + 6))
        I('v_lshlrev_b32 %s, 2, %s' % (v(TMP + 6), v(TMP + 6)))
        I('v_add_u32 %s, %d, %s' % (v(TMP + 6), PA, v(TMP + 6)))
        self.lg('ds_write_b32 %s, %s offset:%d' % (v(TMP + 6), v(TMP + 4), TB1 - PA))
        self.lg('ds_write_b32 %s, %s offset:%d' % (v(TMP + 6), v(TMP + 5), TB2 - PA))
        A_, B_, C_ = v(TMP + 7), v(TMP + 8), v(TMP + 9)
        I('v_and_b32 %s, 0x300, %s' % (A_, V['Rd0']))
        I('v_add_u32 %s, %s, %s' % (A_, A_, V['Fl']))
        I('s_lshl_b32 %s, %s, 10' % (t1, sRb))
        I('s_add_u32 %s, %s, 0x%x' % (t1, t1, FL))
        I('s_lshl_b32 %s, %s, 6' % (t4, sRb))
        I('s_add_u32 %s, %s, 0x%x' % (t4, t4, IDW))
        I('s_mov_b32 %s, 0' % t5)
        I('L_p0_poll:')
        I('buffer_load_dword %s, %s, %s, %s offen sc1' % (B_, A_, srd(sACT), t1))
        I('s_sub_u32 %s, %s, 1' % (sTO, sTO))
        I('s_cbranch_scc1 L_end')
        I('s_add_u32 %s, %s, 1' % (t5, t5))
        self.force_wait('vmcnt(0)')
        I('v_cmp_ne_u32 vcc, %s, %s' % (sTagL, B_))
        I('s_cbranch_vccz L_p0_ok')
        I('s_cmp_lt_u32 %s, %d' % (t5, self.cfg.get('id_after', 12)))
        I('s_cbranch_scc1 L_p0_poll')
        I('s_cmp_eq_u32 %s, 0' % sSlow)
        I('s_cbranch_scc0 L_p0_poll')
        I('buffer_load_dword %s, %s, %s, %s offen sc1' % (C_, V['Fl'], srd(sWS), t4))
        I('s_waitcnt vmcnt(0)')
        I('v_xor_b32 %s, %s, %s' % (C_, sTagL, C_))
        I('v_subrev_u32 %s, 1, %s' % (C_, C_))
        I('v_cmp_gt_u32 vcc, 15, %s' % C_)
        I('s_cbranch_vccz L_p0_poll')
        I('s_mov_b32 %s, 1' % sSlow)
        I('s_mov_b32 %s, %s' % (sTagL, sTagG))
        I('v_mov_b32 %s, %s' % (V['TagL'], sTagG))
        I('s_add_u32 s%d, s%d, 0x%x' % (sACT, sACT, 3 * ARENA))
        I('s_addc_u32 s%d, s%d, 0' % (sACT + 1, sACT + 1))
        I('s_waitcnt lgkmcnt(0)')
        I('s_branch L_p0_pub')
        I('L_p0_ok:')

    def build_phi(self):
        I = self.I
        T = TMP
        x0, x1, x2, b0, b1, msk = v(T + 24), v(T + 25), v(T + 26), v(T + 27), v(T + 28), v(T + 29)
        R = V['Rd0']
        I('v_bfe_u32 %s, %s, 4, 1' % (x0, R))
        I('v_bfe_u32 %s, %s, 6, 2' % (x1, R))
        I('v_mul_u32_u24 %s, 40, %s' % (x1, x1))
        I('v_bfe_u32 %s, %s, 5, 1' % (x2, R))
        I('v_lshl_add_u32 %s, %s, 3, %s' % (x1, x2, x1))
        I('v_bfe_u32 %s, %s, 8, 1' % (x2, R))
        I('v_lshl_add_u32 %s, %s, 4, %s' % (x1, x2, x1))
        I('v_add_u32 %s, %d, %s' % (x1, TPHI, x1))
        I('v_mul_u32_u24 %s, 960, %s' % (x2, x0))
        I('v_add_u32 %s, %s, %s' % (b0, x1, x2))
        I('v_mul_u32_u24 %s, 160, %s' % (x2, x0))
        I('v_add_u32 %s, %s, %s' % (b1, x1, x2))
        I('v_bfe_u32 %s, %s, 6, 1' % (x0, R))
        I('v_lshrrev_b32 %s, 9, %s' % (x2, R))
        I('v_cmp_eq_u32 vcc, %s, %s' % (x0, x2))
        I('v_cndmask_b32 %s, 0, -1, vcc' % msk)
        for Tt in range(2):
            for sq in range(5):
                self.lg('ds_read_b64_tr_b16 %s, %s offset:%d' %
                        (v(T + 12 * Tt + 2 * sq, 2), b0 if sq < 4 else b1, 160 * sq + 32 * Tt), 'phir')
        self.wait(lg=['phir'])
        for Tt in range(2):
            for i in range(12):
                if i < 10:
                    I('v_and_b32 %s, %s, %s' % (v(T + 12 * Tt + i), msk, v(T + 12 * Tt + i)))
                    I('v_accvgpr_write_b32 %s, %s' % (a(aPHI + 12 * Tt + i), v(T + 12 * Tt + i)))
                else:
                    I('v_accvgpr_write_b32 %s, 0' % a(aPHI + 12 * Tt + i))

    def p1(self, first):
        I = self.I
        cfg = self.cfg
        name = 'P1a' if first else 'P1b'
        SL = TMP + 44
        CF, SEL, CA, CB = TMP + 32, TMP + 36, TMP + 40, v(TMP + 52)

        def mf(s, f, r):
            c = v(ACC + 16 * f, 16)
            return ['v_mfma_f32_32x32x16_bf16 %s, %s, %s, %s' % (c, v(r, 4), a(4 * s, 4), c if s else '0')]

        hooks = {}

        def h_start():
            self.vm('buffer_load_dwordx4 %s, %s, %s, 0 offen sc1' % (v(SL, 4), V['LSt1'], srd(sACT)), 'st1')
            self.vm('buffer_load_dwordx4 %s, %s, %s, 0 offen offset:1024 sc1' % (v(SL + 4, 4), V['LSt1'], srd(sACT)), 'st1')
            if first:
                self.wait(lg_all=True)
                I('v_bfe_u32 %s, %s, 8, 1' % (v(SEL), V['Rd0']))
                I('v_bfe_u32 %s, %s, 6, 1' % (v(SEL + 1), V['Rd0']))
                I('v_cmp_eq_u32 vcc, %s, %s' % (v(SEL), v(SEL + 1)))
                I('v_mov_b32 %s, 0x3f803f80' % v(SEL + 1))
                I('v_cndmask_b32 %s, 0, %s, vcc' % (v(SEL), v(SEL + 1)))
                for i in range(1, 4):
                    I('v_mov_b32 %s, %s' % (v(SEL + i), v(SEL)))
                I('s_cmp_eq_u32 %s, 3' % sW)
                I('s_cselect_b64 vcc, -1, 0')
                I('v_cndmask_b32 %s, %s, %s, vcc' % (CB, V['TrA0'], V['TrB0']))
                I('s_lshr_b32 %s, %s, 2' % (t0, sW1k))
                I('v_add_u32 %s, %s, %s' % (CB, t0, CB))
        hooks[-1] = h_start
        if first:
            pp2 = cfg.get('pp2_step', 20)
            phi_step = cfg.get('phi_step', 4)
            seg = [0]

            def cs_hook(s):
                def fn():
                    if s == phi_step:
                        self.build_phi()
                    if s == pp2:
                        self.prepass2()
                    if s == cfg.get('pre_flag_step', 36):
                        assert 'pre' not in self.pre_at_bar
                        assert s > pp2 + 4
                        self.one_wave_store(sW, 'buffer_store_dword %s, off, %s, %s sc1' % (V['TagG'], srd(sWS), sPreP))
                    if s > 0:
                        self.wait(lg=[('cs', s - 1)])
                        I('v_mfma_f32_16x16x32_bf16 %s, %s, %s, %s' %
                          (v(CA, 4), v(SEL, 4), v(CF, 4), v(CA, 4) if s > 1 else '0'))
                    if s < 40:
                        byte = slotQ(s) * 4096
                        if byte >> 16 != seg[0]:
                            I('v_add_u32 %s, 0x%x, %s' % (CB, (((byte >> 16) - seg[0]) << 16) & 0xffffffff, CB))
                            seg[0] = byte >> 16
                        for ab in range(2):
                            tag = self.lg('ds_read_b64_tr_b16 %s, %s offset:%d' %
                                          (v(CF + 2 * ab, 2), CB, (byte & 0xffff) + 1024 * ab), ('cs', s))
                            self.q_read(slotQ(s), ('Q', s), tag)
                        self.q_done(slotQ(s))
                return fn
            for s in range(40):
                hooks[s] = cs_hook(s)
            jobs = [('Q', n) for n in range(cfg.get('q_pre', 12), 40)]
            bars = cfg.get('p1a_bars', [0, 4, 8, 12, 16, 20, 24, 28, 32, 35])
        else:
            jobs = [('Q', n) for n in range(cfg.get('q_head', 8), 40)]
            bars = cfg.get('p1b_bars', [0, 6, 12, 18, 24, 30, 35])
        left = self.gemm(name, 40, 4, 'Q', lambda i: 4 * i, V['A1'], 1, mf, L=5, we=2, bars=bars, jobs=jobs,
                         a0=cfg.get('p1_a0', 4), arate=cfg.get('p1_arate', 1.5),
                         jobrate=cfg.get('p1a_jr', 1.5) if first else cfg.get('p1b_jr', 1.25), hooks=hooks, tr=True)
        assert not left, left
        if first:
            cs_hook(40)()
            I('v_and_b32 %s, 0x7c, %s' % (v(CF), V['KFl']))
            I('s_lshr_b32 %s, %s, 3' % (t0, sW1k))
            I('s_add_u32 %s, %s, %d' % (t0, t0, TCS1))
            I('v_add_u32 %s, %s, %s' % (v(CF), t0, v(CF)))
            self.lg('ds_write_b32 %s, %s' % (v(CF), v(CA)))
        self.wait(vm_all=True, lg_all=True)
        self.barrier()

    def barrier(self):
        super().barrier()
        self.pre_at_bar = list(self.vmq)

    def ln_coeffs(self, S, n):
        I = self.I
        x = v(n)
        I('v_mul_f32 %s, 0x%x, %s' % (v(S), 0x3acccccd, v(S)))
        I('v_mul_f32 %s, %s, %s' % (x, v(S), v(S)))
        I('v_mul_f32 %s, 0x%x, %s' % (v(S + 1), 0x3acccccd, v(S + 1)))
        I('v_sub_f32 %s, %s, %s' % (x, v(S + 1), x))
        I('v_max_f32 %s, 0, %s' % (x, x))
        I('v_add_f32 %s, 0x%x, %s' % (x, 0x3727c5ac, x))
        I('v_rsq_f32 %s, %s' % (x, x))
        I('v_mul_f32 %s, %s, %s' % (v(S + 1), x, v(S)))
        I('v_mov_b32 %s, %s' % (v(S), x))
        I('v_xor_b32 %s, 0x80000000, %s' % (v(S + 1), v(S + 1)))

    def softmax_pair(self, Pq, E, dst):
        I = self.I
        M = TMP + 54
        mx, mn = v(M), v(M + 1)
        I('v_max3_f32 %s, %s, %s, %s' % (mx, v(Pq), v(Pq + 1), v(Pq + 2)))
        I('v_min3_f32 %s, %s, %s, %s' % (mn, v(Pq), v(Pq + 1), v(Pq + 2)))
        for i in range(3, 19, 2):
            I('v_max3_f32 %s, %s, %s, %s' % (mx, mx, v(Pq + i), v(Pq + i + 1)))
            I('v_min3_f32 %s, %s, %s, %s' % (mn, mn, v(Pq + i), v(Pq + i + 1)))
        I('v_max_f32 %s, %s, %s' % (mx, mx, v(Pq + 19)))
        I('v_min_f32 %s, %s, %s' % (mn, mn, v(Pq + 19)))
        I('s_mov_b32 s100, 0x%x' % LOG2E)
        I('s_mov_b32 s101, 0x%x' % LOG2E)
        I('v_mul_f32 %s, 0x%x, %s' % (mx, LOG2E | 0x80000000, mx))
        I('v_mul_f32 %s, 0x%x, %s' % (mn, LOG2E, mn))
        for i in range(10):
            I('v_pk_fma_f32 %s, %s, s[100:101], %s op_sel_hi:[1,1,0]' % (v(E + 2 * i, 2), v(Pq + 2 * i, 2), v(M, 2)))
            I('v_pk_fma_f32 %s, %s, s[100:101], %s op_sel:[0,0,1] op_sel_hi:[1,1,1] neg_lo:[1,0,0] neg_hi:[1,0,0]' %
              (v(E + 20 + 2 * i, 2), v(Pq + 2 * i, 2), v(M, 2)))
        for i in range(40):
            I('v_exp_f32 %s, %s' % (v(E + i), v(E + i)))
        S0, S1 = Pq, Pq + 2
        for h, S in ((0, S0), (1, S1)):
            I('v_pk_add_f32 %s, %s, %s' % (v(S, 2), v(E + 20 * h, 2), v(E + 20 * h + 2, 2)))
        for i in range(2, 10):
            for h, S in ((0, S0), (1, S1)):
                I('v_pk_add_f32 %s, %s, %s' % (v(S, 2), v(S, 2), v(E + 20 * h + 2 * i, 2)))
        I('v_add_f32 %s, %s, %s' % (mx, v(S0), v(S0 + 1)))
        I('v_add_f32 %s, %s, %s' % (mn, v(S1), v(S1 + 1)))
        I('v_rcp_f32 %s, %s' % (mx, mx))
        I('v_rcp_f32 %s, %s' % (mn, mn))
        for i in range(20):
            sel = 'op_sel_hi:[1,0]' if i < 10 else 'op_sel:[0,1] op_sel_hi:[1,1]'
            I('v_pk_mul_f32 %s, %s, %s %s' % (v(E + 2 * i, 2), v(E + 2 * i, 2), v(M, 2), sel))
        for i in range(20):
            I('v_cvt_pk_bf16_f32 %s, %s, %s' % (dst(i), v(E + 2 * i), v(E + 2 * i + 1)))

    def phi_mfma(self, KP, D):
        for ks in range(3):
            for Tt in range(2):
                c = v(D + 16 * Tt, 16)
                self.I('v_mfma_f32_32x32x16_bf16 %s, %s, %s, %s' %
                       (c, a(aPHI + 12 * Tt + 4 * ks, 4), v(KP + 4 * ks, 4), c if ks else '0'))

    def attention(self):
        I = self.I
        cfg = self.cfg
        SL = TMP + 44
        CS = BF
        for t in range(4):
            for gq in range(4):
                if t == 3 and gq == 3:
                    continue
                self.lg('ds_read_b128 %s, %s offset:%d' % (v(CS + 16 * t + 4 * gq, 4), V['Tb1'], TCS1 - PA + 128 * t + 32 * gq),
                        ('csr', t))
        I('v_pk_add_f32 %s, %s, %s' % (v(SL, 2), v(SL, 2), v(SL + 2, 2)))
        I('v_pk_add_f32 %s, %s, %s' % (v(SL + 4, 2), v(SL + 4, 2), v(SL + 6, 2)))
        I('v_pk_add_f32 %s, %s, %s' % (v(SL, 2), v(SL, 2), v(SL + 4, 2)))
        I('v_mov_b32 %s, %s' % (v(SL + 2), v(SL)))
        I('v_mov_b32 %s, %s' % (v(SL + 3), v(SL + 1)))
        I('v_permlane32_swap_b32 %s, %s' % (v(SL), v(SL + 2)))
        I('v_permlane32_swap_b32 %s, %s' % (v(SL + 1), v(SL + 3)))
        I('v_pk_add_f32 %s, %s, %s' % (v(SL, 2), v(SL, 2), v(SL + 2, 2)))
        self.ln_coeffs(SL, SL + 2)
        I('s_add_u32 s%d, s%d, 0x%x' % (sACT, sACT, ARENA))
        I('s_addc_u32 s%d, s%d, 0' % (sACT + 1, sACT + 1))
        self.wait(lg_all=True)

        def ln(off, n):
            for i in range(0, n, 2):
                I('v_pk_mul_f32 %s, %s, %s op_sel:[0,1] op_sel_hi:[1,1]' % (v(CS + off + i, 2), v(CS + off + i, 2), v(SL, 2)))
                I('v_pk_fma_f32 %s, %s, %s, %s op_sel_hi:[1,0,1]' %
                  (v(ACC + off + i, 2), v(ACC + off + i, 2), v(SL, 2), v(CS + off + i, 2)))

        def pack20(P, main, extra):
            for i in range(8):
                I('v_cvt_pk_bf16_f32 %s, %s, %s' % (v(P + i), v(ACC + main + 2 * i), v(ACC + main + 2 * i + 1)))
            for i in range(2):
                I('v_cvt_pk_bf16_f32 %s, %s, %s' % (v(P + 8 + i), v(ACC + extra + 2 * i), v(ACC + extra + 2 * i + 1)))
        KP, D = TMP, TMP + 12
        ln(0, 16)
        ln(48, 4)
        pack20(KP, 0, 48)
        I('v_mov_b32 %s, 0' % v(KP + 10))
        I('v_mov_b32 %s, 0' % v(KP + 11))
        self.phi_mfma(KP, D)
        ln(16, 16)
        ln(52, 4)
        VP = ACC
        pack20(VP, 16, 52)
        I('v_mov_b32 %s, 0x3f80' % v(VP + 10))
        I('v_mov_b32 %s, 0' % v(VP + 11))
        WA = ACC + 16
        for u in range(8):
            I('v_xor_b32 %s, %d, %s' % (v(WA + u), 16 * u, V['TW']))

        def twrite(u, r):
            tag = self.lg('ds_write_b128 %s, %s' % (v(WA + u), v(r, 4)), 'tw')
            for q in range(8):
                self.q_fill(T_Q0 + q, 'T', tag)
        for u in range(3):
            twrite(5 + u, VP + 4 * u)
        ln(32, 16)
        ln(56, 4)
        pack20(KP, 32, 56)
        E = BF
        PK = BF + 40
        self.softmax_pair(D, E, lambda i: v(PK + i))
        for u in range(5):
            twrite(u, PK + 4 * u)
        self.phi_mfma(KP, D)
        self.wait(lg_all=True)
        self.barrier()
        self.stamp(1)
        KA = ACC + 24
        I('v_xor_b32 %s, 32, %s' % (v(KA), V['KA']))
        I('v_xor_b32 %s, 64, %s' % (v(KA + 1), V['KA']))
        DK = ACC + 28
        FR = BF
        for ks in range(4):
            for f in range(4):
                base = V['KB'] if f == 3 else (V['KA'], v(KA), v(KA + 1))[f]
                for ab in range(2):
                    tag = self.lg('ds_read_b64_tr_b16 %s, %s offset:%d' %
                                  (v(FR + 16 * ks + 4 * f + 2 * ab, 2), base, 4096 * ks + 1024 * ab), ('kvr', ks))
                    for q in range(8):
                        self.q_read(T_Q0 + q, 'T', tag)
            if ks > 0:
                self.wait(lg=[('kvr', ks - 1)])
                for t in range(3):
                    c = v(DK + 4 * t, 4)
                    I('v_mfma_f32_16x16x32_bf16 %s, %s, %s, %s' %
                      (c, v(FR + 16 * (ks - 1) + 4 * t, 4), v(FR + 16 * (ks - 1) + 12, 4), c if ks > 1 else '0'))
        for q in range(8):
            self.q_done(T_Q0 + q)
        self.wait(lg_all=True)
        for t in range(3):
            c = v(DK + 4 * t, 4)
            I('v_mfma_f32_16x16x32_bf16 %s, %s, %s, %s' % (c, v(FR + 48 + 4 * t, 4), v(FR + 60, 4), c))
        PV = ACC + 40
        for i in range(6):
            I('v_cvt_pk_bf16_f32 %s, %s, %s' % (v(PV + i), v(DK + 2 * i), v(DK + 2 * i + 1)))
        self.vm('buffer_store_dwordx4 %s, %s, %s, 0 offen sc1' % (v(PV, 4), V['KS1'], srd(sWS)), 'kvs')
        self.vm('buffer_store_dwordx2 %s, %s, %s, 0 offen sc1' % (v(PV + 4, 2), V['KS2'], srd(sWS)), 'kvs')
        self.stamp(2)
        PQ = ACC
        qpos = lambda i: v(PQ + ((4 * ((i % 8) >> 1) + 2 * (i >> 3) + (i & 1)) if i < 16 else i))
        self.softmax_pair(D, E, qpos)
        self.wait(vm=['kvs'])
        I('s_mov_b64 exec, 1')
        self.vm('buffer_store_dword %s, off, %s, %s sc1' % (V['TagG'], srd(sWS), sKVFp))
        I('s_mov_b64 exec, -1')
        for pr in range(2):
            for i in range(4):
                I('v_permlane32_swap_b32 %s, %s' % (v(PQ + 8 * pr + i), v(PQ + 8 * pr + 4 + i)))
        self.stamp(3)
        I('s_cmp_eq_u32 %s, 0' % sLayer)
        I('s_cbranch_scc0 L_nopre')
        I('s_mov_b32 %s, 0x%x' % (t0, PREF))
        save = list(self.vmq)
        self.poll(V['Rd0'], sWS, t0, 0, sTagG, width=4)
        I('s_mov_b32 %s, 0x%x' % (t0, CSP))
        I('buffer_load_dwordx4 %s, v1, %s, %s offen sc1' % (v(TMP, 4), srd(sWS), t0))
        I('v_min_u32 %s, 127, v0' % v(TMP + 6))
        I('v_lshlrev_b32 %s, 2, %s' % (v(TMP + 6), v(TMP + 6)))
        I('v_add_u32 %s, %d, %s' % (v(TMP + 6), TCS3, v(TMP + 6)))
        I('s_waitcnt vmcnt(0)')
        I('v_pk_add_f32 %s, %s, %s' % (v(TMP, 2), v(TMP, 2), v(TMP + 2, 2)))
        I('v_add_f32 %s, %s, %s' % (v(TMP), v(TMP), v(TMP + 1)))
        I('ds_write_b32 %s, %s' % (v(TMP + 6), v(TMP)))
        I('s_waitcnt lgkmcnt(0)')
        I('L_nopre:')
        self.vmq = save
        for st in ('O', 'F1', 'F2'):
            self.stream_reset(st)
        n_o1 = cfg.get('o_before_poll', 25)
        for n in range(n_o1):
            self.dma_now('O', n)
        self.poll(V['KFl'], sWS, sKVFc, 0, sTagG)
        self.stamp(4)
        G = BF
        for p in range(16):
            self.vm('buffer_load_dwordx4 %s, %s, %s, %s offen sc1' % (v(G + 4 * p, 4), V['KG'], srd(sWS), sK4(p)), ('kg', p))
        for n in range(n_o1, 25):
            self.dma_now('O', n)
        SM = TMP
        I('s_mov_b32 s100, 0x00003f80')
        I('s_mov_b32 s101, 0x3f800000')
        for i in range(8):
            I('v_mov_b32 %s, 0' % v(SM + i))
        for p in range(16):
            self.wait(vm=[('kg', p)])
            for i in range(4):
                I('v_dot2c_f32_bf16 %s, s100, %s' % (v(SM + 2 * i), v(G + 4 * p + i)))
                I('v_dot2c_f32_bf16 %s, s101, %s' % (v(SM + 2 * i + 1), v(G + 4 * p + i)))
        for i in range(4):
            I('v_cvt_pk_bf16_f32 %s, %s, %s' % (v(SM + 8 + i), v(SM + 2 * i), v(SM + 2 * i + 1)))
        tag = self.lg('ds_write_b128 %s, %s' % (V['KW'], v(SM + 8, 4)), 'ksw')
        self.q_fill(KS_Q, 'KS', tag)
        self.wait(lg_all=True)
        self.barrier()
        self.stamp(5)
        AF = BF
        for ks in range(3):
            for hd in range(2):
                base, off = (V['R1'], 1920 * hd + 768 * ks) if ks < 2 else (V['R2%d' % hd], 0)
                tag = self.lg('ds_read_b128 %s, %s offset:%d' % (v(AF + 8 * ks + 4 * hd, 4), base, off), ('ksr', ks))
                self.q_read(KS_Q, 'KS', tag)
        self.q_done(KS_Q)
        n_f1 = cfg.get('f1_in_attn', 8)
        for n in range(n_f1):
            self.dma_now('F1', n)
        DO = TMP
        for ks in range(3):
            self.wait(lg=[('ksr', ks)])
            for hd in range(2):
                c = v(DO + 16 * hd, 16)
                b = v(PQ + 8 * ks + 4 * hd, 4) if ks < 2 else v(PQ + 16, 4)
                I('v_mfma_f32_32x32x16_bf16 %s, %s, %s, %s' % (c, v(AF + 8 * ks + 4 * hd, 4), b, c if ks else '0'))
        OP = ACC + 24
        for hd in range(2):
            dn = DO + 16 * hd + 12
            I('v_add_f32 %s, 0x%x, %s' % (v(dn), 0x358637bd, v(dn)))
            I('v_rcp_f32 %s, %s' % (v(dn), v(dn)))
        for hd in range(2):
            b = DO + 16 * hd
            for i in range(6):
                I('v_pk_mul_f32 %s, %s, %s op_sel_hi:[1,0]' % (v(b + 2 * i, 2), v(b + 2 * i, 2), v(b + 12, 2)))
            for i in range(6):
                d = OP + 4 * hd + i if i < 4 else OP + 8 + 2 * hd + (i - 4)
                I('v_cvt_pk_bf16_f32 %s, %s, %s' % (v(d), v(b + 2 * i), v(b + 2 * i + 1)))
        tags = self.dual([
            'buffer_store_dwordx4 %s, %s, %s, 0 offen' % (v(OP, 4), V['SO1'], srd(sACT)),
            'buffer_store_dwordx4 %s, %s, %s, 0 offen offset:512' % (v(OP + 4, 4), V['SO1'], srd(sACT)),
            'buffer_store_dwordx4 %s, %s, %s, 0 offen' % (v(OP + 8, 4), V['SO2'], srd(sACT))])
        self.wait(vm=tags)
        self.flag_local(sFlP32, F_OA)
        for n in ('KS1', 'KS2', 'KG'):
            I('v_add_u32 %s, 0x100000, %s' % (V[n], V[n]))
        I('s_add_u32 %s, %s, 0x1000' % (sKVFc, sKVFc))
        I('s_add_u32 %s, %s, 0x1000' % (sKVFp, sKVFp))
        self.stamp(6)
        return n_f1

    def mf16(self, areg):
        def mf(s, f, r):
            c = v(RES + 4 * f, 4)
            return ['v_mfma_f32_16x16x32_bf16 %s, %s, %s, %s' % (c, v(r, 4), a(areg(s), 4), c)]
        return mf

    def p2(self, f1_done):
        cfg = self.cfg
        self.poll(V['Fl'], sACT, sFl16, F_OA, sTagL)
        self.stamp(7)
        jobs = [('F1', n) for n in range(f1_done, 35)]
        left = self.gemm('P2', 20, 5, 'O', lambda i: 4 * i, V['A2'], 1, self.mf16(lambda s: 4 * s), L=10, we=5,
                         bars=cfg.get('p2_bars', [0, 8, 14]), jobs=jobs, a0=cfg.get('p2_a0', 4),
                         arate=cfg.get('p2_arate', 1.25), jobrate=cfg.get('p2_jr', 0.5), jobstart=cfg.get('p2_js', 4))
        self.stamp(8)
        self.pack_res(TMP + 8)
        self.publish_x(TMP + 8, 'X1')
        self.stamp(9)
        return left

    def p3(self, jobs):
        I = self.I
        cfg = self.cfg
        SL = TMP + 44
        self.poll(V['Fl'], sACT, sFl32, F_X1, sTagL)
        self.stamp(10)

        def mf(s, f, r):
            out = []
            for tt in range(2):
                c = v(ACC + 28 * tt + 4 * f, 4)
                out.append('v_mfma_f32_16x16x32_bf16 %s, %s, %s, %s' % (c, v(r, 4), a(8 * s + 4 * tt, 4), c if s else '0'))
            return out

        def h_start():
            for tt in range(2):
                self.vm('buffer_load_dwordx4 %s, %s, %s, 0 offen offset:%d sc1' %
                        (v(SL + 4 * tt, 4), V['LSt3'], srd(sACT), 2048 + 256 * tt), 'st3')
        jobs = list(jobs) + [('F2', n) for n in range(68)]
        left = self.gemm('P3', 20, 7, 'F1', lambda i: 4 * i, V['A3'], 2, mf, L=5, we=2,
                         bars=cfg.get('p3_bars', [0, 4, 8, 12, 16]), jobs=jobs, a0=cfg.get('p3_a0', 4),
                         arate=cfg.get('p3_arate', 3), jobrate=cfg.get('p3_jr', 2), hooks={-1: h_start},
                         jobstart=cfg.get('p3_js', 0))
        self.stamp(11)
        CS, B1 = BF, BF + 28
        for t in range(7):
            self.lg('ds_read_b128 %s, %s offset:%d' % (v(CS + 4 * t, 4), V['Tb4'], TCS3 - PA + 64 * t), 'tb')
            self.lg('ds_read_b128 %s, %s offset:%d' % (v(B1 + 4 * t, 4), V['Tb4'], TB1 - PA + 64 * t), 'tb')
        self.wait(vm=['st3'])
        for tt in range(2):
            S = SL + 4 * tt
            I('v_pk_add_f32 %s, %s, %s' % (v(S, 2), v(S, 2), v(S + 2, 2)))
            for sw in ('v_permlane32_swap_b32', 'v_permlane16_swap_b32'):
                I('v_mov_b32 %s, %s' % (v(S + 2), v(S)))
                I('v_mov_b32 %s, %s' % (v(S + 3), v(S + 1)))
                I('%s %s, %s' % (sw, v(S), v(S + 2)))
                I('%s %s, %s' % (sw, v(S + 1), v(S + 3)))
                I('v_pk_add_f32 %s, %s, %s' % (v(S, 2), v(S, 2), v(S + 2, 2)))
            self.ln_coeffs(S, S + 2)
        self.wait(lg_all=True)
        tags = []
        for tt in range(2):
            S = SL + 4 * tt
            Cc = ACC + 28 * tt
            HP = TMP + 16 * tt + 4
            for i in range(14):
                I('v_pk_fma_f32 %s, %s, %s, %s op_sel:[0,1,0] op_sel_hi:[1,1,1]' %
                  (v(TMP, 2), v(CS + 2 * i, 2), v(S, 2), v(B1 + 2 * i, 2)))
                I('v_pk_fma_f32 %s, %s, %s, %s op_sel_hi:[1,0,1]' % (v(Cc + 2 * i, 2), v(Cc + 2 * i, 2), v(S, 2), v(TMP, 2)))
                I('v_max_f32 %s, 0, %s' % (v(Cc + 2 * i), v(Cc + 2 * i)))
                I('v_max_f32 %s, 0, %s' % (v(Cc + 2 * i + 1), v(Cc + 2 * i + 1)))
                I('v_pk_mul_f32 %s, %s, %s' % (v(Cc + 2 * i, 2), v(Cc + 2 * i, 2), v(Cc + 2 * i, 2)))
                I('v_cvt_pk_bf16_f32 %s, %s, %s' % (v(HP + i), v(Cc + 2 * i), v(Cc + 2 * i + 1)))
            so = sH54 if tt else '0'
            tags += self.dual(
                ['buffer_store_dwordx4 %s, %s, %s, %s offen offset:%d' % (v(HP + 4 * pr, 4), V['SH1'], srd(sACT), so, 1024 * pr)
                 for pr in range(3)] +
                ['buffer_store_dwordx2 %s, %s, %s, %s offen' % (v(HP + 12, 2), V['SH2'], srd(sACT), so)])
        for t in range(5):
            self.lg('ds_read_b128 %s, %s offset:%d' % (v(BF + 4 * t, 4), V['Tb4'], TB2 - PA + 64 * t), 'tb')
        self.wait(lg_all=True)
        for i in range(10):
            I('v_pk_add_f32 %s, %s, %s' % (v(RES + 2 * i, 2), v(RES + 2 * i, 2), v(BF + 2 * i, 2)))
        self.wait(vm=tags)
        self.flag_local(sFlP32, F_HA)
        self.stamp(12)
        return left

    def p4(self, jobs):
        I = self.I
        cfg = self.cfg
        self.poll(V['Fl'], sACT, sFl16, F_HA, sTagL)
        self.stamp(13)
        I('s_cmp_eq_u32 %s, 0' % sLayer)
        I('s_cselect_b32 s%d, 0x%x, 0' % (sWQ + 2, 640 * 3840))
        jobs = list(jobs) + [('Q', n) for n in range(cfg.get('q_head', 8))]
        ar = lambda i: 4 * (i % 40)
        left = self.gemm('P4', 54, 5, 'F2', ar, V['A4'], 1, self.mf16(ar), L=10, we=5,
                         bars=cfg.get('p4_bars', [0, 6, 12, 18, 24, 30, 36, 42, 48]), jobs=jobs, a0=cfg.get('p4_a0', 4),
                         arate=cfg.get('p4_arate', 1.25), jobrate=cfg.get('p4_jr', 1.0), jobstart=cfg.get('p4_js', 0))
        assert not left, left
        self.stamp(14)
        self.pack_res(TMP + 8)

    def build(self):
        I = self.I
        self.prologue()
        if self.cfg.get('stamps'):
            I('v_mov_b32 %s, 0' % V['Stamp'])
            I('v_mov_b32 %s, 0' % V['Stamp0'])
        self.stamp(16)
        self.p0()
        self.stamp(17)
        self.stop('p0')
        self.p1(True)
        snap = self.snapshot()
        I('L_body:')
        self.stamp(0)
        n_f1 = self.attention()
        self.stop('attn')
        left = self.p2(n_f1)
        self.stop('p2')
        left = self.p3(left)
        self.stop('p3')
        self.p4(left)
        I('s_cmp_eq_u32 %s, 0' % sLayer)
        I('s_cbranch_scc0 L_final')
        self.publish_x(TMP + 8, 'XA')
        self.stop('p4')
        self.stamp(15)
        I('s_mov_b32 %s, 1' % sLayer)
        if self.cfg.get('stamps'):
            I('v_mov_b32 %s, %s' % (V['Stamp0'], V['Stamp']))
        self.poll(V['Fl'], sACT, sFl32, F_XA, sTagL)
        self.stamp(17)
        self.p1(False)
        snap2 = self.snapshot()
        assert snap == snap2, (snap, snap2)
        I('s_nop 7')
        I('s_nop 3')
        I('s_branch L_body')
        I('L_final:')
        P = TMP + 8
        I('buffer_store_dwordx4 %s, %s, %s, 0 offen' % (v(P, 4), V['X1'], srd(sXO)))
        I('buffer_store_dwordx4 %s, %s, %s, 0 offen offset:64' % (v(P + 4, 4), V['X1'], srd(sXO)))
        I('buffer_store_dwordx2 %s, %s, %s, 0 offen offset:128' % (v(P + 8, 2), V['X3'], srd(sXO)))
        I('s_or_b32 %s, s2, %s' % (t0, sW))
        self.one_wave_store(t0, 'buffer_store_dword %s, off, %s, 0' % (V['TagG'], srd(sWS)))
        if self.cfg.get('stamps'):
            self.stamp(15)
            I('s_lshl_b32 %s, s2, 11' % t0)
            I('s_lshr_b32 %s, %s, 1' % (t1, sW1k))
            I('s_add_u32 %s, %s, %s' % (t0, t0, t1))
            I('s_add_u32 %s, %s, 0x%x' % (t0, t0, STAMPS))
            I('buffer_store_dword %s, %s, %s, %s offen' % (V['Stamp0'], V['KFl'], srd(sWS), t0))
            I('buffer_store_dword %s, %s, %s, %s offen offset:256' % (V['Stamp'], V['KFl'], srd(sWS), t0))
        I('L_end:')
        I('s_endpgm')


HEADER = """; Kernarg layout for this problem (96 bytes, ptrs only, base s[0:1]):
; @launch grid=(256,1,1) block=(256,1,1) lds=163840
.amdgcn_target "amdgcn-amd-amdhsa--gfx950"
.text
.globl {n}_kernel
.p2align 8
.type {n}_kernel,@function
{n}_kernel:
"""
FOOTER = """.section .rodata,"a"
.p2align 6
.amdhsa_kernel {n}_kernel
  .amdhsa_next_free_vgpr 512
  .amdhsa_next_free_sgpr 102
  .amdhsa_accum_offset 256
  .amdhsa_group_segment_fixed_size 0
  .amdhsa_kernarg_size 96
  .amdhsa_user_sgpr_count 2
  .amdhsa_user_sgpr_kernarg_segment_ptr 1
  .amdhsa_system_sgpr_workgroup_id_x 1
.end_amdhsa_kernel
"""


def generate(cfg):
    k = K(cfg)
    k.build()
    lines, added = fix_hazards(k.L)
    body = '\n'.join(x if x.endswith(':') else '    ' + x for x in lines)
    return HEADER.format(n=NAME) + body + '\n' + FOOTER.format(n=NAME), dict(n=len(lines), nops=added, maxvm=k.maxvm)


if __name__ == '__main__':
    import json
    cfg = json.loads(sys.argv[2]) if len(sys.argv) > 2 else {}
    text, info = generate(cfg)
    out = sys.argv[1] if len(sys.argv) > 1 else 'cdna_kernels/%s.s' % NAME
    open(out, 'w').write(text)
    print(info)
```

```python
import sys
import os
sys.path.insert(0, os.path.dirname(os.path.abspath(__file__)))
from asmlib import Gen, fix_hazards

NAME = 'interleave_layers__linear_kernel_hedgehog__dense_activation_squared_relu__prompt'

EPOCH, IDW, PREF, KVF, CSP = 0, 0x1000, 0x2000, 0x4000, 0x8000
KVP, WOT, W1T, W2T, WQC, STAMPS = 0x100000, 0x300000, 0x400000, 0x700000, 0xA00000, 0xD00000
ARENA0, ARENA = 0x1000000, 0xA00000
TGS = 152 * 1024
AL, ST, FL, BE = 0, 40 * 1024, 42 * 1024, 44 * 1024
F_X, F_B = 0, 64
OOB = 0x7ffffff0
NQ = 39
PA = NQ * 4096
TCS1, TCS3, TB1, TB2, TPHI = PA, PA + 512, PA + 1024, PA + 1536, PA + 2048
T_Q0 = 14
KS_Q = 27
STG_Q0 = 34
slotQ = lambda i: i % NQ
slotO = lambda i: (i + 28) % NQ
slotF1 = lambda i: (i + 14) % NQ
slotF2 = lambda i: (i + 10) % NQ
sWS, sLD, sWQ, sXO, sPS, sT2 = 4, 8, 12, 16, 20, 24
sST, sTC = 48, 52
sStep = 's56'
srd = lambda b: 's[%d:%d]' % (b, b + 3)
sK4 = lambda i: '0' if i == 0 else 's%d' % (31 + i)
sH54 = 's47'
(sTagG, sW, sW1k, sLayer, sSlow, sJ, sRb, sC, sTO, sTagL, sFl32, sFl16, sFlP16, sFlP32, sQoff, sKVFc, sKVFp,
 sOb, sF1b, sF2b, sPreP, sTy) = ['s%d' % i for i in range(72, 94)]
sPst = ['s28', 's29', 's30', 's31', 's94']
t0, t1, t2, t3, t4, t5, t6 = 's95', 's96', 's97', 's98', 's99', 's100', 's101'
_names = ('Rd0 Rd1 Rd2 TrA0 TrA1 TrA2 TrB0 TrB1 TrB2 A1 A2 A4 SX1 SX3 S11 S13 SSt LSt1 LSt3 SO1 SO2 SH1 SH2 X1 X3 '
          'Fl TagL TagG DQ DO DF1 DF2 KS1 KS2 KG KFl TW KA KB R1 R20 R21 Tb1 Tb4 KW Cs Stamp Stamp0').split()
V = {n: 'v%d' % (i + 2) for i, n in enumerate(_names)}
assert len(_names) + 2 <= 52
RES, ACC, BF, TMP = 52, 72, 136, 200
aPHI = 160


def v(i, n=1):
    return 'v%d' % i if n == 1 else 'v[%d:%d]' % (i, i + n - 1)


def a(i, n=1):
    return 'a%d' % i if n == 1 else 'a[%d:%d]' % (i, i + n - 1)


LOG2E = 0x3fb8aa3b


class K(Gen):
    def __init__(self, cfg):
        super().__init__(NQ)
        self.cfg = cfg
        self.nstamp = 0
        self.stream_pos = {}

    def stamp(self, idx):
        if not self.cfg.get('stamps'):
            return
        self.wait(lg_all=True)
        self.I('s_memtime s[100:101]')
        self.I('s_waitcnt lgkmcnt(0)')
        self.I('v_writelane_b32 %s, s100, %d' % (V['Stamp'], idx))

    def stop(self, name):
        if self.cfg.get('stop') == name:
            self.I('s_branch L_end')

    def ldsaddr(self, byte, kind='Rd'):
        return V['%s%d' % (kind, byte >> 16)], byte & 0xffff

    def dual(self, stores, wait_then_flag=None):
        lab = self.label('L_st')
        self.I('s_cmp_eq_u32 %s, 0' % sSlow)
        self.I('s_cbranch_scc0 %s_s' % lab)
        for s in stores:
            self.I(s + ' ; nopad')
        self.I('s_branch %s_e' % lab)
        self.I('%s_s:' % lab)
        tags = []
        for s in stores:
            tags.append(self.vm(s + ' sc1'))
        self.I('%s_e:' % lab)
        return tags

    def one_wave_store(self, cond_reg, text):
        lab = self.label('L_ow')
        self.I('s_cmp_eq_u32 %s, 0' % cond_reg)
        self.I('s_cbranch_scc0 %s' % lab)
        self.I('s_mov_b64 exec, 1')
        self.I(text)
        self.I('s_mov_b64 exec, -1')
        self.I('%s:' % lab)

    def flag_local(self, soff, imm):
        self.I('s_mov_b64 exec, 1')
        self.dual(['buffer_store_dword %s, off, %s, %s offset:%d' % (V['TagL'], srd(sST), soff, imm)])
        self.I('s_mov_b64 exec, -1')
        self.I('s_mov_b64 s[%d:%d], s[%d:%d]' % (sLD, sLD + 1, sST, sST + 1))
        self.I('s_add_u32 s%d, s%d, %s' % (sST, sST, sStep))
        self.I('s_addc_u32 s%d, s%d, 0' % (sST + 1, sST + 1))

    def next_tag(self):
        self.I('s_add_u32 %s, %s, 32' % (sTagL, sTagL))
        self.I('v_mov_b32 %s, %s' % (V['TagL'], sTagL))

    def touches(self, which):
        L = {'XA': [('SX1', '0', 0), ('SX1', '0', 2048), ('SX3', '0', 0), ('SSt', '0', 0)],
             'X1': [('S11', '0', 0), ('S11', '0', 2048), ('S13', '0', 0), ('SSt', '0', 0)],
             'O': [('SO1', '0', 0), ('SO1', '0', 512), ('SO2', '0', 0)],
             'H': [('SH1', so, 1024 * pr) for so in ('0', sH54) for pr in range(3)] + [('SH2', so, 0) for so in ('0', sH54)]}[which]
        if which not in self.cfg.get('touch', ['XA', 'X1', 'O', 'H']):
            return []
        return [('T', 'buffer_load_dword %s, %s, %s, %s offen offset:%d sc1' % (a(255), V[r], srd(sTC), so, off))
                for r, so, off in L]

    def poll(self, addr, sd, soff, imm, tag, width=1):
        lab = self.label('L_poll')
        T = TMP + 52
        self.I('%s:' % lab)
        if width == 1:
            self.I('buffer_load_dword %s, %s, %s, %s offen offset:%d sc1' % (v(T), addr, srd(sd), soff, imm))
        else:
            self.I('buffer_load_dwordx4 %s, %s, %s, %s offen offset:%d sc1' % (v(T, 4), addr, srd(sd), soff, imm))
        self.I('s_sub_u32 %s, %s, 1' % (sTO, sTO))
        self.I('s_cbranch_scc1 L_end')
        self.force_wait('vmcnt(0)')
        if width == 4:
            for i in range(4):
                self.I('v_xor_b32 %s, %s, %s' % (v(T + i), tag, v(T + i)))
            self.I('v_or3_b32 %s, %s, %s, %s' % (v(T), v(T), v(T + 1), v(T + 2)))
            self.I('v_or_b32 %s, %s, %s' % (v(T), v(T), v(T + 3)))
            self.I('v_cmp_ne_u32 vcc, 0, %s' % v(T))
        else:
            self.I('v_cmp_ne_u32 vcc, %s, %s' % (tag, v(T)))
        self.I('s_cbranch_vccnz %s' % lab)

    def stream_reset(self, st):
        base, slot = {'O': (sOb, slotO), 'F1': (sF1b, slotF1), 'F2': (sF2b, slotF2)}[st]
        self.I('v_add_u32 %s, %s, %s' % (V['D' + st], base, V['Rd0']))
        self.stream_pos[st] = -slot(0)

    def dma(self, st, n):
        slot = {'Q': slotQ, 'O': slotO, 'F1': slotF1, 'F2': slotF2}[st](n)

        def pre():
            self.I('s_add_u32 m0, %s, %d' % (sW1k, slot * 4096))
            if st == 'Q':
                if n == 0:
                    self.I('s_mov_b32 %s, 0' % sQoff)
                else:
                    self.I('s_add_u32 %s, %s, %d' % (sQoff, sQoff, 16 * 3840))
            elif n - slot != self.stream_pos[st]:
                d = (n - slot - self.stream_pos[st]) * 4096
                self.I('v_add_u32 %s, 0x%x, %s' % (V['D' + st], d, V['D' + st]))
                self.stream_pos[st] = n - slot

        def issue():
            if st == 'Q':
                tag = self.vm('buffer_load_dwordx4 %s, %s, %s offen %slds' % (V['DQ'], srd(sWQ), sQoff, self.cfg.get('wq_pol', '')), (st, n))
            else:
                tag = self.vm('buffer_load_dwordx4 %s, %s, m0 offen %slds' % (V['D' + st], srd(sWS), self.cfg.get('w_pol', '')), (st, n))
            self.q_fill(slot, (st, n), tag)
        return slot, pre, issue

    def dma_now(self, st, n):
        slot, pre, issue = self.dma(st, n)
        pre()
        issue()

    def gemm(self, name, steps, nfr, st, areg, avaddr, nA, mf, L, we, bars, jobs, a0, arate, jobrate, jobstart=0,
             hooks=None, tr=False, touch=(), touchstart=0):
        hooks = hooks or {}
        slotf = {'Q': slotQ, 'O': slotO, 'F1': slotF1, 'F2': slotF2}[st]
        total = steps * nfr
        P = L + 1
        pool = lambda n: BF + 4 * (n % P)
        nAtot = steps * nA
        state = dict(cur=0, an=0, jacc=0.0, aacc=0.0, pend=None)
        jobs = list(jobs)
        touch = list(touch)

        def quad_of(n):
            return (n // nfr) if tr else (n >> 2)

        def aload():
            i = state['an']
            state['an'] += 1
            assert all(areg(m) != areg(i) for m in range(state['cur'] * nA, i)), 'A window overrun'
            self.vm('buffer_load_dwordx4 %s, %s, %s, %s offen offset:%d sc1' %
                    (a(areg(i), 4), avaddr, srd(sLD), sK4(i >> 2), (i & 3) * 1024), (name, 'A', i))

        def read(n):
            s, f = divmod(n, nfr)
            if f == 0 and s in bars:
                nxt = min([b for b in bars if b > s] + [steps])
                need = {(st, quad_of(m)) for m in range(n, nxt * nfr)}
                self.wait(vm=need)
                self.barrier()
            qn = quad_of(n)
            r = pool(n)
            if tr:
                byte = slotf(qn) * 4096 + 256 * f
                base, off = self.ldsaddr(byte, 'TrB' if f == 3 else 'TrA')
                for ab in range(2):
                    tag = self.lg('ds_read_b64_tr_b16 %s, %s offset:%d' % (v(r + 2 * ab, 2), base, off + 1024 * ab),
                                  (name, 'B', n))
                    self.q_read(slotf(qn), (st, qn), tag)
            else:
                base, off = self.ldsaddr(slotf(qn) * 4096 + (n & 3) * 1024)
                tag = self.lg('ds_read_b128 %s, %s offset:%d' % (v(r, 4), base, off), (name, 'B', n))
                self.q_read(slotf(qn), (st, qn), tag)
            if n + 1 == total or quad_of(n + 1) != qn:
                if not (name == 'P1a'):
                    self.q_done(slotf(qn))

        def filler(s):
            if state['pend'] is not None:
                state['pend']()
                state['pend'] = None
                return
            if state['aacc'] >= 1 and state['an'] < nAtot:
                state['aacc'] -= 1
                aload()
            elif touch and s >= touchstart:
                self.vm(touch.pop(0)[1])
            if state['jacc'] >= 1 and jobs and s >= jobstart:
                slot, pre, issue = self.dma(*jobs[0])
                if self.q_is_free(slot):
                    jobs.pop(0)
                    state['jacc'] -= 1
                    pre()
                    state['pend'] = issue

        for _ in range(min(a0, nAtot)):
            aload()
        if -1 in hooks:
            hooks[-1]()
        for n in range(L):
            read(n)
        for n in range(total):
            s, f = divmod(n, nfr)
            if f == 0:
                state['cur'] = s
                if s in hooks:
                    if state['pend'] is not None:
                        state['pend']()
                        state['pend'] = None
                    hooks[s]()
                state['aacc'] += arate
                state['jacc'] = min(state['jacc'] + jobrate, max(2.0, 2 * jobrate))
            vt = [(name, 'A', s * nA + q) for q in range(nA)] if f == 0 else []
            while f == 0 and state['an'] < (s + 1) * nA:
                aload()
            lt = [(name, 'B', m) for m in range(n, min(n + we, total))] if n % we == 0 else []
            self.wait(vm=vt, lg=lt)
            ms = mf(s, f, pool(n))
            self.I(ms[0])
            if n + L < total:
                read(n + L)
            if len(ms) > 1:
                self.I(ms[1])
            filler(s)
        if state['pend'] is not None:
            state['pend']()
        assert not touch
        return jobs

    def prologue(self):
        I = self.I
        I('s_cmp_ge_u32 s2, 256')
        I('s_cbranch_scc1 L_end')
        I('s_load_dwordx16 s[48:63], s[0:1], 0')
        I('s_load_dwordx8 s[64:71], s[0:1], 64')
        T = TMP
        lane, g, tok, x0, x1, x2 = v(T), v(T + 1), v(T + 2), v(T + 3), v(T + 4), v(T + 5)
        self.lane, self.g, self.tok = lane, g, tok
        I('v_lshrrev_b32 %s, 6, v0' % x0)
        I('v_and_b32 %s, 63, v0' % lane)
        I('v_readfirstlane_b32 %s, %s' % (sW, x0))
        I('s_and_b32 %s, s2, 7' % t0)
        I('s_lshr_b32 %s, s2, 7' % t1)
        I('s_lshl_b32 %s, %s, 1' % (t0, t0))
        I('s_add_u32 %s, %s, %s' % (sRb, t0, t1))
        I('s_bfe_u32 %s, s2, 0x40003' % sJ)
        I('s_and_b32 %s, %s, 7' % (sC, sJ))
        I('s_lshl_b32 %s, %s, 10' % (sW1k, sW))
        I('s_lshr_b32 %s, %s, 3' % (t2, sJ))
        I('s_lshl_b32 %s, %s, 2' % (t2, t2))
        I('s_add_u32 %s, %s, %s' % (t2, t2, sW))
        I('s_lshl_b32 %s, %s, 3' % (t3, sRb))
        I('s_add_u32 %s, %s, %s' % (t3, t3, t2))
        I('s_mul_i32 %s, %s, %d' % (t0, t3, 16 * 1280))
        I('s_mul_i32 %s, %s, 160' % (t1, sC))
        I('s_add_u32 %s, %s, %s' % (t0, t0, t1))
        I('v_lshrrev_b32 %s, 4, %s' % (g, lane))
        I('v_and_b32 %s, 15, %s' % (tok, lane))
        I('v_mul_u32_u24 %s, 1280, %s' % (x0, tok))
        I('v_add_u32 %s, %s, %s' % (x0, t0, x0))
        I('v_lshl_add_u32 %s, %s, 4, %s' % (V['X1'], g, x0))
        I('v_lshl_add_u32 %s, %s, 3, %s' % (V['X3'], g, x0))
        I('v_lshlrev_b32 %s, 4, %s' % (V['Rd0'], lane))
        I('v_and_b32 %s, 3, %s' % (x0, lane))
        I('v_lshrrev_b32 %s, 1, %s' % (x1, x0))
        I('v_add_u32 %s, %s, %s' % (x1, x0, x1))
        I('v_cmp_eq_u32 vcc, 3, %s' % g)
        I('v_cndmask_b32 %s, %s, 2, vcc' % (x1, x1))
        I('v_cndmask_b32 %s, %s, %s, vcc' % (x0, g, x0))
        I('v_add_u32 %s, 1, %s' % (x2, x0))
        I('v_cmp_gt_u32 vcc, 2, %s' % x0)
        I('v_cndmask_b32 %s, 0, %s, vcc' % (x2, x2))
        I('v_mul_u32_u24 %s, 1280, %s' % (x2, x2))
        I('v_lshl_add_u32 %s, %s, 4, %s' % (x2, x1, x2))
        I('v_bfe_u32 %s, %s, 2, 2' % (x0, lane))
        I('v_mul_u32_u24 %s, 3840, %s' % (x0, x0))
        I('s_mul_i32 %s, %s, %d' % (t0, sW, 4 * 3840))
        I('s_mul_i32 %s, %s, 80' % (t1, sJ))
        I('s_add_u32 %s, %s, %s' % (t0, t0, t1))
        I('v_add3_u32 %s, %s, %s, %s' % (V['DQ'], x0, x2, t0))
        I('s_waitcnt lgkmcnt(0)')
        I('s_load_dword %s, s[70:71], 0' % sTagG)

        def mk(b, p, size):
            I('s_mov_b32 s%d, s%d' % (b, p))
            I('s_mov_b32 s%d, s%d' % (b + 1, p + 1))
            I('s_mov_b32 s%d, 0x%x' % (b + 2, size))
            I('s_mov_b32 s%d, 0x20000' % (b + 3))
        mk(sXO, 48, 2048 * 1280)
        XL = TMP + 40
        self.XL = XL
        self.vm('buffer_load_dwordx4 %s, %s, %s, 0 offen' % (v(XL, 4), V['X1'], srd(sXO)), 'x')
        self.vm('buffer_load_dwordx4 %s, %s, %s, 0 offen offset:64' % (v(XL + 4, 4), V['X1'], srd(sXO)), 'x')
        self.vm('buffer_load_dwordx2 %s, %s, %s, 0 offen offset:128' % (v(XL + 8, 2), V['X3'], srd(sXO)), 'x')
        mk(sWQ, 50, 640 * 3840)
        mk(sWS, 70, 0x1000000)
        I('s_add_u32 s%d, s70, 0x%x' % (sLD, ARENA0))
        I('s_addc_u32 s%d, s71, 0' % (sLD + 1))
        I('s_mov_b32 s%d, 0x%x' % (sLD + 2, ARENA))
        I('s_mov_b32 s%d, 0x20000' % (sLD + 3))
        I('s_lshl_b32 %s, %s, 2' % (t0, sRb))
        I('s_add_u32 %s, %s, %s' % (t0, t0, sW))
        I('s_mul_i32 %s, %s, %d' % (t0, t0, TGS))
        I('s_mul_i32 %s, %s, %d' % (t1, sJ, 22 * 128))
        I('s_add_u32 %s, %s, %s' % (t0, t0, t1))
        I('v_min_u32 %s, 21, %s' % (x0, lane))
        I('v_lshl_add_u32 %s, %s, 7, %s' % (x0, x0, t0))
        self.vm('buffer_load_dword %s, %s, %s, 0 offen sc1' % (a(255), x0, srd(sLD)))
        nq0 = self.cfg.get('q_first', 6)
        for n in range(nq0):
            self.dma_now('Q', n)
        self.prepass1()
        self.small_loads()
        for n in range(nq0, self.cfg.get('q_pre', 12)):
            self.dma_now('Q', n)
        self.addresses()

    def prepass1(self):
        I = self.I
        lane = self.lane
        T = TMP + 8
        po = [v(T + i) for i in range(5)]
        e, row, u, y = v(T + 5), v(T + 6), v(T + 7), v(T + 8)
        I('s_mov_b32 s%d, 0x20000' % (sPS + 3))
        I('s_cmp_lt_u32 s2, 40')
        I('s_cbranch_scc1 L_pp_wo')
        I('s_cmp_lt_u32 s2, 148')
        I('s_cbranch_scc1 L_pp_w1')
        I('s_sub_u32 %s, s2, 148' % t0)
        I('s_lshl_b32 %s, %s, 2' % (t0, t0))
        I('s_add_u32 %s, %s, %s' % (t0, t0, sW))
        I('s_and_b32 %s, %s, 7' % (t1, t0))
        I('s_lshr_b32 %s, %s, 3' % (t0, t0))
        I('s_mul_i32 %s, %s, 272' % (t4, t1))
        I('s_mul_i32 %s, %s, 5' % (t5, t0))
        I('s_add_u32 %s, %s, %s' % (t4, t4, t5))
        I('s_lshl_b32 %s, %s, 10' % (t4, t4))
        I('s_add_u32 %s, %s, 0x%x' % (sPst[0], t4, W2T))
        I('s_lshl_b32 %s, %s, 5' % (t0, t0))
        I('s_mov_b32 %s, 4' % t4)
        I('s_mov_b32 %s, 0' % t5)
        I('s_mov_b32 %s, 16' % t6)
        I('s_mov_b32 s%d, s62' % sPS)
        I('s_mov_b32 s%d, s63' % (sPS + 1))
        I('s_mov_b32 s%d, 0x%x' % (sPS + 2, 1728 * 1280))
        I('s_branch L_pp_80')
        I('L_pp_wo:')
        I('s_lshl_b32 %s, s2, 2' % t0)
        I('s_add_u32 %s, %s, %s' % (t0, t0, sW))
        I('s_and_b32 %s, %s, 7' % (t1, t0))
        I('s_lshr_b32 %s, %s, 3' % (t0, t0))
        I('s_mul_i32 %s, %s, 100' % (t4, t1))
        I('s_mul_i32 %s, %s, 5' % (t5, t0))
        I('s_add_u32 %s, %s, %s' % (t4, t4, t5))
        I('s_lshl_b32 %s, %s, 10' % (t4, t4))
        I('s_add_u32 %s, %s, 0x%x' % (sPst[0], t4, WOT))
        I('s_mul_i32 %s, %s, 52' % (t4, t0))
        I('s_lshr_b32 %s, %s, 8' % (t4, t4))
        I('s_mul_i32 %s, %s, 5' % (t5, t4))
        I('s_sub_u32 %s, %s, %s' % (t5, t0, t5))
        I('s_mul_i32 %s, %s, 160' % (t0, t4))
        I('s_mul_i32 %s, %s, 40' % (t6, t5))
        I('s_cmp_eq_u32 %s, 4' % t5)
        I('s_cselect_b32 %s, 16, %s' % (t6, t6))
        I('s_cselect_b32 %s, 40, 8' % t4)
        I('s_cselect_b32 %s, 0, 8' % t5)
        I('s_add_u32 %s, %s, %s' % (t0, t0, t6))
        I('s_mov_b32 %s, 4' % t6)
        I('s_mov_b32 s%d, s54' % sPS)
        I('s_mov_b32 s%d, s55' % (sPS + 1))
        I('s_mov_b32 s%d, 0x%x' % (sPS + 2, 640 * 1280))
        I('L_pp_80:')
        I('s_mul_i32 %s, %s, 160' % (t1, t1))
        I('s_mov_b32 %s, 0' % sTy)
        for n in range(5):
            I('v_add_u32 %s, %d, %s' % (e, 64 * n, lane))
            I('v_mul_u32_u24 %s, 6554, %s' % (row, e))
            I('v_lshrrev_b32 %s, 16, %s' % (row, row))
            I('v_mul_u32_u24 %s, 10, %s' % (u, row))
            I('v_sub_u32 %s, %s, %s' % (u, e, u))
            I('v_and_b32 %s, 3, %s' % (e, row))
            I('v_add_u32 %s, %s, %s' % (e, t0, e))
            I('v_lshrrev_b32 %s, 3, %s' % (y, row))
            I('v_mad_u32_u24 %s, %s, %s, %s' % (e, y, t4, e))
            I('v_lshrrev_b32 %s, 4, %s' % (y, row))
            I('v_mad_u32_u24 %s, %s, %s, %s' % (e, y, t5, e))
            I('v_bfe_u32 %s, %s, 2, 1' % (y, row))
            I('v_mad_u32_u24 %s, %s, %s, %s' % (e, y, t6, e))
            I('v_mul_u32_u24 %s, 1280, %s' % (e, e))
            I('v_lshl_add_u32 %s, %s, 4, %s' % (e, u, e))
            I('v_add_u32 %s, %s, %s' % (po[n], t1, e))
        I('s_mov_b32 %s, 1024' % t0)
        I('v_mov_b32 %s, 0x%x' % (V['Cs'], OOB))
        I('s_branch L_pp_go')
        I('L_pp_w1:')
        I('s_sub_u32 %s, s2, 40' % t0)
        I('s_and_b32 %s, %s, 3' % (t1, t0))
        I('s_lshr_b32 %s, %s, 2' % (t0, t0))
        I('s_lshl_b32 %s, %s, 2' % (t4, t0))
        I('s_add_u32 %s, %s, %s' % (t4, t4, sW))
        I('s_lshl_b32 %s, %s, 8' % (t5, t4))
        I('s_lshl_b32 %s, %s, 2' % (t6, t1))
        I('s_add_u32 %s, %s, %s' % (t5, t5, t6))
        I('s_add_u32 %s, %s, 0x%x' % (t5, t5, CSP))
        I('v_add_u32 %s, %s, %s' % (e, t5, V['Rd0']))
        I('v_mov_b32 %s, 0x%x' % (V['Cs'], OOB))
        I('v_cmp_gt_u32 vcc, 16, %s' % lane)
        I('v_cndmask_b32 %s, %s, %s, vcc' % (V['Cs'], V['Cs'], e))
        I('s_mul_i32 %s, %s, 43' % (t5, t4))
        I('s_lshr_b32 %s, %s, 8' % (t5, t5))
        I('s_mul_i32 %s, %s, 6' % (t6, t5))
        I('s_sub_u32 %s, %s, %s' % (t6, t4, t6))
        I('s_sub_u32 s3, %s, 96' % t4)
        I('s_cmp_ge_u32 %s, 96' % t4)
        I('s_cselect_b32 %s, s3, %s' % (t5, t5))
        I('s_cselect_b32 %s, 6, %s' % (t6, t6))
        I('s_mul_i32 %s, %s, 140' % (t5, t5))
        I('s_mul_i32 s3, %s, 35' % t1)
        I('s_add_u32 %s, %s, s3' % (t5, t5))
        I('s_add_u32 %s, %s, %s' % (t5, t5, t6))
        I('s_lshl_b32 %s, %s, 10' % (t5, t5))
        I('s_add_u32 %s, %s, 0x%x' % (sPst[0], t5, W1T))
        I('s_mul_i32 %s, %s, 160' % (t1, t1))
        I('s_mul_i32 %s, %s, 40' % (t5, sW))
        I('s_add_u32 %s, %s, %s' % (t1, t1, t5))
        I('s_mul_i32 %s, %s, 3456' % (t1, t1))
        I('s_lshl_b32 %s, %s, 7' % (t0, t0))
        I('s_add_u32 %s, %s, %s' % (t1, t1, t0))
        I('v_lshrrev_b32 %s, 3, %s' % (row, lane))
        I('v_mul_u32_u24 %s, 3456, %s' % (row, row))
        I('v_and_b32 %s, 7, %s' % (u, lane))
        I('v_lshl_add_u32 %s, %s, 4, %s' % (row, u, row))
        I('v_add_u32 %s, %s, %s' % (po[0], t1, row))
        for n in range(1, 5):
            I('v_add_u32 %s, %d, %s' % (po[n], 8 * 3456 * n, po[0]))
        I('s_mov_b32 s%d, s58' % sPS)
        I('s_mov_b32 s%d, s59' % (sPS + 1))
        I('s_mov_b32 s%d, 0x%x' % (sPS + 2, 640 * 3456))
        I('s_mov_b32 %s, 1' % sTy)
        I('s_mov_b32 %s, 7168' % t0)
        I('L_pp_go:')
        for n in range(1, 5):
            I('s_add_u32 %s, %s, %s' % (sPst[n], sPst[n - 1], t0))
        I('s_mul_i32 %s, %s, 5' % (t0, sW1k))
        for n in range(5):
            I('s_add_u32 m0, %s, %d' % (t0, STG_Q0 * 4096 + 1024 * n))
            tag = self.vm('buffer_load_dwordx4 %s, %s, 0 offen lds' % (po[n], srd(sPS)), ('stg', n))
            for q in range(5):
                self.q_fill(STG_Q0 + q, 'stg', tag)

    def prepass2(self):
        I = self.I
        T = TMP
        fr = T
        bA, bB, x0, x1, one, cs = v(T + 20), v(T + 21), v(T + 22), v(T + 23), T + 24, T + 28
        I('v_lshrrev_b32 %s, 8, %s' % (x0, V['Rd0']))
        I('v_bfe_u32 %s, %s, 6, 2' % (x1, V['Rd0']))
        for i in range(4):
            I('v_mov_b32 %s, 0x3f803f80' % v(one + i))
        I('s_cmp_eq_u32 %s, 1' % sTy)
        I('s_cbranch_scc1 L_p2_w1')
        I('v_lshl_add_u32 %s, %s, 3, %s' % (x0, x0, x1))
        I('v_mul_u32_u24 %s, 160, %s' % (x0, x0))
        I('s_mul_i32 %s, %s, 5' % (t0, sW1k))
        I('s_add_u32 %s, %s, %d' % (t0, t0, STG_Q0 * 4096))
        I('v_add_u32 %s, %s, %s' % (x0, t0, x0))
        I('v_and_b32 %s, 48, %s' % (x1, V['Rd0']))
        I('v_add_u32 %s, %s, %s' % (bA, x0, x1))
        I('v_lshrrev_b32 %s, 1, %s' % (x1, x1))
        I('v_add_u32 %s, %s, %s' % (bB, x0, x1))
        for t in range(5):
            for ab in range(2):
                off = 640 * ab + (64 * (t >> 1) + 8 * (t & 1) if t < 4 else 128)
                I('ds_read_b64_tr_b16 %s, %s offset:%d' % (v(fr + 4 * t + 2 * ab, 2), bA if t < 4 else bB, off))
        I('s_branch L_p2_go')
        I('L_p2_w1:')
        I('v_lshl_add_u32 %s, %s, 3, %s' % (bA, x0, x1))
        I('v_lshl_add_u32 %s, %s, 2, %s' % (bB, x0, x1))
        I('v_and_b32 %s, 48, %s' % (x1, V['Rd0']))
        I('v_lshrrev_b32 %s, 1, %s' % (x1, x1))
        I('s_lshl_b32 %s, %s, 5' % (t0, sW))
        I('s_add_u32 %s, %s, %d' % (t0, t0, STG_Q0 * 4096))
        I('v_add_u32 %s, %s, %s' % (x1, t0, x1))
        I('v_lshl_add_u32 %s, %s, 7, %s' % (bA, bA, x1))
        I('v_lshl_add_u32 %s, %s, 7, %s' % (bB, bB, x1))
        for i in range(5):
            for ab in range(2):
                off = ((80 * (i >> 1) + 32 * (i & 1) + 4 * ab) if i < 4 else (80 * ab + 64)) * 128
                tag = self.lg('ds_read_b64_tr_b16 %s, %s offset:%d' % (v(fr + 4 * i + 2 * ab, 2), bA if i < 4 else bB, off),
                              'stgr')
                for q in range(5):
                    self.q_read(STG_Q0 + q, 'stg', tag)
        I('L_p2_go:')
        for q in range(5):
            self.q_done(STG_Q0 + q)
        self.wait(lg=['stgr'])
        for i in range(5):
            self.vm('buffer_store_dwordx4 %s, %s, %s, %s offen sc1' % (v(fr + 4 * i, 4), V['Rd0'], srd(sWS), sPst[i]), 'pre')
            I('v_mfma_f32_16x16x32_bf16 %s, %s, %s, %s' % (v(cs, 4), v(one, 4), v(fr + 4 * i, 4), v(cs, 4) if i else '0'))
        self.vm('buffer_store_dword %s, %s, %s, 0 offen sc1' % (v(cs), V['Cs'], srd(sWS)), 'pre')

    def small_loads(self):
        I = self.I
        T = TMP + 20
        x0, x1, x2 = v(T), v(T + 1), v(T + 2)
        self.B1L, self.B2L = T + 3, T + 4
        I('s_mov_b32 s%d, s52' % sT2)
        I('s_mov_b32 s%d, s53' % (sT2 + 1))
        I('s_mov_b32 s%d, %d' % (sT2 + 2, 32 * 800))
        I('s_mov_b32 s%d, 0x20000' % (sT2 + 3))
        I('s_mul_i32 %s, %s, 1600' % (t0, sJ))
        I('v_lshl_add_u32 %s, v0, 2, %s' % (x0, t0))
        I('s_lshr_b32 %s, %s, 2' % (t1, sW1k))
        I('s_add_u32 m0, %s, %d' % (t1, TPHI))
        self.vm('buffer_load_dword %s, %s, 0 offen lds' % (x0, srd(sT2)), 'phi')
        self.vm('buffer_load_dword %s, %s, 0 offen offset:1024 lds' % (x0, srd(sT2)), 'phi')
        I('s_mul_i32 %s, %s, 96' % (t0, sJ))
        I('s_lshl_b32 %s, %s, 4' % (t1, sJ))
        I('s_add_u32 %s, %s, %d' % (t1, t1, 1536 - 96))
        I('v_add_u32 %s, %s, v0' % (x0, t0))
        I('v_add_u32 %s, %s, v0' % (x1, t1))
        I('v_cmp_gt_u32 vcc, 96, v0')
        I('v_cndmask_b32 %s, %s, %s, vcc' % (x0, x1, x0))
        I('v_lshlrev_b32 v1, 4, %s' % x0)
        I('v_lshlrev_b32 %s, 1, %s' % (x0, x0))
        I('s_mov_b32 s%d, s60' % sPS)
        I('s_mov_b32 s%d, s61' % (sPS + 1))
        I('s_mov_b32 s%d, %d' % (sPS + 2, 1728 * 2))
        self.vm('buffer_load_ushort %s, %s, %s, 0 offen' % (v(self.B1L), x0, srd(sPS)), 'bias')
        I('v_bfe_u32 %s, v0, 2, 2' % x0)
        I('v_lshlrev_b32 %s, 3, %s' % (x0, x0))
        I('v_bfe_u32 %s, v0, 4, 1' % x1)
        I('v_lshl_add_u32 %s, %s, 2, %s' % (x0, x1, x0))
        I('v_and_b32 %s, 0x23, v0' % x1)
        I('v_add_u32 %s, %s, %s' % (x0, x0, x1))
        I('v_cmp_gt_u32 vcc, 64, v0')
        I('v_cndmask_b32 %s, v0, %s, vcc' % (x0, x0))
        I('s_mul_i32 %s, %s, 80' % (t0, sC))
        I('v_add_lshl_u32 %s, %s, %s, 1' % (x0, x0, t0))
        I('s_mov_b32 s%d, s64' % sT2)
        I('s_mov_b32 s%d, s65' % (sT2 + 1))
        I('s_mov_b32 s%d, %d' % (sT2 + 2, 640 * 2))
        self.vm('buffer_load_ushort %s, %s, %s, 0 offen' % (v(self.B2L), x0, srd(sT2)), 'bias')

    def addresses(self):
        I = self.I
        lane, g, tok = self.lane, self.g, self.tok
        T = TMP + 3
        x0, x1, x2, x3 = v(T), v(T + 1), v(T + 2), v(T + 3)
        for i in range(1, 16):
            I('s_mov_b32 %s, %d' % (sK4(i), 4096 * i))
        I('s_mov_b32 %s, %d' % (sH54, 54 * 1024))
        for b in (sST, sTC):
            I('s_mov_b64 s[%d:%d], s[%d:%d]' % (b, b + 1, sLD, sLD + 1))
            I('s_mov_b32 s%d, 0x%x' % (b + 2, ARENA))
            I('s_mov_b32 s%d, 0x20000' % (b + 3))
        I('s_mov_b32 %s, 0' % sStep)
        I('s_mov_b32 %s, 0' % sLayer)
        I('s_mov_b32 %s, 0' % sSlow)
        I('s_mov_b32 %s, 0x%x' % (sTO, self.cfg.get('timeout', 0x20000)))
        I('v_add_u32 %s, 0x10000, %s' % (V['Rd1'], V['Rd0']))
        I('v_add_u32 %s, 0x20000, %s' % (V['Rd2'], V['Rd0']))
        I('v_lshrrev_b32 %s, 5, %s' % (x0, lane))
        I('v_lshlrev_b32 %s, 11, %s' % (x0, x0))
        I('v_bfe_u32 %s, %s, 2, 2' % (x1, lane))
        I('v_lshl_add_u32 %s, %s, 6, %s' % (x0, x1, x0))
        I('v_and_b32 %s, 1, %s' % (x1, lane))
        I('v_lshl_add_u32 %s, %s, 5, %s' % (x2, x1, x0))
        I('v_and_b32 %s, 16, %s' % (x1, lane))
        I('v_add_u32 %s, %s, %s' % (x2, x2, x1))
        I('v_lshl_add_u32 %s, %s, 1, %s' % (x0, x1, x0))
        I('v_and_b32 %s, 2, %s' % (x1, lane))
        I('v_lshl_add_u32 %s, %s, 2, %s' % (V['TrA0'], x1, x2))
        I('v_and_b32 %s, 3, %s' % (x1, lane))
        I('v_lshl_add_u32 %s, %s, 3, %s' % (V['TrB0'], x1, x0))
        for k in 'AB':
            I('v_add_u32 %s, 0x10000, %s' % (V['Tr%s1' % k], V['Tr%s0' % k]))
            I('v_add_u32 %s, 0x20000, %s' % (V['Tr%s2' % k], V['Tr%s0' % k]))
        I('s_lshl_b32 %s, %s, 2' % (t4, sRb))
        I('s_add_u32 %s, %s, %s' % (t4, t4, sW))
        I('s_lshr_b32 %s, %s, 1' % (t5, t3))
        I('s_and_b32 %s, %s, 1' % (t6, t2))
        I('s_lshl_b32 %s, %s, 2' % (sKVFp, t4))
        I('s_mul_i32 %s, %s, %d' % (t4, t4, TGS))
        I('s_mul_i32 %s, %s, %d' % (t5, t5, TGS))
        I('v_add_u32 %s, %s, %s' % (V['A1'], t4, V['Rd0']))
        I('s_mul_i32 %s, %s, 20480' % (t0, t6))
        I('s_add_u32 %s, %s, %s' % (t0, t0, t5))
        I('s_add_u32 %s, %s, 0x%x' % (t0, t0, BE))
        I('v_add_u32 %s, %s, %s' % (V['A2'], t0, V['Rd0']))
        I('s_mul_i32 %s, %s, %d' % (t0, t6, 54 * 1024))
        I('s_add_u32 %s, %s, %s' % (t0, t0, t5))
        I('s_add_u32 %s, %s, 0x%x' % (t0, t0, BE))
        I('v_add_u32 %s, %s, %s' % (V['A4'], t0, V['Rd0']))
        I('s_mov_b32 %s, %s' % (t0, t5))
        I('s_mul_i32 %s, %s, %d' % (t1, sC, 5120))
        I('s_add_u32 %s, %s, %s' % (t1, t1, t0))
        I('s_lshl_b32 s3, %s, 8' % t6)
        I('s_add_u32 %s, %s, s3' % (t1, t1))
        I('v_lshl_add_u32 %s, %s, 4, %s' % (x0, tok, t1))
        I('v_lshl_add_u32 %s, %s, 9, %s' % (V['SX1'], g, x0))
        I('v_lshrrev_b32 %s, 1, %s' % (x1, g))
        I('v_lshl_add_u32 %s, %s, 9, %s' % (x0, x1, x0))
        I('v_and_b32 %s, 1, %s' % (x2, g))
        I('v_lshl_add_u32 %s, %s, 3, %s' % (x0, x2, x0))
        I('v_add_u32 %s, 4096, %s' % (V['SX3'], x0))
        I('s_lshr_b32 %s, %s, 1' % (t1, sC))
        I('s_mul_i32 %s, %s, 10' % (t1, t1))
        I('s_add_u32 %s, %s, %s' % (t1, t1, t6))
        I('s_lshl_b32 %s, %s, 10' % (t1, t1))
        I('s_add_u32 %s, %s, %s' % (t0, t0, t1))
        I('s_and_b32 %s, %s, 1' % (t1, sC))
        I('s_lshl_b32 s3, %s, 12' % t1)
        I('s_add_u32 s3, s3, %s' % t0)
        I('v_add_u32 %s, s3, %s' % (V['S11'], V['Rd0']))
        I('s_lshl_b32 s3, %s, 3' % t1)
        I('s_add_u32 s3, s3, %s' % t0)
        I('s_add_u32 s3, s3, 8192')
        I('v_add_u32 %s, s3, %s' % (V['S13'], V['Rd0']))
        I('s_lshl_b32 s3, %s, 3' % t1)
        I('s_add_u32 %s, %s, s3' % (t0, t5))
        I('s_lshr_b32 s3, %s, 1' % sC)
        I('s_lshl_b32 s3, s3, 9')
        I('s_add_u32 %s, %s, s3' % (t0, t0))
        I('s_lshl_b32 s3, %s, 8' % t6)
        I('s_add_u32 %s, %s, s3' % (t0, t0))
        I('s_add_u32 %s, %s, 0x%x' % (t0, t0, ST))
        I('v_lshl_add_u32 %s, %s, 4, %s' % (x0, tok, t0))
        I('v_lshl_add_u32 %s, %s, 2, %s' % (V['SSt'], x1, x0))
        I('s_add_u32 %s, %s, 0x%x' % (t0, t4, ST))
        I('v_add_u32 %s, %s, %s' % (V['LSt1'], t0, V['Rd0']))
        I('v_lshl_add_u32 %s, %s, 4, %s' % (x0, tok, t0))
        I('v_lshl_add_u32 %s, %s, 9, %s' % (V['LSt3'], g, x0))
        I('s_add_u32 %s, %s, 0x%x' % (sFl32, t4, FL))
        I('s_add_u32 %s, %s, 0x%x' % (sFl16, t5, FL))
        I('s_lshl_b32 s3, %s, 3' % t6)
        I('s_add_u32 s3, s3, %s' % sC)
        I('s_lshl_b32 s3, s3, 2')
        I('s_add_u32 %s, %s, s3' % (sFlP16, sFl16))
        I('s_lshl_b32 s3, %s, 2' % sJ)
        I('s_add_u32 %s, %s, s3' % (sFlP32, sFl32))
        I('v_lshlrev_b32 %s, 2, %s' % (V['Fl'], tok))
        I('v_lshlrev_b32 %s, 2, %s' % (V['KFl'], lane))
        I('s_lshl_b32 %s, %s, 8' % (sKVFc, sJ))
        I('s_add_u32 %s, %s, 0x%x' % (sKVFc, sKVFc, KVF))
        I('s_add_u32 %s, %s, %s' % (sKVFp, sKVFp, sKVFc))
        I('s_lshl_b32 %s, s2, 2' % sPreP)
        I('s_add_u32 %s, %s, 0x%x' % (sPreP, sPreP, PREF))
        I('s_lshr_b32 %s, %s, 2' % (t1, sJ))
        I('s_mul_i32 %s, %s, 5120' % (t1, t1))
        I('s_add_u32 %s, %s, %s' % (t0, t4, t1))
        I('s_add_u32 %s, %s, 0x%x' % (t0, t0, BE))
        I('s_and_b32 %s, %s, 3' % (t1, sJ))
        I('v_mul_u32_u24 %s, 20480, %s' % (x0, x2))
        I('v_lshl_add_u32 %s, %s, 4, %s' % (x0, tok, x0))
        I('s_lshl_b32 s3, %s, 10' % t1)
        I('s_add_u32 s3, s3, %s' % t0)
        I('v_add_u32 %s, s3, %s' % (x3, x0))
        I('v_lshl_add_u32 %s, %s, 8, %s' % (V['SO1'], x1, x3))
        I('s_lshl_b32 s3, %s, 8' % t1)
        I('s_add_u32 s3, s3, %s' % t0)
        I('s_add_u32 s3, s3, 4096')
        I('v_add_u32 %s, s3, %s' % (x3, x0))
        I('v_mov_b32 %s, 0x%x' % (V['SO2'], OOB))
        I('v_cmp_gt_u32 vcc, 32, %s' % lane)
        I('v_cndmask_b32 %s, %s, %s, vcc' % (V['SO2'], V['SO2'], x3))
        I('s_add_u32 %s, %s, 0x%x' % (t0, t4, BE))
        I('s_mul_i32 s3, %s, 3072' % sJ)
        I('s_add_u32 s3, s3, %s' % t0)
        I('v_add_u32 %s, s3, %s' % (V['SH1'], V['Rd0']))
        I('s_lshr_b32 s3, %s, 1' % sJ)
        I('s_add_u32 s3, s3, 48')
        I('s_lshl_b32 s3, s3, 10')
        I('s_add_u32 %s, %s, s3' % (t0, t0))
        I('s_and_b32 s3, %s, 1' % sJ)
        I('s_lshl_b32 s3, s3, 3')
        I('s_add_u32 %s, %s, s3' % (t0, t0))
        I('s_cmp_ge_u32 %s, 12' % sJ)
        I('s_cselect_b32 %s, 0x40000000, %s' % (t0, t0))
        I('v_add_u32 %s, %s, %s' % (V['SH2'], t0, V['Rd0']))
        I('s_mul_i32 %s, %s, %d' % (sOb, sC, 100 * 1024))
        I('s_add_u32 %s, %s, 0x%x' % (sOb, sOb, WOT - slotO(0) * 4096))
        I('s_mul_i32 %s, %s, %d' % (sF1b, sJ, 140 * 1024))
        I('s_add_u32 %s, %s, 0x%x' % (sF1b, sF1b, W1T - slotF1(0) * 4096))
        I('s_mul_i32 %s, %s, %d' % (sF2b, sC, 272 * 1024))
        I('s_add_u32 %s, %s, 0x%x' % (sF2b, sF2b, W2T - slotF2(0) * 4096))
        I('s_lshl_b32 %s, %s, 16' % (t0, sJ))
        I('s_add_u32 %s, %s, 0x%x' % (t0, t0, KVP))
        I('v_lshl_add_u32 %s, v0, 4, %s' % (x0, t0))
        I('v_mov_b32 %s, 0x40000000' % V['KG'])
        I('v_cmp_gt_u32 vcc, 240, v0')
        I('v_cndmask_b32 %s, %s, %s, vcc' % (V['KG'], V['KG'], x0))
        I('s_lshl_b32 s3, %s, 12' % sRb)
        I('s_add_u32 %s, %s, s3' % (t0, t0))
        I('s_lshr_b32 %s, %s, 1' % (t5, sW))
        I('s_and_b32 %s, %s, 1' % (t6, sW))
        I('s_mul_i32 s3, %s, 1920' % t5)
        I('s_add_u32 %s, %s, s3' % (t0, t0))
        I('s_lshl_b32 s3, %s, 4' % t6)
        I('v_add_u32 %s, s3, %s' % (x0, tok))
        I('v_cmp_gt_u32 vcc, 24, %s' % x0)
        I('v_lshl_add_u32 %s, %s, 4, %s' % (x0, x0, t0))
        I('v_mov_b32 %s, 0x40000000' % x3)
        I('v_cndmask_b32 %s, %s, %s, vcc' % (x0, x3, x0))
        I('v_mul_u32_u24 %s, 384, %s' % (V['KS1'], g))
        I('v_add_u32 %s, %s, %s' % (V['KS1'], V['KS1'], x0))
        I('v_lshl_add_u32 %s, %s, 3, %s' % (x0, g, x0))
        I('v_add_u32 %s, 1536, %s' % (x0, x0))
        I('v_cmp_gt_u32 vcc, 32, %s' % lane)
        I('v_cndmask_b32 %s, %s, %s, vcc' % (V['KS2'], x3, x0))
        I('v_lshlrev_b32 %s, 4, v0' % V['KW'])
        I('v_add_u32 %s, %d, %s' % (V['KW'], KS_Q * 4096, V['KW']))
        I('v_and_b32 %s, 31, %s' % (x0, lane))
        I('v_lshlrev_b32 %s, 7, %s' % (x0, x0))
        I('v_lshl_add_u32 %s, %s, 14, %s' % (x0, x1, x0))
        I('v_and_b32 %s, 7, %s' % (x3, lane))
        I('v_lshl_add_u32 %s, %s, 4, %s' % (x0, x3, x0))
        I('s_lshl_b32 s3, %s, 12' % sW)
        I('s_add_u32 s3, s3, %d' % (T_Q0 * 4096))
        I('v_add_u32 %s, s3, %s' % (V['TW'], x0))
        I('v_bfe_u32 %s, %s, 2, 3' % (x0, lane))
        I('v_lshl_add_u32 %s, %s, 4, %s' % (x3, x1, x0))
        I('v_lshlrev_b32 %s, 7, %s' % (x3, x3))
        I('s_lshl_b32 s3, %s, 14' % t5)
        I('s_add_u32 s3, s3, %d' % (T_Q0 * 4096))
        I('v_add_u32 %s, s3, %s' % (x3, x3))
        I('v_and_b32 %s, 1, %s' % (x2, lane))
        I('v_lshl_add_u32 %s, %s, 3, %s' % (x3, x2, x3))
        I('v_bfe_u32 %s, %s, 1, 1' % (x2, lane))
        I('v_xor_b32 %s, %s, %s' % (V['KA'], x2, x0))
        I('v_lshl_add_u32 %s, %s, 4, %s' % (V['KA'], V['KA'], x3))
        I('v_add_u32 %s, 5, %s' % (x2, x2))
        I('s_cmp_eq_u32 %s, 1' % t6)
        I('s_cselect_b64 vcc, -1, 0')
        I('v_cndmask_b32 %s, %s, 7, vcc' % (x2, x2))
        I('v_xor_b32 %s, %s, %s' % (x2, x2, x0))
        I('v_lshl_add_u32 %s, %s, 4, %s' % (V['KB'], x2, x3))
        I('v_bfe_u32 %s, %s, 3, 2' % (x0, lane))
        I('v_bfe_u32 %s, %s, 2, 1' % (x2, lane))
        I('v_cmp_gt_u32 vcc, 2, %s' % x0)
        I('v_cndmask_b32 %s, 1, %s, vcc' % (x2, x2))
        I('v_lshlrev_b32 %s, 3, %s' % (x2, x2))
        I('v_lshl_add_u32 %s, %s, 2, %s' % (x2, x0, x2))
        I('v_and_b32 %s, 3, %s' % (x0, lane))
        I('v_add_u32 %s, %s, %s' % (x2, x2, x0))
        I('v_mul_u32_u24 %s, 24, %s' % (x0, x1))
        I('v_add_lshl_u32 %s, %s, %s, 4' % (x0, x0, x2))
        I('v_add_u32 %s, %d, %s' % (V['R1'], KS_Q * 4096, x0))
        I('v_cmp_gt_u32 vcc, 32, %s' % lane)
        I('v_cndmask_b32 %s, 21, %s, vcc' % (x0, x2))
        I('v_cndmask_b32 %s, %s, 21, vcc' % (x3, x2))
        I('v_lshlrev_b32 %s, 4, %s' % (x0, x0))
        I('v_lshlrev_b32 %s, 4, %s' % (x3, x3))
        I('v_add_u32 %s, %d, %s' % (V['R20'], KS_Q * 4096 + 1536, x0))
        I('v_add_u32 %s, %d, %s' % (V['R21'], KS_Q * 4096 + 1536 + 1920, x3))
        I('v_lshlrev_b32 %s, 4, %s' % (x0, x1))
        I('v_add_u32 %s, %d, %s' % (V['Tb1'], PA, x0))
        I('v_lshlrev_b32 %s, 4, %s' % (x0, g))
        I('v_add_u32 %s, %d, %s' % (V['Tb4'], PA, x0))
        self.force_wait('lgkmcnt(0)')
        I('s_add_u32 %s, %s, 0x9e377900' % (sTagG, sTagG))
        I('s_and_b32 %s, %s, 0xffffff00' % (sTagG, sTagG))
        I('s_getreg_b32 s3, hwreg(HW_REG_XCC_ID)')
        I('s_and_b32 s3, s3, 15')
        I('s_or_b32 s3, s3, 16')
        I('s_or_b32 %s, %s, s3' % (sTagL, sTagG))
        I('v_mov_b32 %s, %s' % (V['TagG'], sTagG))
        I('v_mov_b32 %s, %s' % (V['TagL'], sTagL))

    def stats(self):
        I = self.I
        T = TMP
        I('v_pk_add_f32 %s, %s, %s' % (v(T, 2), v(RES, 2), v(RES + 2, 2)))
        I('v_pk_mul_f32 %s, %s, %s' % (v(T + 2, 2), v(RES, 2), v(RES, 2)))
        for i in range(1, 10):
            if i > 1:
                I('v_pk_add_f32 %s, %s, %s' % (v(T, 2), v(T, 2), v(RES + 2 * i, 2)))
            I('v_pk_fma_f32 %s, %s, %s, %s' % (v(T + 2, 2), v(RES + 2 * i, 2), v(RES + 2 * i, 2), v(T + 2, 2)))
        I('v_add_f32 %s, %s, %s' % (v(T), v(T), v(T + 1)))
        I('v_add_f32 %s, %s, %s' % (v(T + 2), v(T + 2), v(T + 3)))
        I('v_permlane32_swap_b32 %s, %s' % (v(T), v(T + 2)))
        I('v_add_f32 %s, %s, %s' % (v(T), v(T), v(T + 2)))
        I('v_mov_b32 %s, %s' % (v(T + 2), v(T)))
        I('v_permlane16_swap_b32 %s, %s' % (v(T), v(T + 2)))
        I('v_add_f32 %s, %s, %s' % (v(T + 2), v(T), v(T + 2)))

    def pack_res(self, P):
        for i in range(10):
            self.I('v_cvt_pk_bf16_f32 %s, %s, %s' % (v(P + i), v(RES + 2 * i), v(RES + 2 * i + 1)))

    def publish_x(self, P, which):
        a1, a3, sto, fl = (V['SX1'], V['SX3'], 0, F_X) if which == 'XA' else (V['S11'], V['S13'], 0, F_X)
        tags = self.dual([
            'buffer_store_dwordx4 %s, %s, %s, 0 offen' % (v(P, 4), a1, srd(sST)),
            'buffer_store_dwordx4 %s, %s, %s, 0 offen offset:2048' % (v(P + 4, 4), a1, srd(sST)),
            'buffer_store_dwordx2 %s, %s, %s, 0 offen' % (v(P + 8, 2), a3, srd(sST))])
        self.stats()
        tags += self.dual(['buffer_store_dword %s, %s, %s, 0 offen offset:%d' % (v(TMP + 2), V['SSt'], srd(sST), sto)])
        self.wait(vm=tags)
        self.flag_local(sFlP16, fl)

    def p0(self):
        I = self.I
        XL = self.XL
        I('s_lshl_b32 %s, %s, 4' % (t0, sRb))
        I('s_add_u32 %s, %s, %s' % (t0, t0, sJ))
        I('s_lshl_b32 %s, %s, 2' % (t0, t0))
        I('s_add_u32 %s, %s, 0x%x' % (t0, t0, IDW))
        self.wait(vm=['x'])
        for i in range(10):
            I('v_lshlrev_b32 %s, 16, %s' % (v(RES + 2 * i), v(XL + i)))
            I('v_and_b32 %s, 0xffff0000, %s' % (v(RES + 2 * i + 1), v(XL + i)))
        I('s_mov_b32 s%d, s66' % sXO)
        I('s_mov_b32 s%d, s67' % (sXO + 1))
        I('L_p0_pub:')
        self.publish_x(XL, 'XA')
        I('s_or_b32 %s, %s, %s' % (t1, sW, sSlow))
        self.one_wave_store(t1, 'buffer_store_dword %s, off, %s, %s sc1' % (V['TagL'], srd(sWS), t0))
        I('v_lshlrev_b32 %s, 16, %s' % (v(TMP + 4), v(self.B1L)))
        I('v_lshlrev_b32 %s, 16, %s' % (v(TMP + 5), v(self.B2L)))
        I('v_min_u32 %s, 127, v0' % v(TMP + 6))
        I('v_lshlrev_b32 %s, 2, %s' % (v(TMP + 6), v(TMP + 6)))
        I('v_add_u32 %s, %d, %s' % (v(TMP + 6), PA, v(TMP + 6)))
        self.lg('ds_write_b32 %s, %s offset:%d' % (v(TMP + 6), v(TMP + 4), TB1 - PA))
        self.lg('ds_write_b32 %s, %s offset:%d' % (v(TMP + 6), v(TMP + 5), TB2 - PA))
        A_, B_, C_ = v(TMP + 7), v(TMP + 8), v(TMP + 9)
        I('v_lshrrev_b32 %s, 8, %s' % (A_, V['Rd0']))
        I('v_mul_u32_u24 %s, 0x%x, %s' % (A_, TGS, A_))
        I('v_add_u32 %s, %s, %s' % (A_, A_, V['Fl']))
        I('s_mul_i32 %s, %s, %d' % (t1, sRb, 4 * TGS))
        I('s_add_u32 %s, %s, 0x%x' % (t1, t1, FL))
        I('s_lshl_b32 %s, %s, 6' % (t4, sRb))
        I('s_add_u32 %s, %s, 0x%x' % (t4, t4, IDW))
        I('s_mov_b32 %s, 0' % t5)
        I('L_p0_poll:')
        I('buffer_load_dword %s, %s, %s, %s offen sc1' % (B_, A_, srd(sLD), t1))
        I('s_sub_u32 %s, %s, 1' % (sTO, sTO))
        I('s_cbranch_scc1 L_end')
        I('s_add_u32 %s, %s, 1' % (t5, t5))
        self.force_wait('vmcnt(0)')
        I('v_cmp_ne_u32 vcc, %s, %s' % (sTagL, B_))
        I('s_cbranch_vccz L_p0_ok')
        I('s_cmp_lt_u32 %s, %d' % (t5, self.cfg.get('id_after', 12)))
        I('s_cbranch_scc1 L_p0_poll')
        I('s_cmp_eq_u32 %s, 0' % sSlow)
        I('s_cbranch_scc0 L_p0_poll')
        I('buffer_load_dword %s, %s, %s, %s offen sc1' % (C_, V['Fl'], srd(sWS), t4))
        I('s_waitcnt vmcnt(0)')
        I('v_xor_b32 %s, %s, %s' % (C_, sTagL, C_))
        I('v_subrev_u32 %s, 1, %s' % (C_, C_))
        I('v_cmp_gt_u32 vcc, 15, %s' % C_)
        I('s_cbranch_vccz L_p0_poll')
        I('s_mov_b32 %s, 1' % sSlow)
        I('s_mov_b32 %s, %s' % (sTagL, sTagG))
        I('v_mov_b32 %s, %s' % (V['TagL'], sTagG))
        I('s_mov_b32 %s, 0x%x' % (sStep, ARENA))
        I('s_add_u32 s%d, s%d, 0x%x' % (sST, sST, ARENA))
        I('s_addc_u32 s%d, s%d, 0' % (sST + 1, sST + 1))
        I('s_mov_b32 s%d, 0' % (sTC + 2))
        I('s_waitcnt lgkmcnt(0)')
        I('s_branch L_p0_pub')
        I('L_p0_ok:')

    def build_phi(self):
        I = self.I
        T = TMP
        x0, x1, x2, b0, b1, msk = v(T + 24), v(T + 25), v(T + 26), v(T + 27), v(T + 28), v(T + 29)
        R = V['Rd0']
        I('v_bfe_u32 %s, %s, 4, 1' % (x0, R))
        I('v_bfe_u32 %s, %s, 6, 2' % (x1, R))
        I('v_mul_u32_u24 %s, 40, %s' % (x1, x1))
        I('v_bfe_u32 %s, %s, 5, 1' % (x2, R))
        I('v_lshl_add_u32 %s, %s, 3, %s' % (x1, x2, x1))
        I('v_bfe_u32 %s, %s, 8, 1' % (x2, R))
        I('v_lshl_add_u32 %s, %s, 4, %s' % (x1, x2, x1))
        I('v_add_u32 %s, %d, %s' % (x1, TPHI, x1))
        I('v_mul_u32_u24 %s, 960, %s' % (x2, x0))
        I('v_add_u32 %s, %s, %s' % (b0, x1, x2))
        I('v_mul_u32_u24 %s, 160, %s' % (x2, x0))
        I('v_add_u32 %s, %s, %s' % (b1, x1, x2))
        I('v_bfe_u32 %s, %s, 6, 1' % (x0, R))
        I('v_lshrrev_b32 %s, 9, %s' % (x2, R))
        I('v_cmp_eq_u32 vcc, %s, %s' % (x0, x2))
        I('v_cndmask_b32 %s, 0, -1, vcc' % msk)
        for Tt in range(2):
            for sq in range(5):
                self.lg('ds_read_b64_tr_b16 %s, %s offset:%d' %
                        (v(T + 12 * Tt + 2 * sq, 2), b0 if sq < 4 else b1, 160 * sq + 32 * Tt), 'phir')
        self.wait(lg=['phir'])
        for Tt in range(2):
            for i in range(12):
                if i < 10:
                    I('v_and_b32 %s, %s, %s' % (v(T + 12 * Tt + i), msk, v(T + 12 * Tt + i)))
                    I('v_accvgpr_write_b32 %s, %s' % (a(aPHI + 12 * Tt + i), v(T + 12 * Tt + i)))
                else:
                    I('v_accvgpr_write_b32 %s, 0' % a(aPHI + 12 * Tt + i))

    def p1(self, first):
        I = self.I
        cfg = self.cfg
        name = 'P1a' if first else 'P1b'
        SL = TMP + 44
        CF, SEL, CA, CB = TMP + 32, TMP + 36, TMP + 40, v(TMP + 52)

        def mf(s, f, r):
            c = v(ACC + 16 * f, 16)
            return ['v_mfma_f32_32x32x16_bf16 %s, %s, %s, %s' % (c, v(r, 4), a(4 * s, 4), c if s else '0')]

        hooks = {}

        def h_start():
            self.vm('buffer_load_dwordx4 %s, %s, %s, 0 offen sc1' % (v(SL, 4), V['LSt1'], srd(sLD)), 'st1')
            self.vm('buffer_load_dwordx4 %s, %s, %s, 0 offen offset:1024 sc1' % (v(SL + 4, 4), V['LSt1'], srd(sLD)), 'st1')
            if first:
                self.wait(lg_all=True)
                I('v_bfe_u32 %s, %s, 8, 1' % (v(SEL), V['Rd0']))
                I('v_bfe_u32 %s, %s, 6, 1' % (v(SEL + 1), V['Rd0']))
                I('v_cmp_eq_u32 vcc, %s, %s' % (v(SEL), v(SEL + 1)))
                I('v_mov_b32 %s, 0x3f803f80' % v(SEL + 1))
                I('v_cndmask_b32 %s, 0, %s, vcc' % (v(SEL), v(SEL + 1)))
                for i in range(1, 4):
                    I('v_mov_b32 %s, %s' % (v(SEL + i), v(SEL)))
                I('s_cmp_eq_u32 %s, 3' % sW)
                I('s_cselect_b64 vcc, -1, 0')
                I('v_cndmask_b32 %s, %s, %s, vcc' % (CB, V['TrA0'], V['TrB0']))
                I('s_lshr_b32 %s, %s, 2' % (t0, sW1k))
                I('v_add_u32 %s, %s, %s' % (CB, t0, CB))
        hooks[-1] = h_start
        if first:
            pp2 = cfg.get('pp2_step', 20)
            phi_step = cfg.get('phi_step', 4)
            seg = [0]

            def cs_hook(s):
                def fn():
                    if s == phi_step:
                        self.build_phi()
                    if s == pp2:
                        self.prepass2()
                    if s == cfg.get('pre_flag_step', 36):
                        assert 'pre' not in self.pre_at_bar
                        assert s > pp2 + 4
                        self.one_wave_store(sW, 'buffer_store_dword %s, off, %s, %s sc1' % (V['TagG'], srd(sWS), sPreP))
                    if s > 0:
                        self.wait(lg=[('cs', s - 1)])
                        I('v_mfma_f32_16x16x32_bf16 %s, %s, %s, %s' %
                          (v(CA, 4), v(SEL, 4), v(CF, 4), v(CA, 4) if s > 1 else '0'))
                    if s < 40:
                        byte = slotQ(s) * 4096
                        if byte >> 16 != seg[0]:
                            I('v_add_u32 %s, 0x%x, %s' % (CB, (((byte >> 16) - seg[0]) << 16) & 0xffffffff, CB))
                            seg[0] = byte >> 16
                        for ab in range(2):
                            tag = self.lg('ds_read_b64_tr_b16 %s, %s offset:%d' %
                                          (v(CF + 2 * ab, 2), CB, (byte & 0xffff) + 1024 * ab), ('cs', s))
                            self.q_read(slotQ(s), ('Q', s), tag)
                        self.q_done(slotQ(s))
                return fn
            for s in range(40):
                hooks[s] = cs_hook(s)
            jobs = [('Q', n) for n in range(cfg.get('q_pre', 12), 40)]
            bars = cfg.get('p1a_bars', [0, 4, 8, 12, 16, 20, 24, 28, 32, 35])
        else:
            jobs = [('Q', n) for n in range(cfg.get('q_head', 8), 40)]
            bars = cfg.get('p1b_bars', [0, 6, 12, 18, 24, 30, 35])
        left = self.gemm(name, 40, 4, 'Q', lambda i: 4 * i, V['A1'], 1, mf, L=5, we=2, bars=bars, jobs=jobs,
                         a0=cfg.get('p1_a0', 4), arate=cfg.get('p1_arate', 1.5),
                         jobrate=cfg.get('p1a_jr', 1.5) if first else cfg.get('p1b_jr', 1.25), hooks=hooks, tr=True,
                         touch=self.touches('O'), touchstart=cfg.get('p1_ts', 26))
        assert not left, left
        if first:
            cs_hook(40)()
            I('v_and_b32 %s, 0x7c, %s' % (v(CF), V['KFl']))
            I('s_lshr_b32 %s, %s, 3' % (t0, sW1k))
            I('s_add_u32 %s, %s, %d' % (t0, t0, TCS1))
            I('v_add_u32 %s, %s, %s' % (v(CF), t0, v(CF)))
            self.lg('ds_write_b32 %s, %s' % (v(CF), v(CA)))
        self.wait(vm_all=True, lg_all=True)
        self.barrier()

    def barrier(self):
        super().barrier()
        self.pre_at_bar = list(self.vmq)

    def ln_coeffs(self, S, n):
        I = self.I
        x = v(n)
        I('v_mul_f32 %s, 0x%x, %s' % (v(S), 0x3acccccd, v(S)))
        I('v_mul_f32 %s, %s, %s' % (x, v(S), v(S)))
        I('v_mul_f32 %s, 0x%x, %s' % (v(S + 1), 0x3acccccd, v(S + 1)))
        I('v_sub_f32 %s, %s, %s' % (x, v(S + 1), x))
        I('v_max_f32 %s, 0, %s' % (x, x))
        I('v_add_f32 %s, 0x%x, %s' % (x, 0x3727c5ac, x))
        I('v_rsq_f32 %s, %s' % (x, x))
        I('v_mul_f32 %s, %s, %s' % (v(S + 1), x, v(S)))
        I('v_mov_b32 %s, %s' % (v(S), x))
        I('v_xor_b32 %s, 0x80000000, %s' % (v(S + 1), v(S + 1)))

    def softmax_pair(self, Pq, E, dst):
        I = self.I
        M = TMP + 54
        mx, mn = v(M), v(M + 1)
        I('v_max3_f32 %s, %s, %s, %s' % (mx, v(Pq), v(Pq + 1), v(Pq + 2)))
        I('v_min3_f32 %s, %s, %s, %s' % (mn, v(Pq), v(Pq + 1), v(Pq + 2)))
        for i in range(3, 19, 2):
            I('v_max3_f32 %s, %s, %s, %s' % (mx, mx, v(Pq + i), v(Pq + i + 1)))
            I('v_min3_f32 %s, %s, %s, %s' % (mn, mn, v(Pq + i), v(Pq + i + 1)))
        I('v_max_f32 %s, %s, %s' % (mx, mx, v(Pq + 19)))
        I('v_min_f32 %s, %s, %s' % (mn, mn, v(Pq + 19)))
        I('s_mov_b32 s100, 0x%x' % LOG2E)
        I('s_mov_b32 s101, 0x%x' % LOG2E)
        I('v_mul_f32 %s, 0x%x, %s' % (mx, LOG2E | 0x80000000, mx))
        I('v_mul_f32 %s, 0x%x, %s' % (mn, LOG2E, mn))
        for i in range(10):
            I('v_pk_fma_f32 %s, %s, s[100:101], %s op_sel_hi:[1,1,0]' % (v(E + 2 * i, 2), v(Pq + 2 * i, 2), v(M, 2)))
            I('v_pk_fma_f32 %s, %s, s[100:101], %s op_sel:[0,0,1] op_sel_hi:[1,1,1] neg_lo:[1,0,0] neg_hi:[1,0,0]' %
              (v(E + 20 + 2 * i, 2), v(Pq + 2 * i, 2), v(M, 2)))
        for i in range(40):
            I('v_exp_f32 %s, %s' % (v(E + i), v(E + i)))
        S0, S1 = Pq, Pq + 2
        for h, S in ((0, S0), (1, S1)):
            I('v_pk_add_f32 %s, %s, %s' % (v(S, 2), v(E + 20 * h, 2), v(E + 20 * h + 2, 2)))
        for i in range(2, 10):
            for h, S in ((0, S0), (1, S1)):
                I('v_pk_add_f32 %s, %s, %s' % (v(S, 2), v(S, 2), v(E + 20 * h + 2 * i, 2)))
        I('v_add_f32 %s, %s, %s' % (mx, v(S0), v(S0 + 1)))
        I('v_add_f32 %s, %s, %s' % (mn, v(S1), v(S1 + 1)))
        I('v_rcp_f32 %s, %s' % (mx, mx))
        I('v_rcp_f32 %s, %s' % (mn, mn))
        for i in range(20):
            sel = 'op_sel_hi:[1,0]' if i < 10 else 'op_sel:[0,1] op_sel_hi:[1,1]'
            I('v_pk_mul_f32 %s, %s, %s %s' % (v(E + 2 * i, 2), v(E + 2 * i, 2), v(M, 2), sel))
        for i in range(20):
            I('v_cvt_pk_bf16_f32 %s, %s, %s' % (dst(i), v(E + 2 * i), v(E + 2 * i + 1)))

    def phi_mfma(self, KP, D):
        for ks in range(3):
            for Tt in range(2):
                c = v(D + 16 * Tt, 16)
                self.I('v_mfma_f32_32x32x16_bf16 %s, %s, %s, %s' %
                       (c, a(aPHI + 12 * Tt + 4 * ks, 4), v(KP + 4 * ks, 4), c if ks else '0'))

    def attention(self):
        I = self.I
        cfg = self.cfg
        SL = TMP + 44
        CS = BF
        for t in range(4):
            for gq in range(4):
                if t == 3 and gq == 3:
                    continue
                self.lg('ds_read_b128 %s, %s offset:%d' % (v(CS + 16 * t + 4 * gq, 4), V['Tb1'], TCS1 - PA + 128 * t + 32 * gq),
                        ('csr', t))
        I('v_pk_add_f32 %s, %s, %s' % (v(SL, 2), v(SL, 2), v(SL + 2, 2)))
        I('v_pk_add_f32 %s, %s, %s' % (v(SL + 4, 2), v(SL + 4, 2), v(SL + 6, 2)))
        I('v_pk_add_f32 %s, %s, %s' % (v(SL, 2), v(SL, 2), v(SL + 4, 2)))
        I('v_mov_b32 %s, %s' % (v(SL + 2), v(SL)))
        I('v_mov_b32 %s, %s' % (v(SL + 3), v(SL + 1)))
        I('v_permlane32_swap_b32 %s, %s' % (v(SL), v(SL + 2)))
        I('v_permlane32_swap_b32 %s, %s' % (v(SL + 1), v(SL + 3)))
        I('v_pk_add_f32 %s, %s, %s' % (v(SL, 2), v(SL, 2), v(SL + 2, 2)))
        self.ln_coeffs(SL, SL + 2)
        self.wait(lg_all=True)

        def ln(off, n):
            for i in range(0, n, 2):
                I('v_pk_mul_f32 %s, %s, %s op_sel:[0,1] op_sel_hi:[1,1]' % (v(CS + off + i, 2), v(CS + off + i, 2), v(SL, 2)))
                I('v_pk_fma_f32 %s, %s, %s, %s op_sel_hi:[1,0,1]' %
                  (v(ACC + off + i, 2), v(ACC + off + i, 2), v(SL, 2), v(CS + off + i, 2)))

        def pack20(P, main, extra):
            for i in range(8):
                I('v_cvt_pk_bf16_f32 %s, %s, %s' % (v(P + i), v(ACC + main + 2 * i), v(ACC + main + 2 * i + 1)))
            for i in range(2):
                I('v_cvt_pk_bf16_f32 %s, %s, %s' % (v(P + 8 + i), v(ACC + extra + 2 * i), v(ACC + extra + 2 * i + 1)))
        KP, D = TMP, TMP + 12
        ln(0, 16)
        ln(48, 4)
        pack20(KP, 0, 48)
        I('v_mov_b32 %s, 0' % v(KP + 10))
        I('v_mov_b32 %s, 0' % v(KP + 11))
        self.phi_mfma(KP, D)
        ln(16, 16)
        ln(52, 4)
        VP = ACC
        pack20(VP, 16, 52)
        I('v_mov_b32 %s, 0x3f80' % v(VP + 10))
        I('v_mov_b32 %s, 0' % v(VP + 11))
        WA = ACC + 16
        for u in range(8):
            I('v_xor_b32 %s, %d, %s' % (v(WA + u), 16 * u, V['TW']))

        def twrite(u, r):
            tag = self.lg('ds_write_b128 %s, %s' % (v(WA + u), v(r, 4)), 'tw')
            for q in range(8):
                self.q_fill(T_Q0 + q, 'T', tag)
        for u in range(3):
            twrite(5 + u, VP + 4 * u)
        ln(32, 16)
        ln(56, 4)
        pack20(KP, 32, 56)
        E = BF
        PK = BF + 40
        self.softmax_pair(D, E, lambda i: v(PK + i))
        for u in range(5):
            twrite(u, PK + 4 * u)
        self.phi_mfma(KP, D)
        self.wait(lg_all=True)
        self.barrier()
        self.stamp(1)
        KA = ACC + 24
        I('v_xor_b32 %s, 32, %s' % (v(KA), V['KA']))
        I('v_xor_b32 %s, 64, %s' % (v(KA + 1), V['KA']))
        DK = ACC + 28
        FR = BF
        for ks in range(4):
            for f in range(4):
                base = V['KB'] if f == 3 else (V['KA'], v(KA), v(KA + 1))[f]
                for ab in range(2):
                    tag = self.lg('ds_read_b64_tr_b16 %s, %s offset:%d' %
                                  (v(FR + 16 * ks + 4 * f + 2 * ab, 2), base, 4096 * ks + 1024 * ab), ('kvr', ks))
                    for q in range(8):
                        self.q_read(T_Q0 + q, 'T', tag)
            if ks > 0:
                self.wait(lg=[('kvr', ks - 1)])
                for t in range(3):
                    c = v(DK + 4 * t, 4)
                    I('v_mfma_f32_16x16x32_bf16 %s, %s, %s, %s' %
                      (c, v(FR + 16 * (ks - 1) + 4 * t, 4), v(FR + 16 * (ks - 1) + 12, 4), c if ks > 1 else '0'))
        for q in range(8):
            self.q_done(T_Q0 + q)
        self.wait(lg_all=True)
        for t in range(3):
            c = v(DK + 4 * t, 4)
            I('v_mfma_f32_16x16x32_bf16 %s, %s, %s, %s' % (c, v(FR + 48 + 4 * t, 4), v(FR + 60, 4), c))
        PV = ACC + 40
        for i in range(6):
            I('v_cvt_pk_bf16_f32 %s, %s, %s' % (v(PV + i), v(DK + 2 * i), v(DK + 2 * i + 1)))
        self.vm('buffer_store_dwordx4 %s, %s, %s, 0 offen sc1' % (v(PV, 4), V['KS1'], srd(sWS)), 'kvs')
        self.vm('buffer_store_dwordx2 %s, %s, %s, 0 offen sc1' % (v(PV + 4, 2), V['KS2'], srd(sWS)), 'kvs')
        self.stamp(2)
        PQ = ACC
        qpos = lambda i: v(PQ + ((4 * ((i % 8) >> 1) + 2 * (i >> 3) + (i & 1)) if i < 16 else i))
        self.softmax_pair(D, E, qpos)
        self.wait(vm=['kvs'])
        I('s_mov_b64 exec, 1')
        self.vm('buffer_store_dword %s, off, %s, %s sc1' % (V['TagG'], srd(sWS), sKVFp))
        I('s_mov_b64 exec, -1')
        for pr in range(2):
            for i in range(4):
                I('v_permlane32_swap_b32 %s, %s' % (v(PQ + 8 * pr + i), v(PQ + 8 * pr + 4 + i)))
        self.stamp(3)
        I('s_cmp_eq_u32 %s, 0' % sLayer)
        I('s_cbranch_scc0 L_nopre')
        I('s_mov_b32 %s, 0x%x' % (t0, PREF))
        save = list(self.vmq)
        self.poll(V['Rd0'], sWS, t0, 0, sTagG, width=4)
        I('s_mov_b32 %s, 0x%x' % (t0, CSP))
        I('buffer_load_dwordx4 %s, v1, %s, %s offen sc1' % (v(TMP, 4), srd(sWS), t0))
        I('v_min_u32 %s, 127, v0' % v(TMP + 6))
        I('v_lshlrev_b32 %s, 2, %s' % (v(TMP + 6), v(TMP + 6)))
        I('v_add_u32 %s, %d, %s' % (v(TMP + 6), TCS3, v(TMP + 6)))
        I('s_waitcnt vmcnt(0)')
        I('v_pk_add_f32 %s, %s, %s' % (v(TMP, 2), v(TMP, 2), v(TMP + 2, 2)))
        I('v_add_f32 %s, %s, %s' % (v(TMP), v(TMP), v(TMP + 1)))
        I('ds_write_b32 %s, %s' % (v(TMP + 6), v(TMP)))
        I('s_waitcnt lgkmcnt(0)')
        I('L_nopre:')
        self.vmq = save
        for st in ('O', 'F1', 'F2'):
            self.stream_reset(st)
        n_o1 = cfg.get('o_before_poll', 25)
        for n in range(n_o1):
            self.dma_now('O', n)
        self.poll(V['KFl'], sWS, sKVFc, 0, sTagG)
        self.stamp(4)
        G = BF
        for p in range(16):
            self.vm('buffer_load_dwordx4 %s, %s, %s, %s offen sc1' % (v(G + 4 * p, 4), V['KG'], srd(sWS), sK4(p)), ('kg', p))
        for n in range(n_o1, 25):
            self.dma_now('O', n)
        SM = TMP
        I('s_mov_b32 s100, 0x00003f80')
        I('s_mov_b32 s101, 0x3f800000')
        for i in range(8):
            I('v_mov_b32 %s, 0' % v(SM + i))
        for p in range(16):
            self.wait(vm=[('kg', p)])
            for i in range(4):
                I('v_dot2c_f32_bf16 %s, s100, %s' % (v(SM + 2 * i), v(G + 4 * p + i)))
                I('v_dot2c_f32_bf16 %s, s101, %s' % (v(SM + 2 * i + 1), v(G + 4 * p + i)))
        for i in range(4):
            I('v_cvt_pk_bf16_f32 %s, %s, %s' % (v(SM + 8 + i), v(SM + 2 * i), v(SM + 2 * i + 1)))
        tag = self.lg('ds_write_b128 %s, %s' % (V['KW'], v(SM + 8, 4)), 'ksw')
        self.q_fill(KS_Q, 'KS', tag)
        self.wait(lg_all=True)
        self.barrier()
        self.stamp(5)
        AF = BF
        for ks in range(3):
            for hd in range(2):
                base, off = (V['R1'], 1920 * hd + 768 * ks) if ks < 2 else (V['R2%d' % hd], 0)
                tag = self.lg('ds_read_b128 %s, %s offset:%d' % (v(AF + 8 * ks + 4 * hd, 4), base, off), ('ksr', ks))
                self.q_read(KS_Q, 'KS', tag)
        self.q_done(KS_Q)
        n_f1 = cfg.get('f1_in_attn', 8)
        for n in range(n_f1):
            self.dma_now('F1', n)
        DO = TMP
        for ks in range(3):
            self.wait(lg=[('ksr', ks)])
            for hd in range(2):
                c = v(DO + 16 * hd, 16)
                b = v(PQ + 8 * ks + 4 * hd, 4) if ks < 2 else v(PQ + 16, 4)
                I('v_mfma_f32_32x32x16_bf16 %s, %s, %s, %s' % (c, v(AF + 8 * ks + 4 * hd, 4), b, c if ks else '0'))
        OP = ACC + 24
        for hd in range(2):
            dn = DO + 16 * hd + 12
            I('v_add_f32 %s, 0x%x, %s' % (v(dn), 0x358637bd, v(dn)))
            I('v_rcp_f32 %s, %s' % (v(dn), v(dn)))
        for hd in range(2):
            b = DO + 16 * hd
            for i in range(6):
                I('v_pk_mul_f32 %s, %s, %s op_sel_hi:[1,0]' % (v(b + 2 * i, 2), v(b + 2 * i, 2), v(b + 12, 2)))
            for i in range(6):
                d = OP + 4 * hd + i if i < 4 else OP + 8 + 2 * hd + (i - 4)
                I('v_cvt_pk_bf16_f32 %s, %s, %s' % (v(d), v(b + 2 * i), v(b + 2 * i + 1)))
        tags = self.dual([
            'buffer_store_dwordx4 %s, %s, %s, 0 offen' % (v(OP, 4), V['SO1'], srd(sST)),
            'buffer_store_dwordx4 %s, %s, %s, 0 offen offset:512' % (v(OP + 4, 4), V['SO1'], srd(sST)),
            'buffer_store_dwordx4 %s, %s, %s, 0 offen' % (v(OP + 8, 4), V['SO2'], srd(sST))])
        self.wait(vm=tags)
        self.flag_local(sFlP32, F_B)
        for n in ('KS1', 'KS2', 'KG'):
            I('v_add_u32 %s, 0x100000, %s' % (V[n], V[n]))
        I('s_add_u32 %s, %s, 0x1000' % (sKVFc, sKVFc))
        I('s_add_u32 %s, %s, 0x1000' % (sKVFp, sKVFp))
        self.stamp(6)
        return n_f1

    def mf16(self, areg):
        def mf(s, f, r):
            c = v(RES + 4 * f, 4)
            return ['v_mfma_f32_16x16x32_bf16 %s, %s, %s, %s' % (c, v(r, 4), a(areg(s), 4), c)]
        return mf

    def p2(self, f1_done):
        cfg = self.cfg
        self.poll(V['Fl'], sLD, sFl16, F_B, sTagL)
        self.next_tag()
        self.stamp(7)
        jobs = [('F1', n) for n in range(f1_done, 35)]
        left = self.gemm('P2', 20, 5, 'O', lambda i: 4 * i, V['A2'], 1, self.mf16(lambda s: 4 * s), L=10, we=5,
                         bars=cfg.get('p2_bars', [0, 8, 14]), jobs=jobs, a0=cfg.get('p2_a0', 4),
                         arate=cfg.get('p2_arate', 1.25), jobrate=cfg.get('p2_jr', 0.5), jobstart=cfg.get('p2_js', 4),
                         touch=self.touches('X1'), touchstart=cfg.get('p2_ts', 2))
        self.stamp(8)
        self.pack_res(TMP + 8)
        self.publish_x(TMP + 8, 'X1')
        self.stamp(9)
        return left

    def p3(self, jobs):
        I = self.I
        cfg = self.cfg
        SL = TMP + 44
        self.poll(V['Fl'], sLD, sFl32, F_X, sTagL)
        self.stamp(10)

        def mf(s, f, r):
            out = []
            for tt in range(2):
                c = v(ACC + 28 * tt + 4 * f, 4)
                out.append('v_mfma_f32_16x16x32_bf16 %s, %s, %s, %s' % (c, v(r, 4), a(8 * s + 4 * tt, 4), c if s else '0'))
            return out

        def h_start():
            for tt in range(2):
                self.vm('buffer_load_dwordx4 %s, %s, %s, 0 offen offset:%d sc1' %
                        (v(SL + 4 * tt, 4), V['LSt3'], srd(sLD), 256 * tt), 'st3')
        jobs = list(jobs) + [('F2', n) for n in range(68)]
        left = self.gemm('P3', 20, 7, 'F1', lambda i: 4 * i, V['A1'], 2, mf, L=5, we=2,
                         bars=cfg.get('p3_bars', [0, 4, 8, 12, 16]), jobs=jobs, a0=cfg.get('p3_a0', 4),
                         arate=cfg.get('p3_arate', 3), jobrate=cfg.get('p3_jr', 2), hooks={-1: h_start},
                         jobstart=cfg.get('p3_js', 0), touch=self.touches('H'), touchstart=cfg.get('p3_ts', 10))
        self.stamp(11)
        CS, B1 = BF, BF + 28
        for t in range(7):
            self.lg('ds_read_b128 %s, %s offset:%d' % (v(CS + 4 * t, 4), V['Tb4'], TCS3 - PA + 64 * t), 'tb')
            self.lg('ds_read_b128 %s, %s offset:%d' % (v(B1 + 4 * t, 4), V['Tb4'], TB1 - PA + 64 * t), 'tb')
        self.wait(vm=['st3'])
        for tt in range(2):
            S = SL + 4 * tt
            I('v_pk_add_f32 %s, %s, %s' % (v(S, 2), v(S, 2), v(S + 2, 2)))
            for sw in ('v_permlane32_swap_b32', 'v_permlane16_swap_b32'):
                I('v_mov_b32 %s, %s' % (v(S + 2), v(S)))
                I('v_mov_b32 %s, %s' % (v(S + 3), v(S + 1)))
                I('%s %s, %s' % (sw, v(S), v(S + 2)))
                I('%s %s, %s' % (sw, v(S + 1), v(S + 3)))
                I('v_pk_add_f32 %s, %s, %s' % (v(S, 2), v(S, 2), v(S + 2, 2)))
            self.ln_coeffs(S, S + 2)
        self.wait(lg_all=True)
        tags = []
        for tt in range(2):
            S = SL + 4 * tt
            Cc = ACC + 28 * tt
            HP = TMP + 16 * tt + 4
            for i in range(14):
                I('v_pk_fma_f32 %s, %s, %s, %s op_sel:[0,1,0] op_sel_hi:[1,1,1]' %
                  (v(TMP, 2), v(CS + 2 * i, 2), v(S, 2), v(B1 + 2 * i, 2)))
                I('v_pk_fma_f32 %s, %s, %s, %s op_sel_hi:[1,0,1]' % (v(Cc + 2 * i, 2), v(Cc + 2 * i, 2), v(S, 2), v(TMP, 2)))
                I('v_max_f32 %s, 0, %s' % (v(Cc + 2 * i), v(Cc + 2 * i)))
                I('v_max_f32 %s, 0, %s' % (v(Cc + 2 * i + 1), v(Cc + 2 * i + 1)))
                I('v_pk_mul_f32 %s, %s, %s' % (v(Cc + 2 * i, 2), v(Cc + 2 * i, 2), v(Cc + 2 * i, 2)))
                I('v_cvt_pk_bf16_f32 %s, %s, %s' % (v(HP + i), v(Cc + 2 * i), v(Cc + 2 * i + 1)))
            so = sH54 if tt else '0'
            tags += self.dual(
                ['buffer_store_dwordx4 %s, %s, %s, %s offen offset:%d' % (v(HP + 4 * pr, 4), V['SH1'], srd(sST), so, 1024 * pr)
                 for pr in range(3)] +
                ['buffer_store_dwordx2 %s, %s, %s, %s offen' % (v(HP + 12, 2), V['SH2'], srd(sST), so)])
        for t in range(5):
            self.lg('ds_read_b128 %s, %s offset:%d' % (v(BF + 4 * t, 4), V['Tb4'], TB2 - PA + 64 * t), 'tb')
        self.wait(lg_all=True)
        for i in range(10):
            I('v_pk_add_f32 %s, %s, %s' % (v(RES + 2 * i, 2), v(RES + 2 * i, 2), v(BF + 2 * i, 2)))
        self.wait(vm=tags)
        self.flag_local(sFlP32, F_B)
        self.stamp(12)
        return left

    def p4(self, jobs):
        I = self.I
        cfg = self.cfg
        self.poll(V['Fl'], sLD, sFl16, F_B, sTagL)
        self.next_tag()
        self.stamp(13)
        I('s_cmp_eq_u32 %s, 0' % sLayer)
        I('s_cselect_b32 s%d, 0x%x, 0' % (sWQ + 2, 640 * 3840))
        jobs = list(jobs) + [('Q', n) for n in range(cfg.get('q_head', 8))]
        ar = lambda i: 4 * (i % 40)
        left = self.gemm('P4', 54, 5, 'F2', ar, V['A4'], 1, self.mf16(ar), L=10, we=5,
                         bars=cfg.get('p4_bars', [0, 6, 12, 18, 24, 30, 36, 42, 48]), jobs=jobs, a0=cfg.get('p4_a0', 4),
                         arate=cfg.get('p4_arate', 1.25), jobrate=cfg.get('p4_jr', 1.0), jobstart=cfg.get('p4_js', 0),
                         touch=self.touches('XA'), touchstart=cfg.get('p4_ts', 36))
        assert not left, left
        self.stamp(14)
        self.pack_res(TMP + 8)

    def build(self):
        I = self.I
        self.prologue()
        if self.cfg.get('stamps'):
            I('v_mov_b32 %s, 0' % V['Stamp'])
            I('v_mov_b32 %s, 0' % V['Stamp0'])
        self.stamp(16)
        self.p0()
        self.stamp(17)
        self.stop('p0')
        self.p1(True)
        snap = self.snapshot()
        I('L_body:')
        self.stamp(0)
        n_f1 = self.attention()
        self.stop('attn')
        left = self.p2(n_f1)
        self.stop('p2')
        left = self.p3(left)
        self.stop('p3')
        self.p4(left)
        I('s_cmp_eq_u32 %s, 0' % sLayer)
        I('s_cbranch_scc0 L_final')
        self.publish_x(TMP + 8, 'XA')
        self.stop('p4')
        self.stamp(15)
        I('s_mov_b32 %s, 1' % sLayer)
        if self.cfg.get('stamps'):
            I('v_mov_b32 %s, %s' % (V['Stamp0'], V['Stamp']))
        self.poll(V['Fl'], sLD, sFl32, F_X, sTagL)
        self.stamp(17)
        self.p1(False)
        snap2 = self.snapshot()
        assert snap == snap2, (snap, snap2)
        I('s_nop 7')
        I('s_nop 3')
        I('s_branch L_body')
        I('L_final:')
        P = TMP + 8
        I('buffer_store_dwordx4 %s, %s, %s, 0 offen' % (v(P, 4), V['X1'], srd(sXO)))
        I('buffer_store_dwordx4 %s, %s, %s, 0 offen offset:64' % (v(P + 4, 4), V['X1'], srd(sXO)))
        I('buffer_store_dwordx2 %s, %s, %s, 0 offen offset:128' % (v(P + 8, 2), V['X3'], srd(sXO)))
        I('s_or_b32 %s, s2, %s' % (t0, sW))
        self.one_wave_store(t0, 'buffer_store_dword %s, off, %s, 0' % (V['TagG'], srd(sWS)))
        if self.cfg.get('stamps'):
            self.stamp(15)
            I('s_lshl_b32 %s, s2, 11' % t0)
            I('s_lshr_b32 %s, %s, 1' % (t1, sW1k))
            I('s_add_u32 %s, %s, %s' % (t0, t0, t1))
            I('s_add_u32 %s, %s, 0x%x' % (t0, t0, STAMPS))
            I('buffer_store_dword %s, %s, %s, %s offen' % (V['Stamp0'], V['KFl'], srd(sWS), t0))
            I('buffer_store_dword %s, %s, %s, %s offen offset:256' % (V['Stamp'], V['KFl'], srd(sWS), t0))
        I('L_end:')
        I('s_endpgm')


HEADER = """; Kernarg layout for this problem (96 bytes, ptrs only, base s[0:1]):
; @launch grid=(256,1,1) block=(256,1,1) lds=163840
.amdgcn_target "amdgcn-amd-amdhsa--gfx950"
.text
.globl {n}_kernel
.p2align 8
.type {n}_kernel,@function
{n}_kernel:
"""
FOOTER = """.section .rodata,"a"
.p2align 6
.amdhsa_kernel {n}_kernel
  .amdhsa_next_free_vgpr 512
  .amdhsa_next_free_sgpr 102
  .amdhsa_accum_offset 256
  .amdhsa_group_segment_fixed_size 0
  .amdhsa_kernarg_size 96
  .amdhsa_user_sgpr_count 2
  .amdhsa_user_sgpr_kernarg_segment_ptr 1
  .amdhsa_system_sgpr_workgroup_id_x 1
.end_amdhsa_kernel
"""


def generate(cfg):
    k = K(cfg)
    k.build()
    lines, added = fix_hazards(k.L)
    body = '\n'.join(x if x.endswith(':') else '    ' + x for x in lines)
    return HEADER.format(n=NAME) + body + '\n' + FOOTER.format(n=NAME), dict(n=len(lines), nops=added, maxvm=k.maxvm)


if __name__ == '__main__':
    import json
    cfg = json.loads(sys.argv[2]) if len(sys.argv) > 2 else {}
    text, info = generate(cfg)
    out = sys.argv[1] if len(sys.argv) > 1 else 'cdna_kernels/%s.s' % NAME
    open(out, 'w').write(text)
    print(info)
```

```python
import sys
import os
sys.path.insert(0, os.path.dirname(os.path.abspath(__file__)))
from asmlib import Gen, fix_hazards

NAME = 'interleave_layers__linear_kernel_hedgehog__dense_activation_squared_relu__prompt'

EPOCH, IDW, PREF, KVF, CSP = 0, 0x1000, 0x2000, 0x4000, 0x8000
KVP, WOT, W1T, W2T, WQC, STAMPS = 0x100000, 0x300000, 0x400000, 0x700000, 0xA00000, 0xD00000
ARENA0, ARENA = 0x1000000, 0xA00000
TGS = 152 * 1024
AL, ST, FL, BE = 0, 40 * 1024, 42 * 1024, 44 * 1024
F_X, F_B = 0, 64
OOB = 0x7ffffff0
NQ = 39
PA = NQ * 4096
TCS1, TCS3, TB1, TB2, TPHI = PA, PA + 512, PA + 1024, PA + 1536, PA + 2048
T_Q0 = 14
KS_Q = 27
STG_Q0 = 34
slotQ = lambda i: i % NQ
slotO = lambda i: (i + 28) % NQ
slotF1 = lambda i: (i + 14) % NQ
slotF2 = lambda i: (i + 10) % NQ
sWS, sLD, sWQ, sXO, sPS, sT2 = 4, 8, 12, 16, 20, 24
sST, sTC = 48, 52
sStep = 's56'
srd = lambda b: 's[%d:%d]' % (b, b + 3)
sK4 = lambda i: '0' if i == 0 else 's%d' % (31 + i)
sH54 = 's47'
(sTagG, sW, sW1k, sLayer, sSlow, sJ, sRb, sC, sTO, sTagL, sFl32, sFl16, sFlP16, sFlP32, sQoff, sKVFc, sKVFp,
 sOb, sF1b, sF2b, sPreP, sTy) = ['s%d' % i for i in range(72, 94)]
sPst = ['s28', 's29', 's30', 's31', 's94']
t0, t1, t2, t3, t4, t5, t6 = 's95', 's96', 's97', 's98', 's99', 's100', 's101'
_names = ('Rd0 Rd1 Rd2 TrA0 TrA1 TrA2 TrB0 TrB1 TrB2 A1 A2 A4 SX1 SX3 S11 S13 SSt LSt1 LSt3 SO1 SO2 SH1 SH2 X1 X3 '
          'Fl TagL TagG DQ DO DF1 DF2 KS1 KS2 KG KFl TW KA KB R1 R20 R21 Tb1 Tb4 KW Cs Stamp Stamp0').split()
V = {n: 'v%d' % (i + 2) for i, n in enumerate(_names)}
assert len(_names) + 2 <= 52
RES, ACC, BF, TMP = 52, 72, 136, 200
aPHI = 160


def v(i, n=1):
    return 'v%d' % i if n == 1 else 'v[%d:%d]' % (i, i + n - 1)


def a(i, n=1):
    return 'a%d' % i if n == 1 else 'a[%d:%d]' % (i, i + n - 1)


LOG2E = 0x3fb8aa3b


class K(Gen):
    def __init__(self, cfg):
        super().__init__(NQ)
        self.cfg = cfg
        self.nstamp = 0
        self.stream_pos = {}

    def stamp(self, idx):
        if self.cfg.get('diag') == 'mark' and self.cfg['mark'][1] == idx:
            lab = self.label('L_mk')
            self.wait(lg_all=True)
            self.I('s_cmp_eq_u32 %s, %d' % (sLayer, self.cfg['mark'][0]))
            self.I('s_cbranch_scc0 %s' % lab)
            self.I('s_memrealtime s[100:101]')
            self.I('s_waitcnt lgkmcnt(0)')
            self.I('s_mov_b32 s57, s100')
            self.I('%s:' % lab)
        if not self.cfg.get('stamps'):
            return
        self.wait(lg_all=True)
        self.I('s_memtime s[100:101]')
        self.I('s_waitcnt lgkmcnt(0)')
        self.I('v_writelane_b32 %s, s100, %d' % (V['Stamp'], idx))

    def stop(self, name):
        if self.cfg.get('stop') == name:
            self.I('s_branch L_end')

    def ldsaddr(self, byte, kind='Rd'):
        return V['%s%d' % (kind, byte >> 16)], byte & 0xffff

    def dual(self, stores, wait_then_flag=None):
        lab = self.label('L_st')
        self.I('s_cmp_eq_u32 %s, 0' % sSlow)
        self.I('s_cbranch_scc0 %s_s' % lab)
        for s in stores:
            self.I(s + ' ; nopad')
        self.I('s_branch %s_e' % lab)
        self.I('%s_s:' % lab)
        tags = []
        for s in stores:
            tags.append(self.vm(s + ' sc1'))
        self.I('%s_e:' % lab)
        return tags

    def one_wave_store(self, cond_reg, text):
        lab = self.label('L_ow')
        self.I('s_cmp_eq_u32 %s, 0' % cond_reg)
        self.I('s_cbranch_scc0 %s' % lab)
        self.I('s_mov_b64 exec, 1')
        self.I(text)
        self.I('s_mov_b64 exec, -1')
        self.I('%s:' % lab)

    def flag_local(self, soff, imm):
        self.I('s_mov_b64 exec, 1')
        self.dual(['buffer_store_dword %s, off, %s, %s offset:%d' % (V['TagL'], srd(sST), soff, imm)])
        self.I('s_mov_b64 exec, -1')
        self.I('s_mov_b64 s[%d:%d], s[%d:%d]' % (sLD, sLD + 1, sST, sST + 1))
        self.I('s_add_u32 s%d, s%d, %s' % (sST, sST, sStep))
        self.I('s_addc_u32 s%d, s%d, 0' % (sST + 1, sST + 1))

    def next_tag(self):
        self.I('s_add_u32 %s, %s, 32' % (sTagL, sTagL))
        self.I('v_mov_b32 %s, %s' % (V['TagL'], sTagL))

    def touches(self, which):
        L = {'XA': [('SX1', '0', 0), ('SX1', '0', 2048), ('SX3', '0', 0), ('SSt', '0', 0)],
             'X1': [('S11', '0', 0), ('S11', '0', 2048), ('S13', '0', 0), ('SSt', '0', 0)],
             'O': [('SO1', '0', 0), ('SO1', '0', 512), ('SO2', '0', 0)],
             'H': [('SH1', so, 1024 * pr) for so in ('0', sH54) for pr in range(3)] + [('SH2', so, 0) for so in ('0', sH54)]}[which]
        if which not in self.cfg.get('touch', ['XA', 'X1', 'O', 'H']):
            return []
        return [('T', 'buffer_load_dword %s, %s, %s, %s offen offset:%d sc1' % (a(255), V[r], srd(sTC), so, off))
                for r, so, off in L]

    def poll(self, addr, sd, soff, imm, tag, width=1):
        lab = self.label('L_poll')
        T = TMP + 52
        self.I('%s:' % lab)
        if width == 1:
            self.I('buffer_load_dword %s, %s, %s, %s offen offset:%d sc1' % (v(T), addr, srd(sd), soff, imm))
        else:
            self.I('buffer_load_dwordx4 %s, %s, %s, %s offen offset:%d sc1' % (v(T, 4), addr, srd(sd), soff, imm))
        self.I('s_sub_u32 %s, %s, 1' % (sTO, sTO))
        self.I('s_cbranch_scc1 L_end')
        self.force_wait('vmcnt(0)')
        if width == 4:
            for i in range(4):
                self.I('v_xor_b32 %s, %s, %s' % (v(T + i), tag, v(T + i)))
            self.I('v_or3_b32 %s, %s, %s, %s' % (v(T), v(T), v(T + 1), v(T + 2)))
            self.I('v_or_b32 %s, %s, %s' % (v(T), v(T), v(T + 3)))
            self.I('v_cmp_ne_u32 vcc, 0, %s' % v(T))
        else:
            self.I('v_cmp_ne_u32 vcc, %s, %s' % (tag, v(T)))
        self.I('s_cbranch_vccnz %s' % lab)

    def stream_reset(self, st):
        base, slot = {'O': (sOb, slotO), 'F1': (sF1b, slotF1), 'F2': (sF2b, slotF2)}[st]
        self.I('v_add_u32 %s, %s, %s' % (V['D' + st], base, V['Rd0']))
        self.stream_pos[st] = -slot(0)

    def dma(self, st, n):
        slot = {'Q': slotQ, 'O': slotO, 'F1': slotF1, 'F2': slotF2}[st](n)

        def pre():
            self.I('s_add_u32 m0, %s, %d' % (sW1k, slot * 4096))
            if st == 'Q':
                if n == 0:
                    self.I('s_mov_b32 %s, 0' % sQoff)
                else:
                    self.I('s_add_u32 %s, %s, %d' % (sQoff, sQoff, 16 * 3840))
            elif n - slot != self.stream_pos[st]:
                d = (n - slot - self.stream_pos[st]) * 4096
                self.I('v_add_u32 %s, 0x%x, %s' % (V['D' + st], d, V['D' + st]))
                self.stream_pos[st] = n - slot

        def issue():
            if st == 'Q':
                tag = self.vm('buffer_load_dwordx4 %s, %s, %s offen %slds' % (V['DQ'], srd(sWQ), sQoff, self.cfg.get('wq_pol', '')), (st, n))
            else:
                tag = self.vm('buffer_load_dwordx4 %s, %s, m0 offen %slds' % (V['D' + st], srd(sWS), self.cfg.get('w_pol', '')), (st, n))
            self.q_fill(slot, (st, n), tag)
        return slot, pre, issue

    def dma_now(self, st, n):
        slot, pre, issue = self.dma(st, n)
        pre()
        issue()

    def gemm(self, name, steps, nfr, st, areg, avaddr, nA, mf, L, we, bars, jobs, a0, arate, jobrate, jobstart=0,
             hooks=None, tr=False, touch=(), touchstart=0):
        hooks = hooks or {}
        slotf = {'Q': slotQ, 'O': slotO, 'F1': slotF1, 'F2': slotF2}[st]
        total = steps * nfr
        P = L + 1
        pool = lambda n: BF + 4 * (n % P)
        nAtot = steps * nA
        state = dict(cur=0, an=0, jacc=0.0, aacc=0.0, pend=None)
        jobs = list(jobs)
        touch = list(touch)

        def quad_of(n):
            return (n // nfr) if tr else (n >> 2)

        def aload():
            i = state['an']
            state['an'] += 1
            assert all(areg(m) != areg(i) for m in range(state['cur'] * nA, i)), 'A window overrun'
            self.vm('buffer_load_dwordx4 %s, %s, %s, %s offen offset:%d sc1' %
                    (a(areg(i), 4), avaddr, srd(sLD), sK4(i >> 2), (i & 3) * 1024), (name, 'A', i))

        def read(n):
            s, f = divmod(n, nfr)
            if f == 0 and s in bars:
                nxt = min([b for b in bars if b > s] + [steps])
                need = {(st, quad_of(m)) for m in range(n, nxt * nfr)}
                self.wait(vm=need)
                self.barrier()
            qn = quad_of(n)
            r = pool(n)
            if tr:
                byte = slotf(qn) * 4096 + 256 * f
                base, off = self.ldsaddr(byte, 'TrB' if f == 3 else 'TrA')
                for ab in range(2):
                    tag = self.lg('ds_read_b64_tr_b16 %s, %s offset:%d' % (v(r + 2 * ab, 2), base, off + 1024 * ab),
                                  (name, 'B', n))
                    self.q_read(slotf(qn), (st, qn), tag)
            else:
                base, off = self.ldsaddr(slotf(qn) * 4096 + (n & 3) * 1024)
                tag = self.lg('ds_read_b128 %s, %s offset:%d' % (v(r, 4), base, off), (name, 'B', n))
                self.q_read(slotf(qn), (st, qn), tag)
            if n + 1 == total or quad_of(n + 1) != qn:
                if not (name == 'P1a'):
                    self.q_done(slotf(qn))

        def filler(s):
            if state['pend'] is not None:
                state['pend']()
                state['pend'] = None
                return
            if state['aacc'] >= 1 and state['an'] < nAtot:
                state['aacc'] -= 1
                aload()
            elif touch and s >= touchstart:
                self.vm(touch.pop(0)[1])
            if state['jacc'] >= 1 and jobs and s >= jobstart:
                slot, pre, issue = self.dma(*jobs[0])
                if self.q_is_free(slot):
                    jobs.pop(0)
                    state['jacc'] -= 1
                    pre()
                    state['pend'] = issue

        for _ in range(min(a0, nAtot)):
            aload()
        if -1 in hooks:
            hooks[-1]()
        for n in range(L):
            read(n)
        for n in range(total):
            s, f = divmod(n, nfr)
            if f == 0:
                state['cur'] = s
                if s in hooks:
                    if state['pend'] is not None:
                        state['pend']()
                        state['pend'] = None
                    hooks[s]()
                state['aacc'] += arate
                state['jacc'] = min(state['jacc'] + jobrate, max(2.0, 2 * jobrate))
            vt = [(name, 'A', s * nA + q) for q in range(nA)] if f == 0 else []
            while f == 0 and state['an'] < (s + 1) * nA:
                aload()
            lt = [(name, 'B', m) for m in range(n, min(n + we, total))] if n % we == 0 else []
            self.wait(vm=vt, lg=lt)
            ms = mf(s, f, pool(n))
            self.I(ms[0])
            if n + L < total:
                read(n + L)
            if len(ms) > 1:
                self.I(ms[1])
            filler(s)
        if state['pend'] is not None:
            state['pend']()
        assert not touch
        return jobs

    def prologue(self):
        I = self.I
        I('s_cmp_ge_u32 s2, 256')
        I('s_cbranch_scc1 L_end')
        if self.cfg.get('diag'):
            I('s_memrealtime s[100:101]')
            I('s_memtime s[98:99]')
            I('s_waitcnt lgkmcnt(0)')
            I('v_mov_b32 %s, s100' % V['Stamp'])
            I('v_mov_b32 %s, s98' % V['Stamp0'])
        I('s_load_dwordx16 s[48:63], s[0:1], 0')
        I('s_load_dwordx8 s[64:71], s[0:1], 64')
        T = TMP
        lane, g, tok, x0, x1, x2 = v(T), v(T + 1), v(T + 2), v(T + 3), v(T + 4), v(T + 5)
        self.lane, self.g, self.tok = lane, g, tok
        I('v_lshrrev_b32 %s, 6, v0' % x0)
        I('v_and_b32 %s, 63, v0' % lane)
        I('v_readfirstlane_b32 %s, %s' % (sW, x0))
        I('s_and_b32 %s, s2, 7' % t0)
        I('s_lshr_b32 %s, s2, 7' % t1)
        I('s_lshl_b32 %s, %s, 1' % (t0, t0))
        I('s_add_u32 %s, %s, %s' % (sRb, t0, t1))
        I('s_bfe_u32 %s, s2, 0x40003' % sJ)
        I('s_and_b32 %s, %s, 7' % (sC, sJ))
        I('s_lshl_b32 %s, %s, 10' % (sW1k, sW))
        I('s_lshr_b32 %s, %s, 3' % (t2, sJ))
        I('s_lshl_b32 %s, %s, 2' % (t2, t2))
        I('s_add_u32 %s, %s, %s' % (t2, t2, sW))
        I('s_lshl_b32 %s, %s, 3' % (t3, sRb))
        I('s_add_u32 %s, %s, %s' % (t3, t3, t2))
        I('s_mul_i32 %s, %s, %d' % (t0, t3, 16 * 1280))
        I('s_mul_i32 %s, %s, 160' % (t1, sC))
        I('s_add_u32 %s, %s, %s' % (t0, t0, t1))
        I('v_lshrrev_b32 %s, 4, %s' % (g, lane))
        I('v_and_b32 %s, 15, %s' % (tok, lane))
        I('v_mul_u32_u24 %s, 1280, %s' % (x0, tok))
        I('v_add_u32 %s, %s, %s' % (x0, t0, x0))
        I('v_lshl_add_u32 %s, %s, 4, %s' % (V['X1'], g, x0))
        I('v_lshl_add_u32 %s, %s, 3, %s' % (V['X3'], g, x0))
        I('v_lshlrev_b32 %s, 4, %s' % (V['Rd0'], lane))
        I('v_and_b32 %s, 3, %s' % (x0, lane))
        I('v_lshrrev_b32 %s, 1, %s' % (x1, x0))
        I('v_add_u32 %s, %s, %s' % (x1, x0, x1))
        I('v_cmp_eq_u32 vcc, 3, %s' % g)
        I('v_cndmask_b32 %s, %s, 2, vcc' % (x1, x1))
        I('v_cndmask_b32 %s, %s, %s, vcc' % (x0, g, x0))
        I('v_add_u32 %s, 1, %s' % (x2, x0))
        I('v_cmp_gt_u32 vcc, 2, %s' % x0)
        I('v_cndmask_b32 %s, 0, %s, vcc' % (x2, x2))
        I('v_mul_u32_u24 %s, 1280, %s' % (x2, x2))
        I('v_lshl_add_u32 %s, %s, 4, %s' % (x2, x1, x2))
        I('v_bfe_u32 %s, %s, 2, 2' % (x0, lane))
        I('v_mul_u32_u24 %s, 3840, %s' % (x0, x0))
        I('s_mul_i32 %s, %s, %d' % (t0, sW, 4 * 3840))
        I('s_mul_i32 %s, %s, 80' % (t1, sJ))
        I('s_add_u32 %s, %s, %s' % (t0, t0, t1))
        I('v_add3_u32 %s, %s, %s, %s' % (V['DQ'], x0, x2, t0))
        I('s_waitcnt lgkmcnt(0)')
        I('s_load_dword %s, s[70:71], 0' % sTagG)

        def mk(b, p, size):
            I('s_mov_b32 s%d, s%d' % (b, p))
            I('s_mov_b32 s%d, s%d' % (b + 1, p + 1))
            I('s_mov_b32 s%d, 0x%x' % (b + 2, size))
            I('s_mov_b32 s%d, 0x20000' % (b + 3))
        mk(sXO, 48, 2048 * 1280)
        XL = TMP + 40
        self.XL = XL
        self.vm('buffer_load_dwordx4 %s, %s, %s, 0 offen' % (v(XL, 4), V['X1'], srd(sXO)), 'x')
        self.vm('buffer_load_dwordx4 %s, %s, %s, 0 offen offset:64' % (v(XL + 4, 4), V['X1'], srd(sXO)), 'x')
        self.vm('buffer_load_dwordx2 %s, %s, %s, 0 offen offset:128' % (v(XL + 8, 2), V['X3'], srd(sXO)), 'x')
        mk(sWQ, 50, 640 * 3840)
        mk(sWS, 70, 0x1000000)
        I('s_add_u32 s%d, s70, 0x%x' % (sLD, ARENA0))
        I('s_addc_u32 s%d, s71, 0' % (sLD + 1))
        I('s_mov_b32 s%d, 0x%x' % (sLD + 2, ARENA))
        I('s_mov_b32 s%d, 0x20000' % (sLD + 3))
        I('s_lshl_b32 %s, %s, 2' % (t0, sRb))
        I('s_add_u32 %s, %s, %s' % (t0, t0, sW))
        I('s_mul_i32 %s, %s, %d' % (t0, t0, TGS))
        I('s_mul_i32 %s, %s, %d' % (t1, sJ, 22 * 128))
        I('s_add_u32 %s, %s, %s' % (t0, t0, t1))
        I('v_min_u32 %s, 21, %s' % (x0, lane))
        I('v_lshl_add_u32 %s, %s, 7, %s' % (x0, x0, t0))
        self.vm('buffer_load_dword %s, %s, %s, 0 offen sc1' % (a(255), x0, srd(sLD)))
        nq0 = self.cfg.get('q_first', 6)
        for n in range(nq0):
            self.dma_now('Q', n)
        self.prepass1()
        self.small_loads()
        for n in range(nq0, self.cfg.get('q_pre', 12)):
            self.dma_now('Q', n)
        self.addresses()

    def prepass1(self):
        I = self.I
        lane = self.lane
        T = TMP + 8
        po = [v(T + i) for i in range(5)]
        e, row, u, y = v(T + 5), v(T + 6), v(T + 7), v(T + 8)
        I('s_mov_b32 s%d, 0x20000' % (sPS + 3))
        I('s_cmp_lt_u32 s2, 40')
        I('s_cbranch_scc1 L_pp_wo')
        I('s_cmp_lt_u32 s2, 148')
        I('s_cbranch_scc1 L_pp_w1')
        I('s_sub_u32 %s, s2, 148' % t0)
        I('s_lshl_b32 %s, %s, 2' % (t0, t0))
        I('s_add_u32 %s, %s, %s' % (t0, t0, sW))
        I('s_and_b32 %s, %s, 7' % (t1, t0))
        I('s_lshr_b32 %s, %s, 3' % (t0, t0))
        I('s_mul_i32 %s, %s, 272' % (t4, t1))
        I('s_mul_i32 %s, %s, 5' % (t5, t0))
        I('s_add_u32 %s, %s, %s' % (t4, t4, t5))
        I('s_lshl_b32 %s, %s, 10' % (t4, t4))
        I('s_add_u32 %s, %s, 0x%x' % (sPst[0], t4, W2T))
        I('s_lshl_b32 %s, %s, 5' % (t0, t0))
        I('s_mov_b32 %s, 4' % t4)
        I('s_mov_b32 %s, 0' % t5)
        I('s_mov_b32 %s, 16' % t6)
        I('s_mov_b32 s%d, s62' % sPS)
        I('s_mov_b32 s%d, s63' % (sPS + 1))
        I('s_mov_b32 s%d, 0x%x' % (sPS + 2, 1728 * 1280))
        I('s_branch L_pp_80')
        I('L_pp_wo:')
        I('s_lshl_b32 %s, s2, 2' % t0)
        I('s_add_u32 %s, %s, %s' % (t0, t0, sW))
        I('s_and_b32 %s, %s, 7' % (t1, t0))
        I('s_lshr_b32 %s, %s, 3' % (t0, t0))
        I('s_mul_i32 %s, %s, 100' % (t4, t1))
        I('s_mul_i32 %s, %s, 5' % (t5, t0))
        I('s_add_u32 %s, %s, %s' % (t4, t4, t5))
        I('s_lshl_b32 %s, %s, 10' % (t4, t4))
        I('s_add_u32 %s, %s, 0x%x' % (sPst[0], t4, WOT))
        I('s_mul_i32 %s, %s, 52' % (t4, t0))
        I('s_lshr_b32 %s, %s, 8' % (t4, t4))
        I('s_mul_i32 %s, %s, 5' % (t5, t4))
        I('s_sub_u32 %s, %s, %s' % (t5, t0, t5))
        I('s_mul_i32 %s, %s, 160' % (t0, t4))
        I('s_mul_i32 %s, %s, 40' % (t6, t5))
        I('s_cmp_eq_u32 %s, 4' % t5)
        I('s_cselect_b32 %s, 16, %s' % (t6, t6))
        I('s_cselect_b32 %s, 40, 8' % t4)
        I('s_cselect_b32 %s, 0, 8' % t5)
        I('s_add_u32 %s, %s, %s' % (t0, t0, t6))
        I('s_mov_b32 %s, 4' % t6)
        I('s_mov_b32 s%d, s54' % sPS)
        I('s_mov_b32 s%d, s55' % (sPS + 1))
        I('s_mov_b32 s%d, 0x%x' % (sPS + 2, 640 * 1280))
        I('L_pp_80:')
        I('s_mul_i32 %s, %s, 160' % (t1, t1))
        I('s_mov_b32 %s, 0' % sTy)
        for n in range(5):
            I('v_add_u32 %s, %d, %s' % (e, 64 * n, lane))
            I('v_mul_u32_u24 %s, 6554, %s' % (row, e))
            I('v_lshrrev_b32 %s, 16, %s' % (row, row))
            I('v_mul_u32_u24 %s, 10, %s' % (u, row))
            I('v_sub_u32 %s, %s, %s' % (u, e, u))
            I('v_and_b32 %s, 3, %s' % (e, row))
            I('v_add_u32 %s, %s, %s' % (e, t0, e))
            I('v_lshrrev_b32 %s, 3, %s' % (y, row))
            I('v_mad_u32_u24 %s, %s, %s, %s' % (e, y, t4, e))
            I('v_lshrrev_b32 %s, 4, %s' % (y, row))
            I('v_mad_u32_u24 %s, %s, %s, %s' % (e, y, t5, e))
            I('v_bfe_u32 %s, %s, 2, 1' % (y, row))
            I('v_mad_u32_u24 %s, %s, %s, %s' % (e, y, t6, e))
            I('v_mul_u32_u24 %s, 1280, %s' % (e, e))
            I('v_lshl_add_u32 %s, %s, 4, %s' % (e, u, e))
            I('v_add_u32 %s, %s, %s' % (po[n], t1, e))
        I('s_mov_b32 %s, 1024' % t0)
        I('v_mov_b32 %s, 0x%x' % (V['Cs'], OOB))
        I('s_branch L_pp_go')
        I('L_pp_w1:')
        I('s_sub_u32 %s, s2, 40' % t0)
        I('s_and_b32 %s, %s, 3' % (t1, t0))
        I('s_lshr_b32 %s, %s, 2' % (t0, t0))
        I('s_lshl_b32 %s, %s, 2' % (t4, t0))
        I('s_add_u32 %s, %s, %s' % (t4, t4, sW))
        I('s_lshl_b32 %s, %s, 8' % (t5, t4))
        I('s_lshl_b32 %s, %s, 2' % (t6, t1))
        I('s_add_u32 %s, %s, %s' % (t5, t5, t6))
        I('s_add_u32 %s, %s, 0x%x' % (t5, t5, CSP))
        I('v_add_u32 %s, %s, %s' % (e, t5, V['Rd0']))
        I('v_mov_b32 %s, 0x%x' % (V['Cs'], OOB))
        I('v_cmp_gt_u32 vcc, 16, %s' % lane)
        I('v_cndmask_b32 %s, %s, %s, vcc' % (V['Cs'], V['Cs'], e))
        I('s_mul_i32 %s, %s, 43' % (t5, t4))
        I('s_lshr_b32 %s, %s, 8' % (t5, t5))
        I('s_mul_i32 %s, %s, 6' % (t6, t5))
        I('s_sub_u32 %s, %s, %s' % (t6, t4, t6))
        I('s_sub_u32 s3, %s, 96' % t4)
        I('s_cmp_ge_u32 %s, 96' % t4)
        I('s_cselect_b32 %s, s3, %s' % (t5, t5))
        I('s_cselect_b32 %s, 6, %s' % (t6, t6))
        I('s_mul_i32 %s, %s, 140' % (t5, t5))
        I('s_mul_i32 s3, %s, 35' % t1)
        I('s_add_u32 %s, %s, s3' % (t5, t5))
        I('s_add_u32 %s, %s, %s' % (t5, t5, t6))
        I('s_lshl_b32 %s, %s, 10' % (t5, t5))
        I('s_add_u32 %s, %s, 0x%x' % (sPst[0], t5, W1T))
        I('s_mul_i32 %s, %s, 160' % (t1, t1))
        I('s_mul_i32 %s, %s, 40' % (t5, sW))
        I('s_add_u32 %s, %s, %s' % (t1, t1, t5))
        I('s_mul_i32 %s, %s, 3456' % (t1, t1))
        I('s_lshl_b32 %s, %s, 7' % (t0, t0))
        I('s_add_u32 %s, %s, %s' % (t1, t1, t0))
        I('v_lshrrev_b32 %s, 3, %s' % (row, lane))
        I('v_mul_u32_u24 %s, 3456, %s' % (row, row))
        I('v_and_b32 %s, 7, %s' % (u, lane))
        I('v_lshl_add_u32 %s, %s, 4, %s' % (row, u, row))
        I('v_add_u32 %s, %s, %s' % (po[0], t1, row))
        for n in range(1, 5):
            I('v_add_u32 %s, %d, %s' % (po[n], 8 * 3456 * n, po[0]))
        I('s_mov_b32 s%d, s58' % sPS)
        I('s_mov_b32 s%d, s59' % (sPS + 1))
        I('s_mov_b32 s%d, 0x%x' % (sPS + 2, 640 * 3456))
        I('s_mov_b32 %s, 1' % sTy)
        I('s_mov_b32 %s, 7168' % t0)
        I('L_pp_go:')
        for n in range(1, 5):
            I('s_add_u32 %s, %s, %s' % (sPst[n], sPst[n - 1], t0))
        I('s_mul_i32 %s, %s, 5' % (t0, sW1k))
        for n in range(5):
            I('s_add_u32 m0, %s, %d' % (t0, STG_Q0 * 4096 + 1024 * n))
            tag = self.vm('buffer_load_dwordx4 %s, %s, 0 offen lds' % (po[n], srd(sPS)), ('stg', n))
            for q in range(5):
                self.q_fill(STG_Q0 + q, 'stg', tag)

    def prepass2(self):
        I = self.I
        T = TMP
        fr = T
        bA, bB, x0, x1, one, cs = v(T + 20), v(T + 21), v(T + 22), v(T + 23), T + 24, T + 28
        I('v_lshrrev_b32 %s, 8, %s' % (x0, V['Rd0']))
        I('v_bfe_u32 %s, %s, 6, 2' % (x1, V['Rd0']))
        for i in range(4):
            I('v_mov_b32 %s, 0x3f803f80' % v(one + i))
        I('s_cmp_eq_u32 %s, 1' % sTy)
        I('s_cbranch_scc1 L_p2_w1')
        I('v_lshl_add_u32 %s, %s, 3, %s' % (x0, x0, x1))
        I('v_mul_u32_u24 %s, 160, %s' % (x0, x0))
        I('s_mul_i32 %s, %s, 5' % (t0, sW1k))
        I('s_add_u32 %s, %s, %d' % (t0, t0, STG_Q0 * 4096))
        I('v_add_u32 %s, %s, %s' % (x0, t0, x0))
        I('v_and_b32 %s, 48, %s' % (x1, V['Rd0']))
        I('v_add_u32 %s, %s, %s' % (bA, x0, x1))
        I('v_lshrrev_b32 %s, 1, %s' % (x1, x1))
        I('v_add_u32 %s, %s, %s' % (bB, x0, x1))
        for t in range(5):
            for ab in range(2):
                off = 640 * ab + (64 * (t >> 1) + 8 * (t & 1) if t < 4 else 128)
                I('ds_read_b64_tr_b16 %s, %s offset:%d' % (v(fr + 4 * t + 2 * ab, 2), bA if t < 4 else bB, off))
        I('s_branch L_p2_go')
        I('L_p2_w1:')
        I('v_lshl_add_u32 %s, %s, 3, %s' % (bA, x0, x1))
        I('v_lshl_add_u32 %s, %s, 2, %s' % (bB, x0, x1))
        I('v_and_b32 %s, 48, %s' % (x1, V['Rd0']))
        I('v_lshrrev_b32 %s, 1, %s' % (x1, x1))
        I('s_lshl_b32 %s, %s, 5' % (t0, sW))
        I('s_add_u32 %s, %s, %d' % (t0, t0, STG_Q0 * 4096))
        I('v_add_u32 %s, %s, %s' % (x1, t0, x1))
        I('v_lshl_add_u32 %s, %s, 7, %s' % (bA, bA, x1))
        I('v_lshl_add_u32 %s, %s, 7, %s' % (bB, bB, x1))
        for i in range(5):
            for ab in range(2):
                off = ((80 * (i >> 1) + 32 * (i & 1) + 4 * ab) if i < 4 else (80 * ab + 64)) * 128
                tag = self.lg('ds_read_b64_tr_b16 %s, %s offset:%d' % (v(fr + 4 * i + 2 * ab, 2), bA if i < 4 else bB, off),
                              'stgr')
                for q in range(5):
                    self.q_read(STG_Q0 + q, 'stg', tag)
        I('L_p2_go:')
        for q in range(5):
            self.q_done(STG_Q0 + q)
        self.wait(lg=['stgr'])
        for i in range(5):
            self.vm('buffer_store_dwordx4 %s, %s, %s, %s offen sc1' % (v(fr + 4 * i, 4), V['Rd0'], srd(sWS), sPst[i]), 'pre')
            I('v_mfma_f32_16x16x32_bf16 %s, %s, %s, %s' % (v(cs, 4), v(one, 4), v(fr + 4 * i, 4), v(cs, 4) if i else '0'))
        self.vm('buffer_store_dword %s, %s, %s, 0 offen sc1' % (v(cs), V['Cs'], srd(sWS)), 'pre')

    def small_loads(self):
        I = self.I
        T = TMP + 20
        x0, x1, x2 = v(T), v(T + 1), v(T + 2)
        self.B1L, self.B2L = T + 3, T + 4
        I('s_mov_b32 s%d, s52' % sT2)
        I('s_mov_b32 s%d, s53' % (sT2 + 1))
        I('s_mov_b32 s%d, %d' % (sT2 + 2, 32 * 800))
        I('s_mov_b32 s%d, 0x20000' % (sT2 + 3))
        I('s_mul_i32 %s, %s, 1600' % (t0, sJ))
        I('v_lshl_add_u32 %s, v0, 2, %s' % (x0, t0))
        I('s_lshr_b32 %s, %s, 2' % (t1, sW1k))
        I('s_add_u32 m0, %s, %d' % (t1, TPHI))
        self.vm('buffer_load_dword %s, %s, 0 offen lds' % (x0, srd(sT2)), 'phi')
        self.vm('buffer_load_dword %s, %s, 0 offen offset:1024 lds' % (x0, srd(sT2)), 'phi')
        I('s_mul_i32 %s, %s, 96' % (t0, sJ))
        I('s_lshl_b32 %s, %s, 4' % (t1, sJ))
        I('s_add_u32 %s, %s, %d' % (t1, t1, 1536 - 96))
        I('v_add_u32 %s, %s, v0' % (x0, t0))
        I('v_add_u32 %s, %s, v0' % (x1, t1))
        I('v_cmp_gt_u32 vcc, 96, v0')
        I('v_cndmask_b32 %s, %s, %s, vcc' % (x0, x1, x0))
        I('v_lshlrev_b32 v1, 4, %s' % x0)
        I('v_lshlrev_b32 %s, 1, %s' % (x0, x0))
        I('s_mov_b32 s%d, s60' % sPS)
        I('s_mov_b32 s%d, s61' % (sPS + 1))
        I('s_mov_b32 s%d, %d' % (sPS + 2, 1728 * 2))
        self.vm('buffer_load_ushort %s, %s, %s, 0 offen' % (v(self.B1L), x0, srd(sPS)), 'bias')
        I('v_bfe_u32 %s, v0, 2, 2' % x0)
        I('v_lshlrev_b32 %s, 3, %s' % (x0, x0))
        I('v_bfe_u32 %s, v0, 4, 1' % x1)
        I('v_lshl_add_u32 %s, %s, 2, %s' % (x0, x1, x0))
        I('v_and_b32 %s, 0x23, v0' % x1)
        I('v_add_u32 %s, %s, %s' % (x0, x0, x1))
        I('v_cmp_gt_u32 vcc, 64, v0')
        I('v_cndmask_b32 %s, v0, %s, vcc' % (x0, x0))
        I('s_mul_i32 %s, %s, 80' % (t0, sC))
        I('v_add_lshl_u32 %s, %s, %s, 1' % (x0, x0, t0))
        I('s_mov_b32 s%d, s64' % sT2)
        I('s_mov_b32 s%d, s65' % (sT2 + 1))
        I('s_mov_b32 s%d, %d' % (sT2 + 2, 640 * 2))
        self.vm('buffer_load_ushort %s, %s, %s, 0 offen' % (v(self.B2L), x0, srd(sT2)), 'bias')

    def addresses(self):
        I = self.I
        lane, g, tok = self.lane, self.g, self.tok
        T = TMP + 3
        x0, x1, x2, x3 = v(T), v(T + 1), v(T + 2), v(T + 3)
        for i in range(1, 16):
            I('s_mov_b32 %s, %d' % (sK4(i), 4096 * i))
        I('s_mov_b32 %s, %d' % (sH54, 54 * 1024))
        for b in (sST, sTC):
            I('s_mov_b64 s[%d:%d], s[%d:%d]' % (b, b + 1, sLD, sLD + 1))
            I('s_mov_b32 s%d, 0x%x' % (b + 2, ARENA))
            I('s_mov_b32 s%d, 0x20000' % (b + 3))
        I('s_mov_b32 %s, 0' % sStep)
        I('s_mov_b32 %s, 0' % sLayer)
        I('s_mov_b32 %s, 0' % sSlow)
        I('s_mov_b32 %s, 0x%x' % (sTO, self.cfg.get('timeout', 0x20000)))
        I('v_add_u32 %s, 0x10000, %s' % (V['Rd1'], V['Rd0']))
        I('v_add_u32 %s, 0x20000, %s' % (V['Rd2'], V['Rd0']))
        I('v_lshrrev_b32 %s, 5, %s' % (x0, lane))
        I('v_lshlrev_b32 %s, 11, %s' % (x0, x0))
        I('v_bfe_u32 %s, %s, 2, 2' % (x1, lane))
        I('v_lshl_add_u32 %s, %s, 6, %s' % (x0, x1, x0))
        I('v_and_b32 %s, 1, %s' % (x1, lane))
        I('v_lshl_add_u32 %s, %s, 5, %s' % (x2, x1, x0))
        I('v_and_b32 %s, 16, %s' % (x1, lane))
        I('v_add_u32 %s, %s, %s' % (x2, x2, x1))
        I('v_lshl_add_u32 %s, %s, 1, %s' % (x0, x1, x0))
        I('v_and_b32 %s, 2, %s' % (x1, lane))
        I('v_lshl_add_u32 %s, %s, 2, %s' % (V['TrA0'], x1, x2))
        I('v_and_b32 %s, 3, %s' % (x1, lane))
        I('v_lshl_add_u32 %s, %s, 3, %s' % (V['TrB0'], x1, x0))
        for k in 'AB':
            I('v_add_u32 %s, 0x10000, %s' % (V['Tr%s1' % k], V['Tr%s0' % k]))
            I('v_add_u32 %s, 0x20000, %s' % (V['Tr%s2' % k], V['Tr%s0' % k]))
        I('s_lshl_b32 %s, %s, 2' % (t4, sRb))
        I('s_add_u32 %s, %s, %s' % (t4, t4, sW))
        I('s_lshr_b32 %s, %s, 1' % (t5, t3))
        I('s_and_b32 %s, %s, 1' % (t6, t2))
        I('s_lshl_b32 %s, %s, 2' % (sKVFp, t4))
        I('s_mul_i32 %s, %s, %d' % (t4, t4, TGS))
        I('s_mul_i32 %s, %s, %d' % (t5, t5, TGS))
        I('v_add_u32 %s, %s, %s' % (V['A1'], t4, V['Rd0']))
        I('s_mul_i32 %s, %s, 20480' % (t0, t6))
        I('s_add_u32 %s, %s, %s' % (t0, t0, t5))
        I('s_add_u32 %s, %s, 0x%x' % (t0, t0, BE))
        I('v_add_u32 %s, %s, %s' % (V['A2'], t0, V['Rd0']))
        I('s_mul_i32 %s, %s, %d' % (t0, t6, 54 * 1024))
        I('s_add_u32 %s, %s, %s' % (t0, t0, t5))
        I('s_add_u32 %s, %s, 0x%x' % (t0, t0, BE))
        I('v_add_u32 %s, %s, %s' % (V['A4'], t0, V['Rd0']))
        I('s_mov_b32 %s, %s' % (t0, t5))
        I('s_mul_i32 %s, %s, %d' % (t1, sC, 5120))
        I('s_add_u32 %s, %s, %s' % (t1, t1, t0))
        I('s_lshl_b32 s3, %s, 8' % t6)
        I('s_add_u32 %s, %s, s3' % (t1, t1))
        I('v_lshl_add_u32 %s, %s, 4, %s' % (x0, tok, t1))
        I('v_lshl_add_u32 %s, %s, 9, %s' % (V['SX1'], g, x0))
        I('v_lshrrev_b32 %s, 1, %s' % (x1, g))
        I('v_lshl_add_u32 %s, %s, 9, %s' % (x0, x1, x0))
        I('v_and_b32 %s, 1, %s' % (x2, g))
        I('v_lshl_add_u32 %s, %s, 3, %s' % (x0, x2, x0))
        I('v_add_u32 %s, 4096, %s' % (V['SX3'], x0))
        I('s_lshr_b32 %s, %s, 1' % (t1, sC))
        I('s_mul_i32 %s, %s, 10' % (t1, t1))
        I('s_add_u32 %s, %s, %s' % (t1, t1, t6))
        I('s_lshl_b32 %s, %s, 10' % (t1, t1))
        I('s_add_u32 %s, %s, %s' % (t0, t0, t1))
        I('s_and_b32 %s, %s, 1' % (t1, sC))
        I('s_lshl_b32 s3, %s, 12' % t1)
        I('s_add_u32 s3, s3, %s' % t0)
        I('v_add_u32 %s, s3, %s' % (V['S11'], V['Rd0']))
        I('s_lshl_b32 s3, %s, 3' % t1)
        I('s_add_u32 s3, s3, %s' % t0)
        I('s_add_u32 s3, s3, 8192')
        I('v_add_u32 %s, s3, %s' % (V['S13'], V['Rd0']))
        I('s_lshl_b32 s3, %s, 3' % t1)
        I('s_add_u32 %s, %s, s3' % (t0, t5))
        I('s_lshr_b32 s3, %s, 1' % sC)
        I('s_lshl_b32 s3, s3, 9')
        I('s_add_u32 %s, %s, s3' % (t0, t0))
        I('s_lshl_b32 s3, %s, 8' % t6)
        I('s_add_u32 %s, %s, s3' % (t0, t0))
        I('s_add_u32 %s, %s, 0x%x' % (t0, t0, ST))
        I('v_lshl_add_u32 %s, %s, 4, %s' % (x0, tok, t0))
        I('v_lshl_add_u32 %s, %s, 2, %s' % (V['SSt'], x1, x0))
        I('s_add_u32 %s, %s, 0x%x' % (t0, t4, ST))
        I('v_add_u32 %s, %s, %s' % (V['LSt1'], t0, V['Rd0']))
        I('v_lshl_add_u32 %s, %s, 4, %s' % (x0, tok, t0))
        I('v_lshl_add_u32 %s, %s, 9, %s' % (V['LSt3'], g, x0))
        I('s_add_u32 %s, %s, 0x%x' % (sFl32, t4, FL))
        I('s_add_u32 %s, %s, 0x%x' % (sFl16, t5, FL))
        I('s_lshl_b32 s3, %s, 3' % t6)
        I('s_add_u32 s3, s3, %s' % sC)
        I('s_lshl_b32 s3, s3, 2')
        I('s_add_u32 %s, %s, s3' % (sFlP16, sFl16))
        I('s_lshl_b32 s3, %s, 2' % sJ)
        I('s_add_u32 %s, %s, s3' % (sFlP32, sFl32))
        I('v_lshlrev_b32 %s, 2, %s' % (V['Fl'], tok))
        I('v_lshlrev_b32 %s, 2, %s' % (V['KFl'], lane))
        I('s_lshl_b32 %s, %s, 8' % (sKVFc, sJ))
        I('s_add_u32 %s, %s, 0x%x' % (sKVFc, sKVFc, KVF))
        I('s_add_u32 %s, %s, %s' % (sKVFp, sKVFp, sKVFc))
        I('s_lshl_b32 %s, s2, 2' % sPreP)
        I('s_add_u32 %s, %s, 0x%x' % (sPreP, sPreP, PREF))
        I('s_lshr_b32 %s, %s, 2' % (t1, sJ))
        I('s_mul_i32 %s, %s, 5120' % (t1, t1))
        I('s_add_u32 %s, %s, %s' % (t0, t4, t1))
        I('s_add_u32 %s, %s, 0x%x' % (t0, t0, BE))
        I('s_and_b32 %s, %s, 3' % (t1, sJ))
        I('v_mul_u32_u24 %s, 20480, %s' % (x0, x2))
        I('v_lshl_add_u32 %s, %s, 4, %s' % (x0, tok, x0))
        I('s_lshl_b32 s3, %s, 10' % t1)
        I('s_add_u32 s3, s3, %s' % t0)
        I('v_add_u32 %s, s3, %s' % (x3, x0))
        I('v_lshl_add_u32 %s, %s, 8, %s' % (V['SO1'], x1, x3))
        I('s_lshl_b32 s3, %s, 8' % t1)
        I('s_add_u32 s3, s3, %s' % t0)
        I('s_add_u32 s3, s3, 4096')
        I('v_add_u32 %s, s3, %s' % (x3, x0))
        I('v_mov_b32 %s, 0x%x' % (V['SO2'], OOB))
        I('v_cmp_gt_u32 vcc, 32, %s' % lane)
        I('v_cndmask_b32 %s, %s, %s, vcc' % (V['SO2'], V['SO2'], x3))
        I('s_add_u32 %s, %s, 0x%x' % (t0, t4, BE))
        I('s_mul_i32 s3, %s, 3072' % sJ)
        I('s_add_u32 s3, s3, %s' % t0)
        I('v_add_u32 %s, s3, %s' % (V['SH1'], V['Rd0']))
        I('s_lshr_b32 s3, %s, 1' % sJ)
        I('s_add_u32 s3, s3, 48')
        I('s_lshl_b32 s3, s3, 10')
        I('s_add_u32 %s, %s, s3' % (t0, t0))
        I('s_and_b32 s3, %s, 1' % sJ)
        I('s_lshl_b32 s3, s3, 3')
        I('s_add_u32 %s, %s, s3' % (t0, t0))
        I('s_cmp_ge_u32 %s, 12' % sJ)
        I('s_cselect_b32 %s, 0x40000000, %s' % (t0, t0))
        I('v_add_u32 %s, %s, %s' % (V['SH2'], t0, V['Rd0']))
        I('s_mul_i32 %s, %s, %d' % (sOb, sC, 100 * 1024))
        I('s_add_u32 %s, %s, 0x%x' % (sOb, sOb, WOT - slotO(0) * 4096))
        I('s_mul_i32 %s, %s, %d' % (sF1b, sJ, 140 * 1024))
        I('s_add_u32 %s, %s, 0x%x' % (sF1b, sF1b, W1T - slotF1(0) * 4096))
        I('s_mul_i32 %s, %s, %d' % (sF2b, sC, 272 * 1024))
        I('s_add_u32 %s, %s, 0x%x' % (sF2b, sF2b, W2T - slotF2(0) * 4096))
        I('s_lshl_b32 %s, %s, 16' % (t0, sJ))
        I('s_add_u32 %s, %s, 0x%x' % (t0, t0, KVP))
        I('v_lshl_add_u32 %s, v0, 4, %s' % (x0, t0))
        I('v_mov_b32 %s, 0x40000000' % V['KG'])
        I('v_cmp_gt_u32 vcc, 240, v0')
        I('v_cndmask_b32 %s, %s, %s, vcc' % (V['KG'], V['KG'], x0))
        I('s_lshl_b32 s3, %s, 12' % sRb)
        I('s_add_u32 %s, %s, s3' % (t0, t0))
        I('s_lshr_b32 %s, %s, 1' % (t5, sW))
        I('s_and_b32 %s, %s, 1' % (t6, sW))
        I('s_mul_i32 s3, %s, 1920' % t5)
        I('s_add_u32 %s, %s, s3' % (t0, t0))
        I('s_lshl_b32 s3, %s, 4' % t6)
        I('v_add_u32 %s, s3, %s' % (x0, tok))
        I('v_cmp_gt_u32 vcc, 24, %s' % x0)
        I('v_lshl_add_u32 %s, %s, 4, %s' % (x0, x0, t0))
        I('v_mov_b32 %s, 0x40000000' % x3)
        I('v_cndmask_b32 %s, %s, %s, vcc' % (x0, x3, x0))
        I('v_mul_u32_u24 %s, 384, %s' % (V['KS1'], g))
        I('v_add_u32 %s, %s, %s' % (V['KS1'], V['KS1'], x0))
        I('v_lshl_add_u32 %s, %s, 3, %s' % (x0, g, x0))
        I('v_add_u32 %s, 1536, %s' % (x0, x0))
        I('v_cmp_gt_u32 vcc, 32, %s' % lane)
        I('v_cndmask_b32 %s, %s, %s, vcc' % (V['KS2'], x3, x0))
        I('v_lshlrev_b32 %s, 4, v0' % V['KW'])
        I('v_add_u32 %s, %d, %s' % (V['KW'], KS_Q * 4096, V['KW']))
        I('v_and_b32 %s, 31, %s' % (x0, lane))
        I('v_lshlrev_b32 %s, 7, %s' % (x0, x0))
        I('v_lshl_add_u32 %s, %s, 14, %s' % (x0, x1, x0))
        I('v_and_b32 %s, 7, %s' % (x3, lane))
        I('v_lshl_add_u32 %s, %s, 4, %s' % (x0, x3, x0))
        I('s_lshl_b32 s3, %s, 12' % sW)
        I('s_add_u32 s3, s3, %d' % (T_Q0 * 4096))
        I('v_add_u32 %s, s3, %s' % (V['TW'], x0))
        I('v_bfe_u32 %s, %s, 2, 3' % (x0, lane))
        I('v_lshl_add_u32 %s, %s, 4, %s' % (x3, x1, x0))
        I('v_lshlrev_b32 %s, 7, %s' % (x3, x3))
        I('s_lshl_b32 s3, %s, 14' % t5)
        I('s_add_u32 s3, s3, %d' % (T_Q0 * 4096))
        I('v_add_u32 %s, s3, %s' % (x3, x3))
        I('v_and_b32 %s, 1, %s' % (x2, lane))
        I('v_lshl_add_u32 %s, %s, 3, %s' % (x3, x2, x3))
        I('v_bfe_u32 %s, %s, 1, 1' % (x2, lane))
        I('v_xor_b32 %s, %s, %s' % (V['KA'], x2, x0))
        I('v_lshl_add_u32 %s, %s, 4, %s' % (V['KA'], V['KA'], x3))
        I('v_add_u32 %s, 5, %s' % (x2, x2))
        I('s_cmp_eq_u32 %s, 1' % t6)
        I('s_cselect_b64 vcc, -1, 0')
        I('v_cndmask_b32 %s, %s, 7, vcc' % (x2, x2))
        I('v_xor_b32 %s, %s, %s' % (x2, x2, x0))
        I('v_lshl_add_u32 %s, %s, 4, %s' % (V['KB'], x2, x3))
        I('v_bfe_u32 %s, %s, 3, 2' % (x0, lane))
        I('v_bfe_u32 %s, %s, 2, 1' % (x2, lane))
        I('v_cmp_gt_u32 vcc, 2, %s' % x0)
        I('v_cndmask_b32 %s, 1, %s, vcc' % (x2, x2))
        I('v_lshlrev_b32 %s, 3, %s' % (x2, x2))
        I('v_lshl_add_u32 %s, %s, 2, %s' % (x2, x0, x2))
        I('v_and_b32 %s, 3, %s' % (x0, lane))
        I('v_add_u32 %s, %s, %s' % (x2, x2, x0))
        I('v_mul_u32_u24 %s, 24, %s' % (x0, x1))
        I('v_add_lshl_u32 %s, %s, %s, 4' % (x0, x0, x2))
        I('v_add_u32 %s, %d, %s' % (V['R1'], KS_Q * 4096, x0))
        I('v_cmp_gt_u32 vcc, 32, %s' % lane)
        I('v_cndmask_b32 %s, 21, %s, vcc' % (x0, x2))
        I('v_cndmask_b32 %s, %s, 21, vcc' % (x3, x2))
        I('v_lshlrev_b32 %s, 4, %s' % (x0, x0))
        I('v_lshlrev_b32 %s, 4, %s' % (x3, x3))
        I('v_add_u32 %s, %d, %s' % (V['R20'], KS_Q * 4096 + 1536, x0))
        I('v_add_u32 %s, %d, %s' % (V['R21'], KS_Q * 4096 + 1536 + 1920, x3))
        I('v_lshlrev_b32 %s, 4, %s' % (x0, x1))
        I('v_add_u32 %s, %d, %s' % (V['Tb1'], PA, x0))
        I('v_lshlrev_b32 %s, 4, %s' % (x0, g))
        I('v_add_u32 %s, %d, %s' % (V['Tb4'], PA, x0))
        self.force_wait('lgkmcnt(0)')
        I('s_add_u32 %s, %s, 0x9e377900' % (sTagG, sTagG))
        I('s_and_b32 %s, %s, 0xffffff00' % (sTagG, sTagG))
        I('s_getreg_b32 s3, hwreg(HW_REG_XCC_ID)')
        I('s_and_b32 s3, s3, 15')
        I('s_or_b32 s3, s3, 16')
        I('s_or_b32 %s, %s, s3' % (sTagL, sTagG))
        I('v_mov_b32 %s, %s' % (V['TagG'], sTagG))
        I('v_mov_b32 %s, %s' % (V['TagL'], sTagL))

    def stats(self):
        I = self.I
        T = TMP
        I('v_pk_add_f32 %s, %s, %s' % (v(T, 2), v(RES, 2), v(RES + 2, 2)))
        I('v_pk_mul_f32 %s, %s, %s' % (v(T + 2, 2), v(RES, 2), v(RES, 2)))
        for i in range(1, 10):
            if i > 1:
                I('v_pk_add_f32 %s, %s, %s' % (v(T, 2), v(T, 2), v(RES + 2 * i, 2)))
            I('v_pk_fma_f32 %s, %s, %s, %s' % (v(T + 2, 2), v(RES + 2 * i, 2), v(RES + 2 * i, 2), v(T + 2, 2)))
        I('v_add_f32 %s, %s, %s' % (v(T), v(T), v(T + 1)))
        I('v_add_f32 %s, %s, %s' % (v(T + 2), v(T + 2), v(T + 3)))
        I('v_permlane32_swap_b32 %s, %s' % (v(T), v(T + 2)))
        I('v_add_f32 %s, %s, %s' % (v(T), v(T), v(T + 2)))
        I('v_mov_b32 %s, %s' % (v(T + 2), v(T)))
        I('v_permlane16_swap_b32 %s, %s' % (v(T), v(T + 2)))
        I('v_add_f32 %s, %s, %s' % (v(T + 2), v(T), v(T + 2)))

    def pack_res(self, P):
        for i in range(10):
            self.I('v_cvt_pk_bf16_f32 %s, %s, %s' % (v(P + i), v(RES + 2 * i), v(RES + 2 * i + 1)))

    def publish_x(self, P, which):
        a1, a3, sto, fl = (V['SX1'], V['SX3'], 0, F_X) if which == 'XA' else (V['S11'], V['S13'], 0, F_X)
        tags = self.dual([
            'buffer_store_dwordx4 %s, %s, %s, 0 offen' % (v(P, 4), a1, srd(sST)),
            'buffer_store_dwordx4 %s, %s, %s, 0 offen offset:2048' % (v(P + 4, 4), a1, srd(sST)),
            'buffer_store_dwordx2 %s, %s, %s, 0 offen' % (v(P + 8, 2), a3, srd(sST))])
        self.stats()
        tags += self.dual(['buffer_store_dword %s, %s, %s, 0 offen offset:%d' % (v(TMP + 2), V['SSt'], srd(sST), sto)])
        self.wait(vm=tags)
        self.flag_local(sFlP16, fl)

    def p0(self):
        I = self.I
        XL = self.XL
        I('s_lshl_b32 %s, %s, 4' % (t0, sRb))
        I('s_add_u32 %s, %s, %s' % (t0, t0, sJ))
        I('s_lshl_b32 %s, %s, 2' % (t0, t0))
        I('s_add_u32 %s, %s, 0x%x' % (t0, t0, IDW))
        self.wait(vm=['x'])
        for i in range(10):
            I('v_lshlrev_b32 %s, 16, %s' % (v(RES + 2 * i), v(XL + i)))
            I('v_and_b32 %s, 0xffff0000, %s' % (v(RES + 2 * i + 1), v(XL + i)))
        I('s_mov_b32 s%d, s66' % sXO)
        I('s_mov_b32 s%d, s67' % (sXO + 1))
        I('L_p0_pub:')
        self.publish_x(XL, 'XA')
        I('s_or_b32 %s, %s, %s' % (t1, sW, sSlow))
        self.one_wave_store(t1, 'buffer_store_dword %s, off, %s, %s sc1' % (V['TagL'], srd(sWS), t0))
        I('v_lshlrev_b32 %s, 16, %s' % (v(TMP + 4), v(self.B1L)))
        I('v_lshlrev_b32 %s, 16, %s' % (v(TMP + 5), v(self.B2L)))
        I('v_min_u32 %s, 127, v0' % v(TMP + 6))
        I('v_lshlrev_b32 %s, 2, %s' % (v(TMP + 6), v(TMP + 6)))
        I('v_add_u32 %s, %d, %s' % (v(TMP + 6), PA, v(TMP + 6)))
        self.lg('ds_write_b32 %s, %s offset:%d' % (v(TMP + 6), v(TMP + 4), TB1 - PA))
        self.lg('ds_write_b32 %s, %s offset:%d' % (v(TMP + 6), v(TMP + 5), TB2 - PA))
        A_, B_, C_ = v(TMP + 7), v(TMP + 8), v(TMP + 9)
        I('v_lshrrev_b32 %s, 8, %s' % (A_, V['Rd0']))
        I('v_mul_u32_u24 %s, 0x%x, %s' % (A_, TGS, A_))
        I('v_add_u32 %s, %s, %s' % (A_, A_, V['Fl']))
        I('s_mul_i32 %s, %s, %d' % (t1, sRb, 4 * TGS))
        I('s_add_u32 %s, %s, 0x%x' % (t1, t1, FL))
        I('s_lshl_b32 %s, %s, 6' % (t4, sRb))
        I('s_add_u32 %s, %s, 0x%x' % (t4, t4, IDW))
        I('s_mov_b32 %s, 0' % t5)
        I('L_p0_poll:')
        I('buffer_load_dword %s, %s, %s, %s offen sc1' % (B_, A_, srd(sLD), t1))
        I('s_sub_u32 %s, %s, 1' % (sTO, sTO))
        I('s_cbranch_scc1 L_end')
        I('s_add_u32 %s, %s, 1' % (t5, t5))
        self.force_wait('vmcnt(0)')
        I('v_cmp_ne_u32 vcc, %s, %s' % (sTagL, B_))
        I('s_cbranch_vccz L_p0_ok')
        I('s_cmp_lt_u32 %s, %d' % (t5, self.cfg.get('id_after', 12)))
        I('s_cbranch_scc1 L_p0_poll')
        I('s_cmp_eq_u32 %s, 0' % sSlow)
        I('s_cbranch_scc0 L_p0_poll')
        I('buffer_load_dword %s, %s, %s, %s offen sc1' % (C_, V['Fl'], srd(sWS), t4))
        I('s_waitcnt vmcnt(0)')
        I('v_xor_b32 %s, %s, %s' % (C_, sTagL, C_))
        I('v_subrev_u32 %s, 1, %s' % (C_, C_))
        I('v_cmp_gt_u32 vcc, 15, %s' % C_)
        I('s_cbranch_vccz L_p0_poll')
        I('s_mov_b32 %s, 1' % sSlow)
        I('s_mov_b32 %s, %s' % (sTagL, sTagG))
        I('v_mov_b32 %s, %s' % (V['TagL'], sTagG))
        I('s_mov_b32 %s, 0x%x' % (sStep, ARENA))
        I('s_add_u32 s%d, s%d, 0x%x' % (sST, sST, ARENA))
        I('s_addc_u32 s%d, s%d, 0' % (sST + 1, sST + 1))
        I('s_mov_b32 s%d, 0' % (sTC + 2))
        I('s_waitcnt lgkmcnt(0)')
        I('s_branch L_p0_pub')
        I('L_p0_ok:')

    def build_phi(self):
        I = self.I
        T = TMP
        x0, x1, x2, b0, b1, msk = v(T + 24), v(T + 25), v(T + 26), v(T + 27), v(T + 28), v(T + 29)
        R = V['Rd0']
        I('v_bfe_u32 %s, %s, 4, 1' % (x0, R))
        I('v_bfe_u32 %s, %s, 6, 2' % (x1, R))
        I('v_mul_u32_u24 %s, 40, %s' % (x1, x1))
        I('v_bfe_u32 %s, %s, 5, 1' % (x2, R))
        I('v_lshl_add_u32 %s, %s, 3, %s' % (x1, x2, x1))
        I('v_bfe_u32 %s, %s, 8, 1' % (x2, R))
        I('v_lshl_add_u32 %s, %s, 4, %s' % (x1, x2, x1))
        I('v_add_u32 %s, %d, %s' % (x1, TPHI, x1))
        I('v_mul_u32_u24 %s, 960, %s' % (x2, x0))
        I('v_add_u32 %s, %s, %s' % (b0, x1, x2))
        I('v_mul_u32_u24 %s, 160, %s' % (x2, x0))
        I('v_add_u32 %s, %s, %s' % (b1, x1, x2))
        I('v_bfe_u32 %s, %s, 6, 1' % (x0, R))
        I('v_lshrrev_b32 %s, 9, %s' % (x2, R))
        I('v_cmp_eq_u32 vcc, %s, %s' % (x0, x2))
        I('v_cndmask_b32 %s, 0, -1, vcc' % msk)
        for Tt in range(2):
            for sq in range(5):
                self.lg('ds_read_b64_tr_b16 %s, %s offset:%d' %
                        (v(T + 12 * Tt + 2 * sq, 2), b0 if sq < 4 else b1, 160 * sq + 32 * Tt), 'phir')
        self.wait(lg=['phir'])
        for Tt in range(2):
            for i in range(12):
                if i < 10:
                    I('v_and_b32 %s, %s, %s' % (v(T + 12 * Tt + i), msk, v(T + 12 * Tt + i)))
                    I('v_accvgpr_write_b32 %s, %s' % (a(aPHI + 12 * Tt + i), v(T + 12 * Tt + i)))
                else:
                    I('v_accvgpr_write_b32 %s, 0' % a(aPHI + 12 * Tt + i))

    def p1(self, first):
        I = self.I
        cfg = self.cfg
        name = 'P1a' if first else 'P1b'
        SL = TMP + 44
        CF, SEL, CA, CB = TMP + 32, TMP + 36, TMP + 40, v(TMP + 52)

        def mf(s, f, r):
            c = v(ACC + 16 * f, 16)
            return ['v_mfma_f32_32x32x16_bf16 %s, %s, %s, %s' % (c, v(r, 4), a(4 * s, 4), c if s else '0')]

        hooks = {}

        def h_start():
            self.vm('buffer_load_dwordx4 %s, %s, %s, 0 offen sc1' % (v(SL, 4), V['LSt1'], srd(sLD)), 'st1')
            self.vm('buffer_load_dwordx4 %s, %s, %s, 0 offen offset:1024 sc1' % (v(SL + 4, 4), V['LSt1'], srd(sLD)), 'st1')
            if first:
                self.wait(lg_all=True)
                I('v_bfe_u32 %s, %s, 8, 1' % (v(SEL), V['Rd0']))
                I('v_bfe_u32 %s, %s, 6, 1' % (v(SEL + 1), V['Rd0']))
                I('v_cmp_eq_u32 vcc, %s, %s' % (v(SEL), v(SEL + 1)))
                I('v_mov_b32 %s, 0x3f803f80' % v(SEL + 1))
                I('v_cndmask_b32 %s, 0, %s, vcc' % (v(SEL), v(SEL + 1)))
                for i in range(1, 4):
                    I('v_mov_b32 %s, %s' % (v(SEL + i), v(SEL)))
                I('s_cmp_eq_u32 %s, 3' % sW)
                I('s_cselect_b64 vcc, -1, 0')
                I('v_cndmask_b32 %s, %s, %s, vcc' % (CB, V['TrA0'], V['TrB0']))
                I('s_lshr_b32 %s, %s, 2' % (t0, sW1k))
                I('v_add_u32 %s, %s, %s' % (CB, t0, CB))
        hooks[-1] = h_start
        if first:
            pp2 = cfg.get('pp2_step', 20)
            phi_step = cfg.get('phi_step', 4)
            seg = [0]

            def cs_hook(s):
                def fn():
                    if s == phi_step:
                        self.build_phi()
                    if s == pp2:
                        self.prepass2()
                    if s == cfg.get('pre_flag_step', 36):
                        assert 'pre' not in self.pre_at_bar
                        assert s > pp2 + 4
                        self.one_wave_store(sW, 'buffer_store_dword %s, off, %s, %s sc1' % (V['TagG'], srd(sWS), sPreP))
                    if s > 0:
                        self.wait(lg=[('cs', s - 1)])
                        I('v_mfma_f32_16x16x32_bf16 %s, %s, %s, %s' %
                          (v(CA, 4), v(SEL, 4), v(CF, 4), v(CA, 4) if s > 1 else '0'))
                    if s < 40:
                        byte = slotQ(s) * 4096
                        if byte >> 16 != seg[0]:
                            I('v_add_u32 %s, 0x%x, %s' % (CB, (((byte >> 16) - seg[0]) << 16) & 0xffffffff, CB))
                            seg[0] = byte >> 16
                        for ab in range(2):
                            tag = self.lg('ds_read_b64_tr_b16 %s, %s offset:%d' %
                                          (v(CF + 2 * ab, 2), CB, (byte & 0xffff) + 1024 * ab), ('cs', s))
                            self.q_read(slotQ(s), ('Q', s), tag)
                        self.q_done(slotQ(s))
                return fn
            for s in range(40):
                hooks[s] = cs_hook(s)
            jobs = [('Q', n) for n in range(cfg.get('q_pre', 12), 40)]
            bars = cfg.get('p1a_bars', [0, 4, 8, 12, 16, 20, 24, 28, 32, 35])
        else:
            jobs = [('Q', n) for n in range(cfg.get('q_head', 8), 40)]
            bars = cfg.get('p1b_bars', [0, 6, 12, 18, 24, 30, 35])
        left = self.gemm(name, 40, 4, 'Q', lambda i: 4 * i, V['A1'], 1, mf, L=5, we=2, bars=bars, jobs=jobs,
                         a0=cfg.get('p1_a0', 4), arate=cfg.get('p1_arate', 1.5),
                         jobrate=cfg.get('p1a_jr', 1.5) if first else cfg.get('p1b_jr', 1.25), hooks=hooks, tr=True,
                         touch=self.touches('O'), touchstart=cfg.get('p1_ts', 26))
        assert not left, left
        if first:
            cs_hook(40)()
            I('v_and_b32 %s, 0x7c, %s' % (v(CF), V['KFl']))
            I('s_lshr_b32 %s, %s, 3' % (t0, sW1k))
            I('s_add_u32 %s, %s, %d' % (t0, t0, TCS1))
            I('v_add_u32 %s, %s, %s' % (v(CF), t0, v(CF)))
            self.lg('ds_write_b32 %s, %s' % (v(CF), v(CA)))
        self.wait(vm_all=True, lg_all=True)
        self.barrier()

    def barrier(self):
        super().barrier()
        self.pre_at_bar = list(self.vmq)

    def ln_coeffs(self, S, n):
        I = self.I
        x = v(n)
        I('v_mul_f32 %s, 0x%x, %s' % (v(S), 0x3acccccd, v(S)))
        I('v_mul_f32 %s, %s, %s' % (x, v(S), v(S)))
        I('v_mul_f32 %s, 0x%x, %s' % (v(S + 1), 0x3acccccd, v(S + 1)))
        I('v_sub_f32 %s, %s, %s' % (x, v(S + 1), x))
        I('v_max_f32 %s, 0, %s' % (x, x))
        I('v_add_f32 %s, 0x%x, %s' % (x, 0x3727c5ac, x))
        I('v_rsq_f32 %s, %s' % (x, x))
        I('v_mul_f32 %s, %s, %s' % (v(S + 1), x, v(S)))
        I('v_mov_b32 %s, %s' % (v(S), x))
        I('v_xor_b32 %s, 0x80000000, %s' % (v(S + 1), v(S + 1)))

    def softmax_pair(self, Pq, E, dst):
        I = self.I
        M = TMP + 54
        mx, mn = v(M), v(M + 1)
        I('v_max3_f32 %s, %s, %s, %s' % (mx, v(Pq), v(Pq + 1), v(Pq + 2)))
        I('v_min3_f32 %s, %s, %s, %s' % (mn, v(Pq), v(Pq + 1), v(Pq + 2)))
        for i in range(3, 19, 2):
            I('v_max3_f32 %s, %s, %s, %s' % (mx, mx, v(Pq + i), v(Pq + i + 1)))
            I('v_min3_f32 %s, %s, %s, %s' % (mn, mn, v(Pq + i), v(Pq + i + 1)))
        I('v_max_f32 %s, %s, %s' % (mx, mx, v(Pq + 19)))
        I('v_min_f32 %s, %s, %s' % (mn, mn, v(Pq + 19)))
        I('s_mov_b32 s100, 0x%x' % LOG2E)
        I('s_mov_b32 s101, 0x%x' % LOG2E)
        I('v_mul_f32 %s, 0x%x, %s' % (mx, LOG2E | 0x80000000, mx))
        I('v_mul_f32 %s, 0x%x, %s' % (mn, LOG2E, mn))
        for i in range(10):
            I('v_pk_fma_f32 %s, %s, s[100:101], %s op_sel_hi:[1,1,0]' % (v(E + 2 * i, 2), v(Pq + 2 * i, 2), v(M, 2)))
            I('v_pk_fma_f32 %s, %s, s[100:101], %s op_sel:[0,0,1] op_sel_hi:[1,1,1] neg_lo:[1,0,0] neg_hi:[1,0,0]' %
              (v(E + 20 + 2 * i, 2), v(Pq + 2 * i, 2), v(M, 2)))
        for i in range(40):
            I('v_exp_f32 %s, %s' % (v(E + i), v(E + i)))
        S0, S1 = Pq, Pq + 2
        for h, S in ((0, S0), (1, S1)):
            I('v_pk_add_f32 %s, %s, %s' % (v(S, 2), v(E + 20 * h, 2), v(E + 20 * h + 2, 2)))
        for i in range(2, 10):
            for h, S in ((0, S0), (1, S1)):
                I('v_pk_add_f32 %s, %s, %s' % (v(S, 2), v(S, 2), v(E + 20 * h + 2 * i, 2)))
        I('v_add_f32 %s, %s, %s' % (mx, v(S0), v(S0 + 1)))
        I('v_add_f32 %s, %s, %s' % (mn, v(S1), v(S1 + 1)))
        I('v_rcp_f32 %s, %s' % (mx, mx))
        I('v_rcp_f32 %s, %s' % (mn, mn))
        for i in range(20):
            sel = 'op_sel_hi:[1,0]' if i < 10 else 'op_sel:[0,1] op_sel_hi:[1,1]'
            I('v_pk_mul_f32 %s, %s, %s %s' % (v(E + 2 * i, 2), v(E + 2 * i, 2), v(M, 2), sel))
        for i in range(20):
            I('v_cvt_pk_bf16_f32 %s, %s, %s' % (dst(i), v(E + 2 * i), v(E + 2 * i + 1)))

    def phi_mfma(self, KP, D):
        for ks in range(3):
            for Tt in range(2):
                c = v(D + 16 * Tt, 16)
                self.I('v_mfma_f32_32x32x16_bf16 %s, %s, %s, %s' %
                       (c, a(aPHI + 12 * Tt + 4 * ks, 4), v(KP + 4 * ks, 4), c if ks else '0'))

    def attention(self):
        I = self.I
        cfg = self.cfg
        SL = TMP + 44
        CS = BF
        for t in range(4):
            for gq in range(4):
                if t == 3 and gq == 3:
                    continue
                self.lg('ds_read_b128 %s, %s offset:%d' % (v(CS + 16 * t + 4 * gq, 4), V['Tb1'], TCS1 - PA + 128 * t + 32 * gq),
                        ('csr', t))
        I('v_pk_add_f32 %s, %s, %s' % (v(SL, 2), v(SL, 2), v(SL + 2, 2)))
        I('v_pk_add_f32 %s, %s, %s' % (v(SL + 4, 2), v(SL + 4, 2), v(SL + 6, 2)))
        I('v_pk_add_f32 %s, %s, %s' % (v(SL, 2), v(SL, 2), v(SL + 4, 2)))
        I('v_mov_b32 %s, %s' % (v(SL + 2), v(SL)))
        I('v_mov_b32 %s, %s' % (v(SL + 3), v(SL + 1)))
        I('v_permlane32_swap_b32 %s, %s' % (v(SL), v(SL + 2)))
        I('v_permlane32_swap_b32 %s, %s' % (v(SL + 1), v(SL + 3)))
        I('v_pk_add_f32 %s, %s, %s' % (v(SL, 2), v(SL, 2), v(SL + 2, 2)))
        self.ln_coeffs(SL, SL + 2)
        self.wait(lg_all=True)

        def ln(off, n):
            for i in range(0, n, 2):
                I('v_pk_mul_f32 %s, %s, %s op_sel:[0,1] op_sel_hi:[1,1]' % (v(CS + off + i, 2), v(CS + off + i, 2), v(SL, 2)))
                I('v_pk_fma_f32 %s, %s, %s, %s op_sel_hi:[1,0,1]' %
                  (v(ACC + off + i, 2), v(ACC + off + i, 2), v(SL, 2), v(CS + off + i, 2)))

        def pack20(P, main, extra):
            for i in range(8):
                I('v_cvt_pk_bf16_f32 %s, %s, %s' % (v(P + i), v(ACC + main + 2 * i), v(ACC + main + 2 * i + 1)))
            for i in range(2):
                I('v_cvt_pk_bf16_f32 %s, %s, %s' % (v(P + 8 + i), v(ACC + extra + 2 * i), v(ACC + extra + 2 * i + 1)))
        KP, D = TMP, TMP + 12
        ln(0, 16)
        ln(48, 4)
        pack20(KP, 0, 48)
        I('v_mov_b32 %s, 0' % v(KP + 10))
        I('v_mov_b32 %s, 0' % v(KP + 11))
        self.phi_mfma(KP, D)
        ln(16, 16)
        ln(52, 4)
        VP = ACC
        pack20(VP, 16, 52)
        I('v_mov_b32 %s, 0x3f80' % v(VP + 10))
        I('v_mov_b32 %s, 0' % v(VP + 11))
        WA = ACC + 16
        for u in range(8):
            I('v_xor_b32 %s, %d, %s' % (v(WA + u), 16 * u, V['TW']))

        def twrite(u, r):
            tag = self.lg('ds_write_b128 %s, %s' % (v(WA + u), v(r, 4)), 'tw')
            for q in range(8):
                self.q_fill(T_Q0 + q, 'T', tag)
        for u in range(3):
            twrite(5 + u, VP + 4 * u)
        ln(32, 16)
        ln(56, 4)
        pack20(KP, 32, 56)
        E = BF
        PK = BF + 40
        self.softmax_pair(D, E, lambda i: v(PK + i))
        for u in range(5):
            twrite(u, PK + 4 * u)
        self.phi_mfma(KP, D)
        self.wait(lg_all=True)
        self.barrier()
        self.stamp(1)
        KA = ACC + 24
        I('v_xor_b32 %s, 32, %s' % (v(KA), V['KA']))
        I('v_xor_b32 %s, 64, %s' % (v(KA + 1), V['KA']))
        DK = ACC + 28
        FR = BF
        for ks in range(4):
            for f in range(4):
                base = V['KB'] if f == 3 else (V['KA'], v(KA), v(KA + 1))[f]
                for ab in range(2):
                    tag = self.lg('ds_read_b64_tr_b16 %s, %s offset:%d' %
                                  (v(FR + 16 * ks + 4 * f + 2 * ab, 2), base, 4096 * ks + 1024 * ab), ('kvr', ks))
                    for q in range(8):
                        self.q_read(T_Q0 + q, 'T', tag)
            if ks > 0:
                self.wait(lg=[('kvr', ks - 1)])
                for t in range(3):
                    c = v(DK + 4 * t, 4)
                    I('v_mfma_f32_16x16x32_bf16 %s, %s, %s, %s' %
                      (c, v(FR + 16 * (ks - 1) + 4 * t, 4), v(FR + 16 * (ks - 1) + 12, 4), c if ks > 1 else '0'))
        for q in range(8):
            self.q_done(T_Q0 + q)
        self.wait(lg_all=True)
        for t in range(3):
            c = v(DK + 4 * t, 4)
            I('v_mfma_f32_16x16x32_bf16 %s, %s, %s, %s' % (c, v(FR + 48 + 4 * t, 4), v(FR + 60, 4), c))
        PV = ACC + 40
        for i in range(6):
            I('v_cvt_pk_bf16_f32 %s, %s, %s' % (v(PV + i), v(DK + 2 * i), v(DK + 2 * i + 1)))
        self.vm('buffer_store_dwordx4 %s, %s, %s, 0 offen sc1' % (v(PV, 4), V['KS1'], srd(sWS)), 'kvs')
        self.vm('buffer_store_dwordx2 %s, %s, %s, 0 offen sc1' % (v(PV + 4, 2), V['KS2'], srd(sWS)), 'kvs')
        self.stamp(2)
        PQ = ACC
        qpos = lambda i: v(PQ + ((4 * ((i % 8) >> 1) + 2 * (i >> 3) + (i & 1)) if i < 16 else i))
        self.softmax_pair(D, E, qpos)
        self.wait(vm=['kvs'])
        I('s_mov_b64 exec, 1')
        self.vm('buffer_store_dword %s, off, %s, %s sc1' % (V['TagG'], srd(sWS), sKVFp))
        I('s_mov_b64 exec, -1')
        for pr in range(2):
            for i in range(4):
                I('v_permlane32_swap_b32 %s, %s' % (v(PQ + 8 * pr + i), v(PQ + 8 * pr + 4 + i)))
        self.stamp(3)
        I('s_cmp_eq_u32 %s, 0' % sLayer)
        I('s_cbranch_scc0 L_nopre')
        I('s_mov_b32 %s, 0x%x' % (t0, PREF))
        save = list(self.vmq)
        self.poll(V['Rd0'], sWS, t0, 0, sTagG, width=4)
        I('s_mov_b32 %s, 0x%x' % (t0, CSP))
        I('buffer_load_dwordx4 %s, v1, %s, %s offen sc1' % (v(TMP, 4), srd(sWS), t0))
        I('v_min_u32 %s, 127, v0' % v(TMP + 6))
        I('v_lshlrev_b32 %s, 2, %s' % (v(TMP + 6), v(TMP + 6)))
        I('v_add_u32 %s, %d, %s' % (v(TMP + 6), TCS3, v(TMP + 6)))
        I('s_waitcnt vmcnt(0)')
        I('v_pk_add_f32 %s, %s, %s' % (v(TMP, 2), v(TMP, 2), v(TMP + 2, 2)))
        I('v_add_f32 %s, %s, %s' % (v(TMP), v(TMP), v(TMP + 1)))
        I('ds_write_b32 %s, %s' % (v(TMP + 6), v(TMP)))
        I('s_waitcnt lgkmcnt(0)')
        I('L_nopre:')
        self.vmq = save
        for st in ('O', 'F1', 'F2'):
            self.stream_reset(st)
        n_o1 = cfg.get('o_before_poll', 25)
        for n in range(n_o1):
            self.dma_now('O', n)
        self.poll(V['KFl'], sWS, sKVFc, 0, sTagG)
        self.stamp(4)
        G = BF
        for p in range(16):
            self.vm('buffer_load_dwordx4 %s, %s, %s, %s offen sc1' % (v(G + 4 * p, 4), V['KG'], srd(sWS), sK4(p)), ('kg', p))
        for n in range(n_o1, 25):
            self.dma_now('O', n)
        SM = TMP
        I('s_mov_b32 s100, 0x00003f80')
        I('s_mov_b32 s101, 0x3f800000')
        for i in range(8):
            I('v_mov_b32 %s, 0' % v(SM + i))
        for p in range(16):
            self.wait(vm=[('kg', p)])
            for i in range(4):
                I('v_dot2c_f32_bf16 %s, s100, %s' % (v(SM + 2 * i), v(G + 4 * p + i)))
                I('v_dot2c_f32_bf16 %s, s101, %s' % (v(SM + 2 * i + 1), v(G + 4 * p + i)))
        for i in range(4):
            I('v_cvt_pk_bf16_f32 %s, %s, %s' % (v(SM + 8 + i), v(SM + 2 * i), v(SM + 2 * i + 1)))
        tag = self.lg('ds_write_b128 %s, %s' % (V['KW'], v(SM + 8, 4)), 'ksw')
        self.q_fill(KS_Q, 'KS', tag)
        self.wait(lg_all=True)
        self.barrier()
        self.stamp(5)
        AF = BF
        for ks in range(3):
            for hd in range(2):
                base, off = (V['R1'], 1920 * hd + 768 * ks) if ks < 2 else (V['R2%d' % hd], 0)
                tag = self.lg('ds_read_b128 %s, %s offset:%d' % (v(AF + 8 * ks + 4 * hd, 4), base, off), ('ksr', ks))
                self.q_read(KS_Q, 'KS', tag)
        self.q_done(KS_Q)
        n_f1 = cfg.get('f1_in_attn', 8)
        for n in range(n_f1):
            self.dma_now('F1', n)
        DO = TMP
        for ks in range(3):
            self.wait(lg=[('ksr', ks)])
            for hd in range(2):
                c = v(DO + 16 * hd, 16)
                b = v(PQ + 8 * ks + 4 * hd, 4) if ks < 2 else v(PQ + 16, 4)
                I('v_mfma_f32_32x32x16_bf16 %s, %s, %s, %s' % (c, v(AF + 8 * ks + 4 * hd, 4), b, c if ks else '0'))
        OP = ACC + 24
        for hd in range(2):
            dn = DO + 16 * hd + 12
            I('v_add_f32 %s, 0x%x, %s' % (v(dn), 0x358637bd, v(dn)))
            I('v_rcp_f32 %s, %s' % (v(dn), v(dn)))
        for hd in range(2):
            b = DO + 16 * hd
            for i in range(6):
                I('v_pk_mul_f32 %s, %s, %s op_sel_hi:[1,0]' % (v(b + 2 * i, 2), v(b + 2 * i, 2), v(b + 12, 2)))
            for i in range(6):
                d = OP + 4 * hd + i if i < 4 else OP + 8 + 2 * hd + (i - 4)
                I('v_cvt_pk_bf16_f32 %s, %s, %s' % (v(d), v(b + 2 * i), v(b + 2 * i + 1)))
        tags = self.dual([
            'buffer_store_dwordx4 %s, %s, %s, 0 offen' % (v(OP, 4), V['SO1'], srd(sST)),
            'buffer_store_dwordx4 %s, %s, %s, 0 offen offset:512' % (v(OP + 4, 4), V['SO1'], srd(sST)),
            'buffer_store_dwordx4 %s, %s, %s, 0 offen' % (v(OP + 8, 4), V['SO2'], srd(sST))])
        self.wait(vm=tags)
        self.flag_local(sFlP32, F_B)
        for n in ('KS1', 'KS2', 'KG'):
            I('v_add_u32 %s, 0x100000, %s' % (V[n], V[n]))
        I('s_add_u32 %s, %s, 0x1000' % (sKVFc, sKVFc))
        I('s_add_u32 %s, %s, 0x1000' % (sKVFp, sKVFp))
        self.stamp(6)
        return n_f1

    def mf16(self, areg):
        def mf(s, f, r):
            c = v(RES + 4 * f, 4)
            return ['v_mfma_f32_16x16x32_bf16 %s, %s, %s, %s' % (c, v(r, 4), a(areg(s), 4), c)]
        return mf

    def p2(self, f1_done):
        cfg = self.cfg
        self.poll(V['Fl'], sLD, sFl16, F_B, sTagL)
        self.next_tag()
        self.stamp(7)
        jobs = [('F1', n) for n in range(f1_done, 35)]
        left = self.gemm('P2', 20, 5, 'O', lambda i: 4 * i, V['A2'], 1, self.mf16(lambda s: 4 * s), L=10, we=5,
                         bars=cfg.get('p2_bars', [0, 8, 14]), jobs=jobs, a0=cfg.get('p2_a0', 4),
                         arate=cfg.get('p2_arate', 1.25), jobrate=cfg.get('p2_jr', 0.5), jobstart=cfg.get('p2_js', 4),
                         touch=self.touches('X1'), touchstart=cfg.get('p2_ts', 2))
        self.stamp(8)
        self.pack_res(TMP + 8)
        self.publish_x(TMP + 8, 'X1')
        self.stamp(9)
        return left

    def p3(self, jobs):
        I = self.I
        cfg = self.cfg
        SL = TMP + 44
        self.poll(V['Fl'], sLD, sFl32, F_X, sTagL)
        self.stamp(10)

        def mf(s, f, r):
            out = []
            for tt in range(2):
                c = v(ACC + 28 * tt + 4 * f, 4)
                out.append('v_mfma_f32_16x16x32_bf16 %s, %s, %s, %s' % (c, v(r, 4), a(8 * s + 4 * tt, 4), c if s else '0'))
            return out

        def h_start():
            for tt in range(2):
                self.vm('buffer_load_dwordx4 %s, %s, %s, 0 offen offset:%d sc1' %
                        (v(SL + 4 * tt, 4), V['LSt3'], srd(sLD), 256 * tt), 'st3')
        jobs = list(jobs) + [('F2', n) for n in range(68)]
        left = self.gemm('P3', 20, 7, 'F1', lambda i: 4 * i, V['A1'], 2, mf, L=5, we=2,
                         bars=cfg.get('p3_bars', [0, 4, 8, 12, 16]), jobs=jobs, a0=cfg.get('p3_a0', 4),
                         arate=cfg.get('p3_arate', 3), jobrate=cfg.get('p3_jr', 2), hooks={-1: h_start},
                         jobstart=cfg.get('p3_js', 0), touch=self.touches('H'), touchstart=cfg.get('p3_ts', 10))
        self.stamp(11)
        CS, B1 = BF, BF + 28
        for t in range(7):
            self.lg('ds_read_b128 %s, %s offset:%d' % (v(CS + 4 * t, 4), V['Tb4'], TCS3 - PA + 64 * t), 'tb')
            self.lg('ds_read_b128 %s, %s offset:%d' % (v(B1 + 4 * t, 4), V['Tb4'], TB1 - PA + 64 * t), 'tb')
        self.wait(vm=['st3'])
        for tt in range(2):
            S = SL + 4 * tt
            I('v_pk_add_f32 %s, %s, %s' % (v(S, 2), v(S, 2), v(S + 2, 2)))
            for sw in ('v_permlane32_swap_b32', 'v_permlane16_swap_b32'):
                I('v_mov_b32 %s, %s' % (v(S + 2), v(S)))
                I('v_mov_b32 %s, %s' % (v(S + 3), v(S + 1)))
                I('%s %s, %s' % (sw, v(S), v(S + 2)))
                I('%s %s, %s' % (sw, v(S + 1), v(S + 3)))
                I('v_pk_add_f32 %s, %s, %s' % (v(S, 2), v(S, 2), v(S + 2, 2)))
            self.ln_coeffs(S, S + 2)
        self.wait(lg_all=True)
        tags = []
        for tt in range(2):
            S = SL + 4 * tt
            Cc = ACC + 28 * tt
            HP = TMP + 16 * tt + 4
            for i in range(14):
                I('v_pk_fma_f32 %s, %s, %s, %s op_sel:[0,1,0] op_sel_hi:[1,1,1]' %
                  (v(TMP, 2), v(CS + 2 * i, 2), v(S, 2), v(B1 + 2 * i, 2)))
                I('v_pk_fma_f32 %s, %s, %s, %s op_sel_hi:[1,0,1]' % (v(Cc + 2 * i, 2), v(Cc + 2 * i, 2), v(S, 2), v(TMP, 2)))
                I('v_max_f32 %s, 0, %s' % (v(Cc + 2 * i), v(Cc + 2 * i)))
                I('v_max_f32 %s, 0, %s' % (v(Cc + 2 * i + 1), v(Cc + 2 * i + 1)))
                I('v_pk_mul_f32 %s, %s, %s' % (v(Cc + 2 * i, 2), v(Cc + 2 * i, 2), v(Cc + 2 * i, 2)))
                I('v_cvt_pk_bf16_f32 %s, %s, %s' % (v(HP + i), v(Cc + 2 * i), v(Cc + 2 * i + 1)))
            so = sH54 if tt else '0'
            tags += self.dual(
                ['buffer_store_dwordx4 %s, %s, %s, %s offen offset:%d' % (v(HP + 4 * pr, 4), V['SH1'], srd(sST), so, 1024 * pr)
                 for pr in range(3)] +
                ['buffer_store_dwordx2 %s, %s, %s, %s offen' % (v(HP + 12, 2), V['SH2'], srd(sST), so)])
        for t in range(5):
            self.lg('ds_read_b128 %s, %s offset:%d' % (v(BF + 4 * t, 4), V['Tb4'], TB2 - PA + 64 * t), 'tb')
        self.wait(lg_all=True)
        for i in range(10):
            I('v_pk_add_f32 %s, %s, %s' % (v(RES + 2 * i, 2), v(RES + 2 * i, 2), v(BF + 2 * i, 2)))
        self.wait(vm=tags)
        self.flag_local(sFlP32, F_B)
        self.stamp(12)
        return left

    def p4(self, jobs):
        I = self.I
        cfg = self.cfg
        self.poll(V['Fl'], sLD, sFl16, F_B, sTagL)
        self.next_tag()
        self.stamp(13)
        I('s_cmp_eq_u32 %s, 0' % sLayer)
        I('s_cselect_b32 s%d, 0x%x, 0' % (sWQ + 2, 640 * 3840))
        jobs = list(jobs) + [('Q', n) for n in range(cfg.get('q_head', 8))]
        ar = lambda i: 4 * (i % 40)
        left = self.gemm('P4', 54, 5, 'F2', ar, V['A4'], 1, self.mf16(ar), L=10, we=5,
                         bars=cfg.get('p4_bars', [0, 6, 12, 18, 24, 30, 36, 42, 48]), jobs=jobs, a0=cfg.get('p4_a0', 4),
                         arate=cfg.get('p4_arate', 1.25), jobrate=cfg.get('p4_jr', 1.0), jobstart=cfg.get('p4_js', 0),
                         touch=self.touches('XA'), touchstart=cfg.get('p4_ts', 36))
        assert not left, left
        self.stamp(14)
        self.pack_res(TMP + 8)

    def build(self):
        I = self.I
        self.prologue()
        if self.cfg.get('stamps'):
            I('v_mov_b32 %s, 0' % V['Stamp'])
            I('v_mov_b32 %s, 0' % V['Stamp0'])
        self.stamp(16)
        self.p0()
        self.stamp(17)
        self.stop('p0')
        self.p1(True)
        snap = self.snapshot()
        I('L_body:')
        self.stamp(0)
        n_f1 = self.attention()
        self.stop('attn')
        left = self.p2(n_f1)
        self.stop('p2')
        left = self.p3(left)
        self.stop('p3')
        self.p4(left)
        I('s_cmp_eq_u32 %s, 0' % sLayer)
        I('s_cbranch_scc0 L_final')
        self.publish_x(TMP + 8, 'XA')
        self.stop('p4')
        self.stamp(15)
        I('s_mov_b32 %s, 1' % sLayer)
        if self.cfg.get('stamps'):
            I('v_mov_b32 %s, %s' % (V['Stamp0'], V['Stamp']))
        self.poll(V['Fl'], sLD, sFl32, F_X, sTagL)
        self.stamp(17)
        self.p1(False)
        snap2 = self.snapshot()
        assert snap == snap2, (snap, snap2)
        I('s_nop 7')
        I('s_nop 3')
        I('s_branch L_body')
        I('L_final:')
        P = TMP + 8
        I('buffer_store_dwordx4 %s, %s, %s, 0 offen' % (v(P, 4), V['X1'], srd(sXO)))
        I('buffer_store_dwordx4 %s, %s, %s, 0 offen offset:64' % (v(P + 4, 4), V['X1'], srd(sXO)))
        I('buffer_store_dwordx2 %s, %s, %s, 0 offen offset:128' % (v(P + 8, 2), V['X3'], srd(sXO)))
        I('s_or_b32 %s, s2, %s' % (t0, sW))
        self.one_wave_store(t0, 'buffer_store_dword %s, off, %s, 0' % (V['TagG'], srd(sWS)))
        if self.cfg.get('stamps'):
            self.stamp(15)
            I('s_lshl_b32 %s, s2, 11' % t0)
            I('s_lshr_b32 %s, %s, 1' % (t1, sW1k))
            I('s_add_u32 %s, %s, %s' % (t0, t0, t1))
            I('s_add_u32 %s, %s, 0x%x' % (t0, t0, STAMPS))
            I('buffer_store_dword %s, %s, %s, %s offen' % (V['Stamp0'], V['KFl'], srd(sWS), t0))
            I('buffer_store_dword %s, %s, %s, %s offen offset:256' % (V['Stamp'], V['KFl'], srd(sWS), t0))
        d = self.cfg.get('diag')
        if d:
            I('v_readfirstlane_b32 s60, %s' % V['Stamp' if d != 'clk' else 'Stamp0'])
            I('s_waitcnt vmcnt(0)')
            I('s_memrealtime s[100:101]')
            I('s_waitcnt lgkmcnt(0)')
            I('s_sub_u32 s61, s100, s60')
            if d == 'rt':
                I('s_mov_b32 s61, 20000')
            elif d == 'clk':
                I('s_mov_b32 s61, 480000')
            elif d == 'slow':
                I('s_mul_i32 s61, %s, 30000' % sSlow)
            elif d == 'dur':
                I('s_mul_i32 s61, s61, 10')
            elif d == 'mark':
                I('s_sub_u32 s61, s57, s60')
                I('s_mul_i32 s61, s61, 10')
                I('s_add_u32 s61, s61, 10000')
            I('L_diag:')
            I('%s s[100:101]' % ('s_memtime' if d == 'clk' else 's_memrealtime'))
            I('s_waitcnt lgkmcnt(0)')
            I('s_sub_u32 s62, s100, s60')
            I('s_cmp_lt_u32 s62, s61')
            I('s_cbranch_scc1 L_diag')
        I('L_end:')
        I('s_endpgm')


HEADER = """; Kernarg layout for this problem (96 bytes, ptrs only, base s[0:1]):
; @launch grid=(256,1,1) block=(256,1,1) lds=163840
.amdgcn_target "amdgcn-amd-amdhsa--gfx950"
.text
.globl {n}_kernel
.p2align 8
.type {n}_kernel,@function
{n}_kernel:
"""
FOOTER = """.section .rodata,"a"
.p2align 6
.amdhsa_kernel {n}_kernel
  .amdhsa_next_free_vgpr 512
  .amdhsa_next_free_sgpr 102
  .amdhsa_accum_offset 256
  .amdhsa_group_segment_fixed_size 0
  .amdhsa_kernarg_size 96
  .amdhsa_user_sgpr_count 2
  .amdhsa_user_sgpr_kernarg_segment_ptr 1
  .amdhsa_system_sgpr_workgroup_id_x 1
.end_amdhsa_kernel
"""


def generate(cfg):
    k = K(cfg)
    k.build()
    lines, added = fix_hazards(k.L)
    body = '\n'.join(x if x.endswith(':') else '    ' + x for x in lines)
    return HEADER.format(n=NAME) + body + '\n' + FOOTER.format(n=NAME), dict(n=len(lines), nops=added, maxvm=k.maxvm)


if __name__ == '__main__':
    import json
    cfg = json.loads(sys.argv[2]) if len(sys.argv) > 2 else {}
    text, info = generate(cfg)
    out = sys.argv[1] if len(sys.argv) > 1 else 'cdna_kernels/%s.s' % NAME
    open(out, 'w').write(text)
    print(info)
```

```python
import sys
import os
sys.path.insert(0, os.path.dirname(os.path.abspath(__file__)))
from asmlib import Gen, fix_hazards

NAME = 'interleave_layers__linear_kernel_hedgehog__dense_activation_squared_relu__prompt'

EPOCH, XF, PREF, QF, KVF, CSP = 0, 0x1000, 0x2000, 0x3000, 0x4000, 0x8000
KVP, WOT, W1T, W2T, WQC, STAMPS = 0x100000, 0x300000, 0x400000, 0x700000, 0xA00000, 0xD00000
ARENA0, ARENA, PAD = 0x1000000, 0xA00000, 0x10000
TGS = 152 * 1024
AL, ST, FL, BE = 0, 40 * 1024, 42 * 1024, 44 * 1024
F_X, F_B = 0, 64
OOB = 0x7ffffff0
NQ = 39
PA = NQ * 4096
TCS1, TCS3, TB1, TB2, TPHI = PA, PA + 512, PA + 1024, PA + 1536, PA + 2048
T_Q0 = 19
KS_Q = 27
STG_Q0 = 34
slotQ = lambda i: i % NQ
slotO = lambda i: (i + 28) % NQ
slotF1 = lambda i: (i + 14) % NQ
slotF2 = lambda i: (i + 10) % NQ
sWS, sLD, sWQ, sXO, sPS, sT2 = 4, 8, 12, 16, 20, 24
sST, sTC = 48, 52
sStep = 's56'
sWr = {'Q': 's58', 'O': 's59', 'F1': 's60', 'F2': 's61'}
sWa = {'P1b': 's62', 'P3': 's62', 'P2': 's63', 'P4': 's64'}
sQb = 's65'
NPIECE = {'Q': 160, 'O': 100, 'F1': 140, 'F2': 270}
PPS = {'Q': 4, 'O': 5, 'F1': 7, 'F2': 5}
srd = lambda b: 's[%d:%d]' % (b, b + 3)
sK4 = lambda i: '0' if i == 0 else 's%d' % (31 + i)
sH54 = 's47'
(sTagG, sW, sW1k, sLayer, sSlow, sJ, sRb, sC, sTO, sTagL, sFl32, sFl16, sFlP16, sFlP32, sQoff, sKVFc, sKVFp,
 sOb, sF1b, sF2b, sPreP, sTy) = ['s%d' % i for i in range(72, 94)]
sPst = ['s28', 's29', 's30', 's31', 's94']
t0, t1, t2, t3, t4, t5, t6 = 's95', 's96', 's97', 's98', 's99', 's100', 's101'
_names = ('Rd0 Rd1 Rd2 TrA0 TrA1 TrA2 TrB0 TrB1 TrB2 A1 A2 A4 SX1 SX3 S11 S13 SSt LSt1 LSt3 SO1 SO2 SH1 SH2 X1 X3 '
          'Fl TagL TagG DQ DO DF1 DF2 KS1 KS2 KG KFl TW KA KB R1 R20 R21 Tb1 Tb4 KW Cs Aw Stamp Stamp0').split()
V = {n: 'v%d' % (i + 2) for i, n in enumerate(_names)}
assert len(_names) + 2 <= 52
RES, ACC, BF, TMP = 52, 72, 136, 200
aPHI = 160


def v(i, n=1):
    return 'v%d' % i if n == 1 else 'v[%d:%d]' % (i, i + n - 1)


def a(i, n=1):
    return 'a%d' % i if n == 1 else 'a[%d:%d]' % (i, i + n - 1)


LOG2E = 0x3fb8aa3b


class K(Gen):
    def __init__(self, cfg):
        super().__init__(NQ)
        self.cfg = cfg
        self.notes = []
        self.stream_pos = {}
        self.clk = 0
        self.mf_free = 0
        self.bgq = []
        self.bg_on = False
        self.bg_last = -10 ** 9
        self.bg_pend = None
        self.rot = {'Q': [0, 20], 'F1': [0, 10], 'O': [0, 5, 10, 15], 'F2': [0, 14, 26, 42]}
        for st in self.rot:
            if st not in cfg.get('rot', ['F2']):
                self.rot[st] = [0] * len(self.rot[st])
        assert (self.rot['Q'][1] == 0) == (self.rot['F1'][1] == 0)
        self.q_rot = False

    def I(self, t):
        for x in t.split('\n'):
            x = x.strip()
            if not x:
                continue
            self.L.append(x)
            op = x.split()[0]
            if op.startswith('v_mfma'):
                st = max(self.clk, self.mf_free)
                self.mf_free = st + (32 if '32x32' in op else 16)
                self.clk = st + 8
            elif op.endswith(':'):
                pass
            elif op.startswith(('v_exp', 'v_rcp', 'v_rsq', 'v_permlane')):
                self.clk += 8
            elif op.startswith('ds_write_b128'):
                self.clk += 40
            else:
                self.clk += 4
            if self.bg_on and op.startswith('v_') and not op.startswith(('v_cmp', 'v_cndmask')):
                self.bg_on = False
                self.bg_step()
                self.bg_on = True

    def bg_step(self):
        if self.bg_pend is not None:
            f, self.bg_pend = self.bg_pend, None
            f()
            return True
        if self.bgq and self.clk - self.bg_last >= self.bgq[0][2]:
            st, n, gap = self.bgq[0]
            if st == 'T':
                self.bgq.pop(0)
                self.vm(n)
                self.bg_last = self.clk
                return True
            slot, pre, issue = self.dma(st, n)
            if self.q_is_free(slot):
                self.bgq.pop(0)
                pre()
                self.bg_pend = issue
                self.bg_last = self.clk
        return False

    def bg(self, on):
        if not on:
            self.bg_on = False
            if self.bg_pend is not None:
                self.bg_step()
        else:
            self.bg_on = True

    def bg_burst(self, k):
        self.bg(False)
        for _ in range(k):
            if not self.bgq:
                break
            n0 = len(self.bgq)
            self.bg_last = -10 ** 9
            self.bg_step()
            if len(self.bgq) == n0:
                break
            self.bg(False)

    def stamp(self, idx):
        if self.cfg.get('diag') == 'mark' and self.cfg['mark'][1] == idx:
            lab = self.label('L_mk')
            self.wait(lg_all=True)
            if idx < 18:
                self.I('s_cmp_eq_u32 %s, %d' % (sLayer, self.cfg['mark'][0]))
                self.I('s_cbranch_scc0 %s' % lab)
            self.I('s_memrealtime s[100:101]')
            self.I('s_waitcnt lgkmcnt(0)')
            self.I('s_mov_b32 s57, s100')
            self.I('%s:' % lab)
        if not self.cfg.get('stamps'):
            return
        self.wait(lg_all=True)
        self.I('s_memtime s[100:101]')
        self.I('s_waitcnt lgkmcnt(0)')
        self.I('v_writelane_b32 %s, s100, %d' % (V['Stamp'], idx))

    def note(self, name):
        self.notes.append('%s>%s%s' % ((name,) + (self.bgq[0][:2] if self.bgq else ('', ''))))

    def ldsaddr(self, byte, kind='Rd'):
        return V['%s%d' % (kind, byte >> 16)], byte & 0xffff

    def dual(self, stores, wait_then_flag=None):
        lab = self.label('L_st')
        self.I('s_cmp_eq_u32 %s, 0' % sSlow)
        self.I('s_cbranch_scc0 %s_s' % lab)
        for s in stores:
            self.I(s + ' ; nopad')
        self.I('s_branch %s_e' % lab)
        self.I('%s_s:' % lab)
        tags = []
        for s in stores:
            tags.append(self.vm(s + ' sc1'))
        self.I('%s_e:' % lab)
        return tags

    def one_wave_store(self, cond_reg, text):
        lab = self.label('L_ow')
        self.I('s_cmp_eq_u32 %s, 0' % cond_reg)
        self.I('s_cbranch_scc0 %s' % lab)
        self.I('s_mov_b64 exec, 1')
        self.I(text)
        self.I('s_mov_b64 exec, -1')
        self.I('%s:' % lab)

    def flag_local(self, soff, imm):
        self.I('s_mov_b64 exec, 1')
        self.dual(['buffer_store_dword %s, off, %s, %s offset:%d' % (V['TagL'], srd(sST), soff, imm)])
        self.I('s_mov_b64 exec, -1')
        self.I('s_mov_b64 s[%d:%d], s[%d:%d]' % (sLD, sLD + 1, sST, sST + 1))
        self.I('s_add_u32 s%d, s%d, %s' % (sST, sST, sStep))
        self.I('s_addc_u32 s%d, s%d, 0' % (sST + 1, sST + 1))

    def next_tag(self):
        self.I('s_add_u32 %s, %s, 32' % (sTagL, sTagL))
        self.I('v_mov_b32 %s, %s' % (V['TagL'], sTagL))

    def touches(self, which, gap=0, always=False):
        L = {'XA': [('SX1', '0', 0), ('SX1', '0', 2048), ('SX3', '0', 0), ('SSt', '0', 0)],
             'X1': [('S11', '0', 0), ('S11', '0', 2048), ('S13', '0', 0), ('SSt', '0', 0)],
             'O': [('SO1', '0', 0), ('SO1', '0', 512), ('SO2', '0', 0)],
             'H': [('SH1', so, 1024 * pr) for so in ('0', sH54) for pr in range(3)] + [('SH2', so, 0) for so in ('0', sH54)]}[which]
        if not always and which not in self.cfg.get('touch', ['H']):
            return []
        return [('T', 'buffer_load_dword %s, %s, %s, %s offen offset:%d sc1' % (a(255), V[r], srd(sTC), so, off), gap)
                for r, so, off in L]

    def poll(self, addr, sd, soff, imm, tag, width=1):
        lab = self.label('L_poll')
        T = TMP + 52
        self.I('%s:' % lab)
        if width == 1:
            self.I('buffer_load_dword %s, %s, %s, %s offen offset:%d sc1' % (v(T), addr, srd(sd), soff, imm))
        else:
            self.I('buffer_load_dwordx4 %s, %s, %s, %s offen offset:%d sc1' % (v(T, 4), addr, srd(sd), soff, imm))
        self.I('s_sub_u32 %s, %s, 1' % (sTO, sTO))
        self.I('s_cbranch_scc1 L_end')
        self.force_wait('vmcnt(0)')
        if width == 4:
            for i in range(4):
                self.I('v_xor_b32 %s, %s, %s' % (v(T + i), tag, v(T + i)))
            self.I('v_or3_b32 %s, %s, %s, %s' % (v(T), v(T), v(T + 1), v(T + 2)))
            self.I('v_or_b32 %s, %s, %s' % (v(T), v(T), v(T + 3)))
            self.I('v_cmp_ne_u32 vcc, 0, %s' % v(T))
        else:
            self.I('v_cmp_ne_u32 vcc, %s, %s' % (tag, v(T)))
        self.I('s_cbranch_vccnz %s' % lab)

    def stream_reset(self, st):
        base, slot = {'Q': (sQb, slotQ), 'O': (sOb, slotO), 'F1': (sF1b, slotF1), 'F2': (sF2b, slotF2)}[st]
        self.I('v_add_u32 %s, %s, %s' % (V['D' + st], base, V['Rd0']))
        self.stream_pos[st] = -slot(0)

    def dma(self, st, n):
        slot = {'Q': slotQ, 'O': slotO, 'F1': slotF1, 'F2': slotF2}[st](n)

        def pre():
            cand = {-(-(NPIECE[st] - PPS[st] * r - w) // 4) for r in self.rot[st] if r for w in range(4)}
            if n in cand and (st != 'Q' or self.q_rot):
                self.I('s_cmp_eq_u32 %s, %d' % (sWr[st], n))
                self.I('s_cselect_b32 s3, 0x%x, 0' % ((-NPIECE[st] * 1024) & 0xffffffff))
                self.I('v_add_u32 %s, s3, %s' % (V['D' + st], V['D' + st]))
            if n - slot != self.stream_pos[st]:
                d = (n - slot - self.stream_pos[st]) * 4096
                self.I('v_add_u32 %s, 0x%x, %s' % (V['D' + st], d, V['D' + st]))
                self.stream_pos[st] = n - slot
            self.I('s_add_u32 m0, %s, %d' % (sW1k, slot * 4096))

        def issue():
            tag = self.vm('buffer_load_dwordx4 %s, %s, m0 offen lds' % (V['D' + st], srd(sWQ if st == 'Q' else sWS)), (st, n))
            self.q_fill(slot, (st, n), tag)
        return slot, pre, issue

    def dma_now(self, st, n):
        slot, pre, issue = self.dma(st, n)
        pre()
        issue()

    def gemm(self, name, steps, nfr, st, areg, avaddr, nA, mf, L, we, bars, a0, arate, jobstart=0, jobstop=999,
             hooks=None, tr=False):
        hooks = hooks or {}
        self.bg(False)
        slotf = {'Q': slotQ, 'O': slotO, 'F1': slotF1, 'F2': slotF2}[st]
        total = steps * nfr
        P = L + 1
        pool = lambda n: BF + 4 * (n % P)
        nAtot = steps * nA
        state = dict(cur=0, an=0, aacc=0.0)
        acand = {nAtot - r * nA for r in self.rot[st] if r} if name != 'P1a' else set()
        if acand:
            self.I('v_mov_b32 %s, %s' % (V['Aw'], avaddr))
            avaddr = V['Aw']

        def quad_of(n):
            return (n // nfr) if tr else (n >> 2)

        def aload():
            i = state['an']
            state['an'] += 1
            assert all(areg(m) != areg(i) for m in range(state['cur'] * nA, i)), 'A window overrun'
            if i in acand:
                self.I('s_cmp_eq_u32 %s, %d' % (sWa[name], i))
                self.I('s_cselect_b32 s3, 0x%x, 0' % ((-nAtot * 1024) & 0xffffffff))
                self.I('v_add_u32 %s, s3, %s' % (avaddr, avaddr))
            self.vm('buffer_load_dwordx4 %s, %s, %s, %s offen offset:%d sc1' %
                    (a(areg(i), 4), avaddr, srd(sLD), sK4(i >> 2), (i & 3) * 1024), (name, 'A', i))

        def read(n):
            s, f = divmod(n, nfr)
            if f == 0 and s in bars:
                nxt = min([b for b in bars if b > s] + [steps])
                need = {(st, quad_of(m)) for m in range(n, nxt * nfr)}
                self.bg(False)
                late = [i for i, j in enumerate(self.bgq) if (j[0], j[1]) in need]
                if late:
                    self.notes.append('LATE %s@%d x%d' % (name, s, late[-1] + 1))
                    self.bg_burst(late[-1] + 1)
                late = [j for j in self.bgq if (j[0], j[1]) in need]
                assert not late, ('%s: not issued before the barrier of step %d' % (name, s), late)
                self.wait(vm=need)
                self.barrier()
            qn = quad_of(n)
            r = pool(n)
            if tr:
                byte = slotf(qn) * 4096 + 256 * f
                base, off = self.ldsaddr(byte, 'TrB' if f == 3 else 'TrA')
                for ab in range(2):
                    tag = self.lg('ds_read_b64_tr_b16 %s, %s offset:%d' % (v(r + 2 * ab, 2), base, off + 1024 * ab),
                                  (name, 'B', n))
                    self.q_read(slotf(qn), (st, qn), tag)
            else:
                base, off = self.ldsaddr(slotf(qn) * 4096 + (n & 3) * 1024)
                tag = self.lg('ds_read_b128 %s, %s offset:%d' % (v(r, 4), base, off), (name, 'B', n))
                self.q_read(slotf(qn), (st, qn), tag)
            if n + 1 == total or quad_of(n + 1) != qn:
                if not (name == 'P1a'):
                    self.q_done(slotf(qn))

        def filler(s):
            if self.bg_pend is not None:
                self.bg_step()
                return
            did = False
            if state['aacc'] >= 1 and state['an'] < nAtot:
                state['aacc'] -= 1
                aload()
                did = True
            if jobstart <= s < jobstop and not (did and self.bgq and self.bgq[0][0] == 'T'):
                self.bg_step()

        if -2 in hooks:
            hooks[-2]()
        for _ in range(min(a0, nAtot)):
            aload()
        if -1 in hooks:
            hooks[-1]()
        for n in range(L):
            read(n)
        for n in range(total):
            s, f = divmod(n, nfr)
            if f == 0:
                state['cur'] = s
                if s in hooks:
                    self.bg(False)
                    hooks[s]()
                state['aacc'] += arate
            vt = [(name, 'A', s * nA + q) for q in range(nA)] if f == 0 else []
            while f == 0 and state['an'] < (s + 1) * nA:
                aload()
            lt = [(name, 'B', m) for m in range(n, min(n + we, total))] if n % we == 0 else []
            self.wait(vm=vt, lg=lt)
            ms = mf(s, f, pool(n))
            self.I(ms[0])
            if n + L < total:
                read(n + L)
            if len(ms) > 1:
                self.I(ms[1])
            filler(s)
        self.bg(False)

    def prologue(self):
        I = self.I
        I('s_cmp_ge_u32 s2, 256')
        I('s_cbranch_scc1 L_end')
        if self.cfg.get('diag'):
            I('s_memrealtime s[100:101]')
            I('s_memtime s[98:99]')
            I('s_waitcnt lgkmcnt(0)')
            I('v_mov_b32 %s, s100' % V['Stamp'])
            I('v_mov_b32 %s, s98' % V['Stamp0'])
        I('s_load_dwordx16 s[48:63], s[0:1], 0')
        I('s_load_dwordx8 s[64:71], s[0:1], 64')
        T = TMP
        lane, g, tok, x0, x1, x2 = v(T), v(T + 1), v(T + 2), v(T + 3), v(T + 4), v(T + 5)
        self.lane, self.g, self.tok = lane, g, tok
        NL = self.cfg.get('code_lines', 11)
        I('s_getpc_b64 s[100:101]')
        I('L_pc:')
        I('s_lshr_b32 s3, s2, 3')
        I('s_mul_i32 s3, s3, %d' % NL)
        I('v_add_lshl_u32 %s, v0, s3, 7' % x0)
        I('v_min_u32 %s, L_end-L_pc, %s' % (x0, x0))
        I('v_mov_b32 %s, s101' % x2)
        I('v_add_co_u32 %s, vcc, s100, %s' % (x1, x0))
        I('v_addc_co_u32 %s, vcc, 0, %s, vcc' % (x2, x2))
        I('v_cmp_gt_u32 vcc, %d, v0' % NL)
        I('s_and_saveexec_b64 s[100:101], vcc')
        I('s_cbranch_execz L_nopf')
        I('global_load_dword %s, %s, off' % (a(255), v(T + 4, 2)))
        I('L_nopf:')
        I('s_mov_b64 exec, -1')
        I('v_lshrrev_b32 %s, 6, v0' % x0)
        I('v_and_b32 %s, 63, v0' % lane)
        I('v_readfirstlane_b32 %s, %s' % (sW, x0))
        I('s_and_b32 %s, s2, 7' % t0)
        I('s_lshr_b32 %s, s2, 7' % t1)
        I('s_lshl_b32 %s, %s, 1' % (t0, t0))
        I('s_add_u32 %s, %s, %s' % (sRb, t0, t1))
        I('s_bfe_u32 %s, s2, 0x40003' % sJ)
        I('s_lshl_b32 %s, %s, 2' % (t4, sRb))
        I('s_add_u32 %s, %s, %s' % (t4, t4, sW))
        I('s_mul_i32 %s, %s, 160' % (t4, t4))
        QS, QA = v(T + 6), v(T + 7)
        I('v_add_u32 %s, %s, %s' % (QS, t4, lane))
        I('v_bfe_u32 %s, %s, 4, 2' % (g, QS))
        I('v_and_b32 %s, 3, %s' % (x0, lane))
        I('v_lshrrev_b32 %s, 1, %s' % (x1, x0))
        I('v_add_u32 %s, %s, %s' % (x1, x0, x1))
        I('v_cmp_eq_u32 vcc, 3, %s' % g)
        I('v_lshrrev_b32 %s, 6, %s' % (QA, QS))
        I('v_bfe_u32 %s, %s, 2, 2' % (tok, lane))
        I('v_cndmask_b32 %s, %s, 2, vcc' % (x1, x1))
        I('v_cndmask_b32 %s, %s, %s, vcc' % (x0, g, x0))
        I('v_add_u32 %s, 1, %s' % (x2, x0))
        I('v_cmp_gt_u32 vcc, 2, %s' % x0)
        I('v_lshl_add_u32 %s, %s, 2, %s' % (QA, QA, tok))
        I('v_mul_u32_u24 %s, 3840, %s' % (QA, QA))
        I('v_cndmask_b32 %s, 0, %s, vcc' % (x2, x2))
        I('v_mul_u32_u24 %s, 1280, %s' % (x2, x2))
        I('v_lshl_add_u32 %s, %s, 4, %s' % (x2, x1, x2))
        I('s_mul_i32 %s, %s, 80' % (t1, sJ))
        I('v_add3_u32 %s, %s, %s, %s' % (QA, QA, x2, t1))
        I('s_mov_b32 %s, 15360' % t5)
        I('s_mov_b32 %s, 30720' % t6)
        I('s_mov_b32 s%d, 0x%x' % (sWQ + 2, 640 * 3840))
        I('s_mov_b32 s%d, 0x20000' % (sWQ + 3))
        I('s_waitcnt lgkmcnt(0)')
        I('s_mov_b64 s[%d:%d], s[50:51]' % (sWQ, sWQ + 1))
        QL = BF
        self.vm('buffer_load_dwordx4 %s, %s, %s, 0 offen' % (v(QL, 4), QA, srd(sWQ)), 'q')
        self.vm('buffer_load_dwordx4 %s, %s, %s, %s offen' % (v(QL + 4, 4), QA, srd(sWQ), t5), 'q')
        I('s_mov_b32 exec_hi, 0')
        self.vm('buffer_load_dwordx4 %s, %s, %s, %s offen' % (v(QL + 8, 4), QA, srd(sWQ), t6), 'q')
        I('s_mov_b64 exec, -1')
        I('s_load_dword %s, s[70:71], 0' % sTagG)
        I('s_and_b32 %s, %s, 7' % (sC, sJ))
        I('s_lshl_b32 %s, %s, 10' % (sW1k, sW))
        I('s_lshr_b32 %s, %s, 3' % (t2, sJ))
        I('s_lshl_b32 %s, %s, 2' % (t2, t2))
        I('s_add_u32 %s, %s, %s' % (t2, t2, sW))
        I('s_lshl_b32 %s, %s, 3' % (t3, sRb))
        I('s_add_u32 %s, %s, %s' % (t3, t3, t2))
        I('s_mul_i32 %s, %s, %d' % (t0, t3, 16 * 1280))
        I('s_mul_i32 %s, %s, 160' % (t1, sC))
        I('s_add_u32 %s, %s, %s' % (t0, t0, t1))
        I('v_lshrrev_b32 %s, 4, %s' % (g, lane))
        I('v_and_b32 %s, 15, %s' % (tok, lane))
        I('v_mul_u32_u24 %s, 1280, %s' % (x0, tok))
        I('v_add_u32 %s, %s, %s' % (x0, t0, x0))
        I('v_lshl_add_u32 %s, %s, 4, %s' % (V['X1'], g, x0))
        I('v_lshl_add_u32 %s, %s, 3, %s' % (V['X3'], g, x0))

        def mk(b, p, size):
            I('s_mov_b64 s[%d:%d], s[%d:%d]' % (b, b + 1, p, p + 1))
            I('s_mov_b32 s%d, 0x%x' % (b + 2, size))
            I('s_mov_b32 s%d, 0x20000' % (b + 3))
        mk(sXO, 48, 2048 * 1280)
        XL = TMP + 40
        self.XL = XL
        self.vm('buffer_load_dwordx4 %s, %s, %s, 0 offen' % (v(XL, 4), V['X1'], srd(sXO)), 'x')
        self.vm('buffer_load_dwordx4 %s, %s, %s, 0 offen offset:64' % (v(XL + 4, 4), V['X1'], srd(sXO)), 'x')
        self.vm('buffer_load_dwordx2 %s, %s, %s, 0 offen offset:128' % (v(XL + 8, 2), V['X3'], srd(sXO)), 'x')
        I('v_lshlrev_b32 %s, 4, %s' % (V['Rd0'], lane))
        I('s_mul_i32 %s, %s, %d' % (sQoff, sJ, 160 * 1024))
        I('s_add_u32 %s, %s, 0x%x' % (sQoff, sQoff, WQC))
        I('v_lshl_add_u32 %s, %s, 4, %s' % (V['DQ'], QS, sQoff))
        mk(sWS, 70, 0x1000000)
        mk(sWQ, 70, 0x1000000)
        I('s_add_u32 s%d, s70, 0x%x' % (sLD, ARENA0))
        I('s_addc_u32 s%d, s71, 0' % (sLD + 1))
        I('s_mov_b32 s%d, 0x%x' % (sLD + 2, ARENA))
        I('s_mov_b32 s%d, 0x20000' % (sLD + 3))
        self.stamp(18)
        self.prepass1()
        self.small_loads(0)
        self.addresses(1)
        self.stamp(19)
        self.wait(vm=['q'])
        self.vm('buffer_store_dwordx4 %s, %s, %s, 0 offen sc1' % (v(QL, 4), V['DQ'], srd(sWS)), 'qs')
        self.vm('buffer_store_dwordx4 %s, %s, %s, 0 offen offset:1024 sc1' % (v(QL + 4, 4), V['DQ'], srd(sWS)), 'qs')
        I('s_mov_b32 exec_hi, 0')
        self.vm('buffer_store_dwordx4 %s, %s, %s, 0 offen offset:2048 sc1' % (v(QL + 8, 4), V['DQ'], srd(sWS)), 'qs')
        I('s_mov_b64 exec, -1')

    def prepass1(self):
        I = self.I
        lane = self.lane
        T = TMP + 8
        po = [v(T + i) for i in range(5)]
        e, row, u, y = v(T + 5), v(T + 6), v(T + 7), v(T + 8)
        I('s_mov_b32 s%d, 0x20000' % (sPS + 3))
        I('s_cmp_lt_u32 s2, 40')
        I('s_cbranch_scc1 L_pp_wo')
        I('s_cmp_lt_u32 s2, 148')
        I('s_cbranch_scc1 L_pp_w1')
        I('s_sub_u32 %s, s2, 148' % t0)
        I('s_lshl_b32 %s, %s, 2' % (t0, t0))
        I('s_add_u32 %s, %s, %s' % (t0, t0, sW))
        I('s_and_b32 %s, %s, 7' % (t1, t0))
        I('s_lshr_b32 %s, %s, 3' % (t0, t0))
        I('s_mul_i32 %s, %s, 272' % (t4, t1))
        I('s_mul_i32 %s, %s, 5' % (t5, t0))
        I('s_add_u32 %s, %s, %s' % (t4, t4, t5))
        I('s_lshl_b32 %s, %s, 10' % (t4, t4))
        I('s_add_u32 %s, %s, 0x%x' % (sPst[0], t4, W2T))
        I('s_lshl_b32 %s, %s, 5' % (t0, t0))
        I('s_mov_b32 %s, 4' % t4)
        I('s_mov_b32 %s, 0' % t5)
        I('s_mov_b32 %s, 16' % t6)
        I('s_mov_b32 s%d, s62' % sPS)
        I('s_mov_b32 s%d, s63' % (sPS + 1))
        I('s_mov_b32 s%d, 0x%x' % (sPS + 2, 1728 * 1280))
        I('s_branch L_pp_80')
        I('L_pp_wo:')
        I('s_lshl_b32 %s, s2, 2' % t0)
        I('s_add_u32 %s, %s, %s' % (t0, t0, sW))
        I('s_and_b32 %s, %s, 7' % (t1, t0))
        I('s_lshr_b32 %s, %s, 3' % (t0, t0))
        I('s_mul_i32 %s, %s, 100' % (t4, t1))
        I('s_mul_i32 %s, %s, 5' % (t5, t0))
        I('s_add_u32 %s, %s, %s' % (t4, t4, t5))
        I('s_lshl_b32 %s, %s, 10' % (t4, t4))
        I('s_add_u32 %s, %s, 0x%x' % (sPst[0], t4, WOT))
        I('s_mul_i32 %s, %s, 52' % (t4, t0))
        I('s_lshr_b32 %s, %s, 8' % (t4, t4))
        I('s_mul_i32 %s, %s, 5' % (t5, t4))
        I('s_sub_u32 %s, %s, %s' % (t5, t0, t5))
        I('s_mul_i32 %s, %s, 160' % (t0, t4))
        I('s_mul_i32 %s, %s, 40' % (t6, t5))
        I('s_cmp_eq_u32 %s, 4' % t5)
        I('s_cselect_b32 %s, 16, %s' % (t6, t6))
        I('s_cselect_b32 %s, 40, 8' % t4)
        I('s_cselect_b32 %s, 0, 8' % t5)
        I('s_add_u32 %s, %s, %s' % (t0, t0, t6))
        I('s_mov_b32 %s, 4' % t6)
        I('s_mov_b32 s%d, s54' % sPS)
        I('s_mov_b32 s%d, s55' % (sPS + 1))
        I('s_mov_b32 s%d, 0x%x' % (sPS + 2, 640 * 1280))
        I('L_pp_80:')
        I('s_mul_i32 %s, %s, 160' % (t1, t1))
        I('s_mov_b32 %s, 0' % sTy)
        for n in range(5):
            I('v_add_u32 %s, %d, %s' % (e, 64 * n, lane))
            I('v_mul_u32_u24 %s, 6554, %s' % (row, e))
            I('v_lshrrev_b32 %s, 16, %s' % (row, row))
            I('v_mul_u32_u24 %s, 10, %s' % (u, row))
            I('v_sub_u32 %s, %s, %s' % (u, e, u))
            I('v_and_b32 %s, 3, %s' % (e, row))
            I('v_add_u32 %s, %s, %s' % (e, t0, e))
            I('v_lshrrev_b32 %s, 3, %s' % (y, row))
            I('v_mad_u32_u24 %s, %s, %s, %s' % (e, y, t4, e))
            I('v_lshrrev_b32 %s, 4, %s' % (y, row))
            I('v_mad_u32_u24 %s, %s, %s, %s' % (e, y, t5, e))
            I('v_bfe_u32 %s, %s, 2, 1' % (y, row))
            I('v_mad_u32_u24 %s, %s, %s, %s' % (e, y, t6, e))
            I('v_mul_u32_u24 %s, 1280, %s' % (e, e))
            I('v_lshl_add_u32 %s, %s, 4, %s' % (e, u, e))
            I('v_add_u32 %s, %s, %s' % (po[n], t1, e))
        I('s_mov_b32 %s, 1024' % t0)
        I('v_mov_b32 %s, 0x%x' % (V['Cs'], OOB))
        I('s_branch L_pp_go')
        I('L_pp_w1:')
        I('s_sub_u32 %s, s2, 40' % t0)
        I('s_and_b32 %s, %s, 3' % (t1, t0))
        I('s_lshr_b32 %s, %s, 2' % (t0, t0))
        I('s_lshl_b32 %s, %s, 2' % (t4, t0))
        I('s_add_u32 %s, %s, %s' % (t4, t4, sW))
        I('s_lshl_b32 %s, %s, 8' % (t5, t4))
        I('s_lshl_b32 %s, %s, 2' % (t6, t1))
        I('s_add_u32 %s, %s, %s' % (t5, t5, t6))
        I('s_add_u32 %s, %s, 0x%x' % (t5, t5, CSP))
        I('v_add_u32 %s, %s, %s' % (e, t5, V['Rd0']))
        I('v_mov_b32 %s, 0x%x' % (V['Cs'], OOB))
        I('v_cmp_gt_u32 vcc, 16, %s' % lane)
        I('v_cndmask_b32 %s, %s, %s, vcc' % (V['Cs'], V['Cs'], e))
        I('s_mul_i32 %s, %s, 43' % (t5, t4))
        I('s_lshr_b32 %s, %s, 8' % (t5, t5))
        I('s_mul_i32 %s, %s, 6' % (t6, t5))
        I('s_sub_u32 %s, %s, %s' % (t6, t4, t6))
        I('s_sub_u32 s3, %s, 96' % t4)
        I('s_cmp_ge_u32 %s, 96' % t4)
        I('s_cselect_b32 %s, s3, %s' % (t5, t5))
        I('s_cselect_b32 %s, 6, %s' % (t6, t6))
        I('s_mul_i32 %s, %s, 140' % (t5, t5))
        I('s_mul_i32 s3, %s, 35' % t1)
        I('s_add_u32 %s, %s, s3' % (t5, t5))
        I('s_add_u32 %s, %s, %s' % (t5, t5, t6))
        I('s_lshl_b32 %s, %s, 10' % (t5, t5))
        I('s_add_u32 %s, %s, 0x%x' % (sPst[0], t5, W1T))
        I('s_mul_i32 %s, %s, 160' % (t1, t1))
        I('s_mul_i32 %s, %s, 40' % (t5, sW))
        I('s_add_u32 %s, %s, %s' % (t1, t1, t5))
        I('s_mul_i32 %s, %s, 3456' % (t1, t1))
        I('s_lshl_b32 %s, %s, 7' % (t0, t0))
        I('s_add_u32 %s, %s, %s' % (t1, t1, t0))
        I('v_lshrrev_b32 %s, 3, %s' % (row, lane))
        I('v_mul_u32_u24 %s, 3456, %s' % (row, row))
        I('v_and_b32 %s, 7, %s' % (u, lane))
        I('v_lshl_add_u32 %s, %s, 4, %s' % (row, u, row))
        I('v_add_u32 %s, %s, %s' % (po[0], t1, row))
        for n in range(1, 5):
            I('v_add_u32 %s, %d, %s' % (po[n], 8 * 3456 * n, po[0]))
        I('s_mov_b32 s%d, s58' % sPS)
        I('s_mov_b32 s%d, s59' % (sPS + 1))
        I('s_mov_b32 s%d, 0x%x' % (sPS + 2, 640 * 3456))
        I('s_mov_b32 %s, 1' % sTy)
        I('s_mov_b32 %s, 7168' % t0)
        I('L_pp_go:')
        for n in range(1, 5):
            I('s_add_u32 %s, %s, %s' % (sPst[n], sPst[n - 1], t0))
        self.po = po

    def prepass1_issue(self):
        I = self.I
        po = self.po
        I('s_mul_i32 %s, %s, 5' % (t0, sW1k))
        for n in range(5):
            I('s_add_u32 m0, %s, %d' % (t0, STG_Q0 * 4096 + 1024 * n))
            tag = self.vm('buffer_load_dwordx4 %s, %s, 0 offen lds' % (po[n], srd(sPS)), ('stg', n))
            for q in range(5):
                self.q_fill(STG_Q0 + q, 'stg', tag)

    def prepass2(self):
        I = self.I
        T = TMP
        fr = T
        bA, bB, x0, x1, one, cs = v(T + 20), v(T + 21), v(T + 22), v(T + 23), T + 24, T + 28
        I('v_lshrrev_b32 %s, 8, %s' % (x0, V['Rd0']))
        I('v_bfe_u32 %s, %s, 6, 2' % (x1, V['Rd0']))
        for i in range(4):
            I('v_mov_b32 %s, 0x3f803f80' % v(one + i))
        I('s_cmp_eq_u32 %s, 1' % sTy)
        I('s_cbranch_scc1 L_p2_w1')
        I('v_lshl_add_u32 %s, %s, 3, %s' % (x0, x0, x1))
        I('v_mul_u32_u24 %s, 160, %s' % (x0, x0))
        I('s_mul_i32 %s, %s, 5' % (t0, sW1k))
        I('s_add_u32 %s, %s, %d' % (t0, t0, STG_Q0 * 4096))
        I('v_add_u32 %s, %s, %s' % (x0, t0, x0))
        I('v_and_b32 %s, 48, %s' % (x1, V['Rd0']))
        I('v_add_u32 %s, %s, %s' % (bA, x0, x1))
        I('v_lshrrev_b32 %s, 1, %s' % (x1, x1))
        I('v_add_u32 %s, %s, %s' % (bB, x0, x1))
        for t in range(5):
            for ab in range(2):
                off = 640 * ab + (64 * (t >> 1) + 8 * (t & 1) if t < 4 else 128)
                I('ds_read_b64_tr_b16 %s, %s offset:%d' % (v(fr + 4 * t + 2 * ab, 2), bA if t < 4 else bB, off))
        I('s_branch L_p2_go')
        I('L_p2_w1:')
        I('v_lshl_add_u32 %s, %s, 3, %s' % (bA, x0, x1))
        I('v_lshl_add_u32 %s, %s, 2, %s' % (bB, x0, x1))
        I('v_and_b32 %s, 48, %s' % (x1, V['Rd0']))
        I('v_lshrrev_b32 %s, 1, %s' % (x1, x1))
        I('s_lshl_b32 %s, %s, 5' % (t0, sW))
        I('s_add_u32 %s, %s, %d' % (t0, t0, STG_Q0 * 4096))
        I('v_add_u32 %s, %s, %s' % (x1, t0, x1))
        I('v_lshl_add_u32 %s, %s, 7, %s' % (bA, bA, x1))
        I('v_lshl_add_u32 %s, %s, 7, %s' % (bB, bB, x1))
        for i in range(5):
            for ab in range(2):
                off = ((80 * (i >> 1) + 32 * (i & 1) + 4 * ab) if i < 4 else (80 * ab + 64)) * 128
                tag = self.lg('ds_read_b64_tr_b16 %s, %s offset:%d' % (v(fr + 4 * i + 2 * ab, 2), bA if i < 4 else bB, off),
                              'stgr')
                for q in range(5):
                    self.q_read(STG_Q0 + q, 'stg', tag)
        I('L_p2_go:')
        for q in range(5):
            self.q_done(STG_Q0 + q)
        self.wait(lg=['stgr'])
        for i in range(5):
            self.vm('buffer_store_dwordx4 %s, %s, %s, %s offen sc1' % (v(fr + 4 * i, 4), V['Rd0'], srd(sWS), sPst[i]), 'pre')
            I('v_mfma_f32_16x16x32_bf16 %s, %s, %s, %s' % (v(cs, 4), v(one, 4), v(fr + 4 * i, 4), v(cs, 4) if i else '0'))
        self.vm('buffer_store_dword %s, %s, %s, 0 offen sc1' % (v(cs), V['Cs'], srd(sWS)), 'pre')

    def small_loads(self, part):
        I = self.I
        T = TMP + 20
        x0, x1, x2, x3 = v(T), v(T + 1), v(T + 2), v(T + 5)
        self.B1L, self.B2L = T + 3, T + 4
        if part == 1:
            I('s_lshr_b32 %s, %s, 2' % (t1, sW1k))
            I('s_add_u32 m0, %s, %d' % (t1, TPHI))
            I('s_mov_b64 s[%d:%d], s[60:61]' % (sPS, sPS + 1))
            I('s_mov_b32 s%d, %d' % (sPS + 2, 1728 * 2))
            self.vm('buffer_load_dword %s, %s, 0 offen lds' % (x2, srd(sT2)), 'phi')
            self.vm('buffer_load_dword %s, %s, 0 offen offset:1024 lds' % (x2, srd(sT2)), 'phi')
            self.vm('buffer_load_ushort %s, %s, %s, 0 offen' % (v(self.B1L), x3, srd(sPS)), 'bias')
            I('s_mov_b64 s[%d:%d], s[64:65]' % (sT2, sT2 + 1))
            I('s_mov_b32 s%d, %d' % (sT2 + 2, 640 * 2))
            self.vm('buffer_load_ushort %s, %s, %s, 0 offen' % (v(self.B2L), x0, srd(sT2)), 'bias')
            return
        I('s_mov_b64 s[%d:%d], s[52:53]' % (sT2, sT2 + 1))
        I('s_mov_b32 s%d, %d' % (sT2 + 2, 32 * 800))
        I('s_mov_b32 s%d, 0x20000' % (sT2 + 3))
        I('s_mul_i32 %s, %s, 1600' % (t0, sJ))
        I('v_lshl_add_u32 %s, v0, 2, %s' % (x2, t0))
        I('s_mul_i32 %s, %s, 96' % (t0, sJ))
        I('s_lshl_b32 %s, %s, 4' % (t1, sJ))
        I('s_add_u32 %s, %s, %d' % (t1, t1, 1536 - 96))
        I('v_add_u32 %s, %s, v0' % (x0, t0))
        I('v_add_u32 %s, %s, v0' % (x1, t1))
        I('v_cmp_gt_u32 vcc, 96, v0')
        I('v_cndmask_b32 %s, %s, %s, vcc' % (x0, x1, x0))
        I('v_lshlrev_b32 v1, 4, %s' % x0)
        I('v_lshlrev_b32 %s, 1, %s' % (x3, x0))
        I('v_bfe_u32 %s, v0, 2, 2' % x0)
        I('v_lshlrev_b32 %s, 3, %s' % (x0, x0))
        I('v_bfe_u32 %s, v0, 4, 1' % x1)
        I('v_lshl_add_u32 %s, %s, 2, %s' % (x0, x1, x0))
        I('v_and_b32 %s, 0x23, v0' % x1)
        I('v_add_u32 %s, %s, %s' % (x0, x0, x1))
        I('v_cmp_gt_u32 vcc, 64, v0')
        I('v_cndmask_b32 %s, v0, %s, vcc' % (x0, x0))
        I('s_mul_i32 %s, %s, 80' % (t0, sC))
        I('v_add_lshl_u32 %s, %s, %s, 1' % (x0, x0, t0))

    def addresses(self, part):
        I = self.I
        lane, g, tok = self.lane, self.g, self.tok
        T = TMP + 3
        x0, x1, x2, x3 = v(T), v(T + 1), v(T + 2), v(T + 3)
        if part == 1:
            for i in range(1, 16):
                I('s_mov_b32 %s, %d' % (sK4(i), 4096 * i))
            I('s_mov_b32 %s, %d' % (sH54, 54 * 1024))
            for b in (sST, sTC):
                I('s_mov_b64 s[%d:%d], s[%d:%d]' % (b, b + 1, sLD, sLD + 1))
                I('s_mov_b32 s%d, 0x%x' % (b + 2, ARENA))
                I('s_mov_b32 s%d, 0x20000' % (b + 3))
            I('s_mov_b32 %s, 0' % sStep)
            I('s_mov_b32 %s, 0' % sLayer)
            I('s_mov_b32 %s, 0' % sSlow)
            I('s_mov_b32 %s, 0x%x' % (sTO, self.cfg.get('timeout', 0x20000)))
            I('s_lshl_b32 %s, %s, 2' % (t4, sRb))
            I('s_add_u32 %s, %s, %s' % (t4, t4, sW))
            I('s_lshr_b32 %s, %s, 1' % (t5, t3))
            I('s_and_b32 %s, %s, 1' % (t6, t2))
            I('s_lshl_b32 %s, %s, 2' % (sKVFp, sRb))
            I('s_mul_i32 %s, %s, %d' % (t4, t4, TGS))
            I('s_add_u32 %s, %s, 0x%x' % (t4, t4, PAD))
            I('s_mul_i32 %s, %s, %d' % (t5, t5, TGS))
            I('s_add_u32 %s, %s, 0x%x' % (t5, t5, PAD))
            I('v_add_u32 %s, %s, %s' % (V['A1'], t4, V['Rd0']))
            I('s_mul_i32 %s, %s, 20480' % (t0, t6))
            I('s_add_u32 %s, %s, %s' % (t0, t0, t5))
            I('s_add_u32 %s, %s, 0x%x' % (t0, t0, BE))
            I('v_add_u32 %s, %s, %s' % (V['A2'], t0, V['Rd0']))
            I('s_mul_i32 %s, %s, %d' % (t0, t6, 54 * 1024))
            I('s_add_u32 %s, %s, %s' % (t0, t0, t5))
            I('s_add_u32 %s, %s, 0x%x' % (t0, t0, BE))
            I('v_add_u32 %s, %s, %s' % (V['A4'], t0, V['Rd0']))
            I('s_mov_b32 %s, %s' % (t0, t5))
            I('s_mul_i32 %s, %s, %d' % (t1, sC, 5120))
            I('s_add_u32 %s, %s, %s' % (t1, t1, t0))
            I('s_lshl_b32 s3, %s, 8' % t6)
            I('s_add_u32 %s, %s, s3' % (t1, t1))
            I('v_lshl_add_u32 %s, %s, 4, %s' % (x0, tok, t1))
            I('v_lshl_add_u32 %s, %s, 9, %s' % (V['SX1'], g, x0))
            I('v_lshrrev_b32 %s, 1, %s' % (x1, g))
            I('v_lshl_add_u32 %s, %s, 9, %s' % (x0, x1, x0))
            I('v_and_b32 %s, 1, %s' % (x2, g))
            I('v_lshl_add_u32 %s, %s, 3, %s' % (x0, x2, x0))
            I('v_add_u32 %s, 4096, %s' % (V['SX3'], x0))
            I('s_lshr_b32 %s, %s, 1' % (t1, sC))
            I('s_mul_i32 %s, %s, 10' % (t1, t1))
            I('s_add_u32 %s, %s, %s' % (t1, t1, t6))
            I('s_lshl_b32 %s, %s, 10' % (t1, t1))
            I('s_add_u32 %s, %s, %s' % (t0, t0, t1))
            I('s_and_b32 %s, %s, 1' % (t1, sC))
            I('s_lshl_b32 s3, %s, 12' % t1)
            I('s_add_u32 s3, s3, %s' % t0)
            I('v_add_u32 %s, s3, %s' % (V['S11'], V['Rd0']))
            I('s_lshl_b32 s3, %s, 3' % t1)
            I('s_add_u32 s3, s3, %s' % t0)
            I('s_add_u32 s3, s3, 8192')
            I('v_add_u32 %s, s3, %s' % (V['S13'], V['Rd0']))
            I('s_lshl_b32 s3, %s, 3' % t1)
            I('s_add_u32 %s, %s, s3' % (t0, t5))
            I('s_lshr_b32 s3, %s, 1' % sC)
            I('s_lshl_b32 s3, s3, 9')
            I('s_add_u32 %s, %s, s3' % (t0, t0))
            I('s_lshl_b32 s3, %s, 8' % t6)
            I('s_add_u32 %s, %s, s3' % (t0, t0))
            I('s_add_u32 %s, %s, 0x%x' % (t0, t0, ST))
            I('v_lshl_add_u32 %s, %s, 4, %s' % (x0, tok, t0))
            I('v_lshl_add_u32 %s, %s, 2, %s' % (V['SSt'], x1, x0))
            I('s_add_u32 %s, %s, 0x%x' % (t0, t4, ST))
            I('v_add_u32 %s, %s, %s' % (V['LSt1'], t0, V['Rd0']))
            I('v_lshl_add_u32 %s, %s, 4, %s' % (x0, tok, t0))
            I('v_lshl_add_u32 %s, %s, 9, %s' % (V['LSt3'], g, x0))
            I('s_add_u32 %s, %s, 0x%x' % (sFl32, t4, FL))
            I('s_add_u32 %s, %s, 0x%x' % (sFl16, t5, FL))
            I('s_lshl_b32 s3, %s, 3' % t6)
            I('s_add_u32 s3, s3, %s' % sC)
            I('s_lshl_b32 s3, s3, 2')
            I('s_add_u32 %s, %s, s3' % (sFlP16, sFl16))
            I('s_lshl_b32 s3, %s, 2' % sJ)
            I('s_add_u32 %s, %s, s3' % (sFlP32, sFl32))
            I('v_lshlrev_b32 %s, 2, %s' % (V['Fl'], tok))
            I('v_lshlrev_b32 %s, 2, %s' % (V['KFl'], lane))
            I('s_lshl_b32 %s, %s, 7' % (sKVFc, sJ))
            I('s_add_u32 %s, %s, 0x%x' % (sKVFc, sKVFc, KVF))
            I('s_add_u32 %s, %s, %s' % (sKVFp, sKVFp, sKVFc))
            I('s_lshl_b32 %s, s2, 2' % sPreP)
            I('s_add_u32 %s, %s, 0x%x' % (sPreP, sPreP, PREF))
            self.force_wait('lgkmcnt(0)')
            I('s_add_u32 %s, %s, 0x9e377900' % (sTagG, sTagG))
            I('s_and_b32 %s, %s, 0xffffff00' % (sTagG, sTagG))
            I('s_getreg_b32 s3, hwreg(HW_REG_XCC_ID)')
            I('s_and_b32 s3, s3, 15')
            I('s_or_b32 s3, s3, 16')
            I('s_or_b32 %s, %s, s3' % (sTagL, sTagG))
            I('v_mov_b32 %s, %s' % (V['TagG'], sTagG))
            I('v_mov_b32 %s, %s' % (V['TagL'], sTagL))
            return
        I('v_add_u32 %s, 0x10000, %s' % (V['Rd1'], V['Rd0']))
        I('v_add_u32 %s, 0x20000, %s' % (V['Rd2'], V['Rd0']))
        I('v_lshrrev_b32 %s, 5, %s' % (x0, lane))
        I('v_lshlrev_b32 %s, 11, %s' % (x0, x0))
        I('v_bfe_u32 %s, %s, 2, 2' % (x1, lane))
        I('v_lshl_add_u32 %s, %s, 6, %s' % (x0, x1, x0))
        I('v_and_b32 %s, 1, %s' % (x1, lane))
        I('v_lshl_add_u32 %s, %s, 5, %s' % (x2, x1, x0))
        I('v_and_b32 %s, 16, %s' % (x1, lane))
        I('v_add_u32 %s, %s, %s' % (x2, x2, x1))
        I('v_lshl_add_u32 %s, %s, 1, %s' % (x0, x1, x0))
        I('v_and_b32 %s, 2, %s' % (x1, lane))
        I('v_lshl_add_u32 %s, %s, 2, %s' % (V['TrA0'], x1, x2))
        I('v_and_b32 %s, 3, %s' % (x1, lane))
        I('v_lshl_add_u32 %s, %s, 3, %s' % (V['TrB0'], x1, x0))
        for k in 'AB':
            I('v_add_u32 %s, 0x10000, %s' % (V['Tr%s1' % k], V['Tr%s0' % k]))
            I('v_add_u32 %s, 0x20000, %s' % (V['Tr%s2' % k], V['Tr%s0' % k]))
        I('v_lshrrev_b32 %s, 1, %s' % (x1, g))
        I('v_and_b32 %s, 1, %s' % (x2, g))
        I('s_lshr_b32 %s, %s, 2' % (t1, sJ))
        I('s_mul_i32 %s, %s, 5120' % (t1, t1))
        I('s_add_u32 %s, %s, %s' % (t0, t4, t1))
        I('s_add_u32 %s, %s, 0x%x' % (t0, t0, BE))
        I('s_and_b32 %s, %s, 3' % (t1, sJ))
        I('v_mul_u32_u24 %s, 20480, %s' % (x0, x2))
        I('v_lshl_add_u32 %s, %s, 4, %s' % (x0, tok, x0))
        I('s_lshl_b32 s3, %s, 10' % t1)
        I('s_add_u32 s3, s3, %s' % t0)
        I('v_add_u32 %s, s3, %s' % (x3, x0))
        I('v_lshl_add_u32 %s, %s, 8, %s' % (V['SO1'], x1, x3))
        I('s_lshl_b32 s3, %s, 8' % t1)
        I('s_add_u32 s3, s3, %s' % t0)
        I('s_add_u32 s3, s3, 4096')
        I('v_add_u32 %s, s3, %s' % (x3, x0))
        I('v_mov_b32 %s, 0x%x' % (V['SO2'], OOB))
        I('v_cmp_gt_u32 vcc, 32, %s' % lane)
        I('v_cndmask_b32 %s, %s, %s, vcc' % (V['SO2'], V['SO2'], x3))
        I('s_add_u32 %s, %s, 0x%x' % (t0, t4, BE))
        I('s_mul_i32 s3, %s, 3072' % sJ)
        I('s_add_u32 s3, s3, %s' % t0)
        I('v_add_u32 %s, s3, %s' % (V['SH1'], V['Rd0']))
        I('s_lshr_b32 s3, %s, 1' % sJ)
        I('s_add_u32 s3, s3, 48')
        I('s_lshl_b32 s3, s3, 10')
        I('s_add_u32 %s, %s, s3' % (t0, t0))
        I('s_and_b32 s3, %s, 1' % sJ)
        I('s_lshl_b32 s3, s3, 3')
        I('s_add_u32 %s, %s, s3' % (t0, t0))
        I('s_cmp_ge_u32 %s, 12' % sJ)
        I('s_cselect_b32 %s, 0x40000000, %s' % (t0, t0))
        I('v_add_u32 %s, %s, %s' % (V['SH2'], t0, V['Rd0']))
        I('s_mul_i32 %s, %s, %d' % (sOb, sC, 100 * 1024))
        I('s_add_u32 %s, %s, 0x%x' % (sOb, sOb, WOT - slotO(0) * 4096))
        I('s_mul_i32 %s, %s, %d' % (sF1b, sJ, 140 * 1024))
        I('s_add_u32 %s, %s, 0x%x' % (sF1b, sF1b, W1T - slotF1(0) * 4096))
        I('s_mul_i32 %s, %s, %d' % (sF2b, sC, 272 * 1024))
        I('s_add_u32 %s, %s, 0x%x' % (sF2b, sF2b, W2T - slotF2(0) * 4096))
        I('s_lshl_b32 %s, %s, 16' % (t0, sJ))
        I('s_add_u32 %s, %s, 0x%x' % (t0, t0, KVP))
        I('v_lshl_add_u32 %s, v0, 4, %s' % (x0, t0))
        I('v_mov_b32 %s, 0x40000000' % V['KG'])
        I('v_cmp_gt_u32 vcc, 240, v0')
        I('v_cndmask_b32 %s, %s, %s, vcc' % (V['KG'], V['KG'], x0))
        I('s_lshl_b32 s3, %s, 12' % sRb)
        I('s_add_u32 %s, %s, s3' % (t0, t0))
        I('s_lshr_b32 %s, %s, 1' % (t5, sW))
        I('s_and_b32 %s, %s, 1' % (t6, sW))
        I('s_mul_i32 s3, %s, 1920' % t5)
        I('s_add_u32 %s, %s, s3' % (t0, t0))
        I('s_lshl_b32 s3, %s, 4' % t6)
        I('v_add_u32 %s, s3, %s' % (x0, tok))
        I('v_cmp_gt_u32 vcc, 24, %s' % x0)
        I('v_lshl_add_u32 %s, %s, 4, %s' % (x0, x0, t0))
        I('v_mov_b32 %s, 0x40000000' % x3)
        I('v_cndmask_b32 %s, %s, %s, vcc' % (x0, x3, x0))
        I('v_mul_u32_u24 %s, 384, %s' % (V['KS1'], g))
        I('v_add_u32 %s, %s, %s' % (V['KS1'], V['KS1'], x0))
        I('v_lshl_add_u32 %s, %s, 3, %s' % (x0, g, x0))
        I('v_add_u32 %s, 1536, %s' % (x0, x0))
        I('v_cmp_gt_u32 vcc, 32, %s' % lane)
        I('v_cndmask_b32 %s, %s, %s, vcc' % (V['KS2'], x3, x0))
        I('v_lshlrev_b32 %s, 4, v0' % V['KW'])
        I('v_add_u32 %s, %d, %s' % (V['KW'], KS_Q * 4096, V['KW']))
        I('v_and_b32 %s, 31, %s' % (x0, lane))
        I('v_lshlrev_b32 %s, 7, %s' % (x0, x0))
        I('v_lshl_add_u32 %s, %s, 14, %s' % (x0, x1, x0))
        I('v_and_b32 %s, 7, %s' % (x3, lane))
        I('v_lshl_add_u32 %s, %s, 4, %s' % (x0, x3, x0))
        I('s_lshl_b32 s3, %s, 12' % sW)
        I('s_add_u32 s3, s3, %d' % (T_Q0 * 4096))
        I('v_add_u32 %s, s3, %s' % (V['TW'], x0))
        I('v_bfe_u32 %s, %s, 2, 3' % (x0, lane))
        I('v_lshl_add_u32 %s, %s, 4, %s' % (x3, x1, x0))
        I('v_lshlrev_b32 %s, 7, %s' % (x3, x3))
        I('s_lshl_b32 s3, %s, 14' % t5)
        I('s_add_u32 s3, s3, %d' % (T_Q0 * 4096))
        I('v_add_u32 %s, s3, %s' % (x3, x3))
        I('v_and_b32 %s, 1, %s' % (x2, lane))
        I('v_lshl_add_u32 %s, %s, 3, %s' % (x3, x2, x3))
        I('v_bfe_u32 %s, %s, 1, 1' % (x2, lane))
        I('v_xor_b32 %s, %s, %s' % (V['KA'], x2, x0))
        I('v_lshl_add_u32 %s, %s, 4, %s' % (V['KA'], V['KA'], x3))
        I('v_add_u32 %s, 5, %s' % (x2, x2))
        I('s_cmp_eq_u32 %s, 1' % t6)
        I('s_cselect_b64 vcc, -1, 0')
        I('v_cndmask_b32 %s, %s, 7, vcc' % (x2, x2))
        I('v_xor_b32 %s, %s, %s' % (x2, x2, x0))
        I('v_lshl_add_u32 %s, %s, 4, %s' % (V['KB'], x2, x3))
        I('v_bfe_u32 %s, %s, 3, 2' % (x0, lane))
        I('v_bfe_u32 %s, %s, 2, 1' % (x2, lane))
        I('v_cmp_gt_u32 vcc, 2, %s' % x0)
        I('v_cndmask_b32 %s, 1, %s, vcc' % (x2, x2))
        I('v_lshlrev_b32 %s, 3, %s' % (x2, x2))
        I('v_lshl_add_u32 %s, %s, 2, %s' % (x2, x0, x2))
        I('v_and_b32 %s, 3, %s' % (x0, lane))
        I('v_add_u32 %s, %s, %s' % (x2, x2, x0))
        I('v_mul_u32_u24 %s, 24, %s' % (x0, x1))
        I('v_add_lshl_u32 %s, %s, %s, 4' % (x0, x0, x2))
        I('v_add_u32 %s, %d, %s' % (V['R1'], KS_Q * 4096, x0))
        I('v_cmp_gt_u32 vcc, 32, %s' % lane)
        I('v_cndmask_b32 %s, 21, %s, vcc' % (x0, x2))
        I('v_cndmask_b32 %s, %s, 21, vcc' % (x3, x2))
        I('v_lshlrev_b32 %s, 4, %s' % (x0, x0))
        I('v_lshlrev_b32 %s, 4, %s' % (x3, x3))
        I('v_add_u32 %s, %d, %s' % (V['R20'], KS_Q * 4096 + 1536, x0))
        I('v_add_u32 %s, %d, %s' % (V['R21'], KS_Q * 4096 + 1536 + 1920, x3))
        I('v_lshlrev_b32 %s, 4, %s' % (x0, x1))
        I('v_add_u32 %s, %d, %s' % (V['Tb1'], PA, x0))
        I('v_lshlrev_b32 %s, 4, %s' % (x0, g))
        I('v_add_u32 %s, %d, %s' % (V['Tb4'], PA, x0))
        I('s_and_b32 %s, %s, 1' % (t0, sRb))
        I('s_lshr_b32 %s, %s, 3' % (t1, sJ))
        I('s_lshl_b32 s3, %s, 1' % t0)
        I('s_add_u32 %s, %s, s3' % (t1, t1))
        I('s_mov_b32 %s, %s' % (sQb, sQoff))
        for st, r, base, wa, nA, steps, av in (('Q', t0, sQoff, 'P1b', 1, 40, None), ('F1', t0, sF1b, None, 2, 20, None),
                                               ('O', t1, sOb, 'P2', 1, 20, 'A2'), ('F2', t1, sF2b, 'P4', 1, 54, 'A4')):
            pk = 0
            for i, x in enumerate(self.rot[st]):
                pk |= x << (8 * i)
            I('s_lshl_b32 s3, %s, 3' % r)
            I('s_lshr_b32 s3, 0x%x, s3' % pk)
            I('s_and_b32 s3, s3, 0xff')
            if wa:
                I('s_sub_u32 %s, %d, s3' % (sWa[wa], steps * nA))
            if av:
                I('s_lshl_b32 %s, s3, 10' % t5)
                I('v_add_u32 %s, %s, %s' % (V[av], t5, V[av]))
            I('s_mul_i32 s3, s3, %d' % PPS[st])
            I('s_lshl_b32 %s, s3, 10' % t5)
            I('s_add_u32 %s, %s, %s' % (base, base, t5))
            I('s_add_u32 s3, s3, %s' % sW)
            I('s_sub_u32 s3, %d, s3' % (NPIECE[st] + 3))
            I('s_lshr_b32 %s, s3, 2' % sWr[st])

    def stats(self):
        I = self.I
        T = TMP + 28
        I('v_pk_add_f32 %s, %s, %s' % (v(T, 2), v(RES, 2), v(RES + 2, 2)))
        I('v_pk_mul_f32 %s, %s, %s' % (v(T + 2, 2), v(RES, 2), v(RES, 2)))
        for i in range(1, 10):
            if i > 1:
                I('v_pk_add_f32 %s, %s, %s' % (v(T, 2), v(T, 2), v(RES + 2 * i, 2)))
            I('v_pk_fma_f32 %s, %s, %s, %s' % (v(T + 2, 2), v(RES + 2 * i, 2), v(RES + 2 * i, 2), v(T + 2, 2)))
        I('v_add_f32 %s, %s, %s' % (v(T), v(T), v(T + 1)))
        I('v_add_f32 %s, %s, %s' % (v(T + 2), v(T + 2), v(T + 3)))
        I('v_permlane32_swap_b32 %s, %s' % (v(T), v(T + 2)))
        I('v_add_f32 %s, %s, %s' % (v(T), v(T), v(T + 2)))
        I('v_mov_b32 %s, %s' % (v(T + 2), v(T)))
        I('v_permlane16_swap_b32 %s, %s' % (v(T), v(T + 2)))
        I('v_add_f32 %s, %s, %s' % (v(T + 2), v(T), v(T + 2)))

    def pack_res(self, P):
        for i in range(10):
            self.I('v_cvt_pk_bf16_f32 %s, %s, %s' % (v(P + i), v(RES + 2 * i), v(RES + 2 * i + 1)))

    def publish_x(self, P, which, first=False, burst=(0, 0)):
        a1, a3 = (V['SX1'], V['SX3']) if which == 'XA' else (V['S11'], V['S13'])
        put = (lambda L: [self.vm(x + ' sc1') for x in L]) if first else self.dual
        tags = put([
            'buffer_store_dwordx4 %s, %s, %s, 0 offen' % (v(P, 4), a1, srd(sST)),
            'buffer_store_dwordx4 %s, %s, %s, 0 offen offset:2048' % (v(P + 4, 4), a1, srd(sST)),
            'buffer_store_dwordx2 %s, %s, %s, 0 offen' % (v(P + 8, 2), a3, srd(sST))])
        self.stats()
        tags += put(['buffer_store_dword %s, %s, %s, 0 offen' % (v(TMP + 30), V['SSt'], srd(sST))])
        if first:
            return tags
        self.bg_burst(burst[0])
        self.wait(vm=tags)
        self.flag_local(sFlP16, F_X)
        self.bg_burst(burst[1])

    def p0(self):
        I = self.I
        XL = self.XL
        self.wait(vm=['x'])
        for i in range(10):
            I('v_lshlrev_b32 %s, 16, %s' % (v(RES + 2 * i), v(XL + i)))
            I('v_and_b32 %s, 0xffff0000, %s' % (v(RES + 2 * i + 1), v(XL + i)))
        tags = self.publish_x(XL, 'XA', first=True)
        self.stamp(20)
        early = self.cfg.get('pp_early', 0)
        if early:
            self.prepass1_issue()
            self.small_loads(1)
        I('s_sub_u32 %s, %s, 0x%x' % (t0, sKVFp, KVF - QF))
        I('s_lshl_b32 %s, %s, 5' % (t1, sRb))
        I('s_add_u32 %s, %s, %s' % (t1, t1, sJ))
        I('s_lshl_b32 %s, %s, 2' % (t1, t1))
        I('s_add_u32 %s, %s, 0x%x' % (t1, t1, XF))
        self.wait(vm=tags)
        self.barrier()
        self.one_wave_store(sW, 'buffer_store_dword %s, off, %s, %s sc1\nbuffer_store_dword %s, off, %s, %s sc1' %
                            (V['TagG'], srd(sWS), t0, V['TagL'], srd(sWS), t1))
        self.stamp(21)
        if not early:
            self.prepass1_issue()
            self.small_loads(1)
        I('s_mov_b64 s[%d:%d], s[66:67]' % (sXO, sXO + 1))
        self.addresses(2)
        self.stream_reset('Q')
        self.stamp(22)
        A_, B_, C_ = v(TMP + 32), v(TMP + 33), v(TMP + 34)
        I('s_lshl_b32 %s, %s, 7' % (t1, sRb))
        I('s_add_u32 %s, %s, 0x%x' % (t1, t1, XF))
        I('s_sub_u32 %s, %s, 0x%x' % (t0, sKVFc, KVF - QF))
        I('v_add_u32 %s, %s, %s' % (A_, t0, V['Fl']))
        I('v_add_u32 %s, %s, %s' % (B_, t1, V['Fl']))
        I('v_cmp_gt_u32 vcc, 0x200, %s' % V['Rd0'])
        I('v_cndmask_b32 %s, %s, %s, vcc' % (A_, A_, B_))
        I('v_cndmask_b32 %s, %s, %s, vcc' % (C_, V['TagG'], V['TagL']))
        I('L_p0_poll:')
        I('buffer_load_dword %s, %s, %s, 0 offen sc1' % (B_, A_, srd(sWS)))
        I('s_sub_u32 %s, %s, 1' % (sTO, sTO))
        I('s_cbranch_scc1 L_end')
        self.force_wait('vmcnt(0)')
        I('v_xor_b32 %s, %s, %s' % (B_, C_, B_))
        I('v_cmp_lt_u32 vcc, 15, %s' % B_)
        I('s_cbranch_vccnz L_p0_poll')
        I('v_cmp_ne_u32 vcc, 0, %s' % B_)
        I('s_cbranch_vccz L_p0_ok')
        I('s_mov_b32 %s, 1' % sSlow)
        I('s_mov_b32 %s, %s' % (sTagL, sTagG))
        I('v_mov_b32 %s, %s' % (V['TagL'], sTagG))
        I('s_mov_b32 %s, 0x%x' % (sStep, ARENA))
        I('s_add_u32 s%d, s%d, 0x%x' % (sST, sST, ARENA))
        I('s_addc_u32 s%d, s%d, 0' % (sST + 1, sST + 1))
        I('s_mov_b32 s%d, 0' % (sTC + 2))
        I('L_p0_ok:')

    def build_phi(self):
        I = self.I
        T = TMP
        x0, x1, x2, b0, b1, msk = v(T + 24), v(T + 25), v(T + 26), v(T + 27), v(T + 28), v(T + 29)
        R = V['Rd0']
        I('v_bfe_u32 %s, %s, 4, 1' % (x0, R))
        I('v_bfe_u32 %s, %s, 6, 2' % (x1, R))
        I('v_mul_u32_u24 %s, 40, %s' % (x1, x1))
        I('v_bfe_u32 %s, %s, 5, 1' % (x2, R))
        I('v_lshl_add_u32 %s, %s, 3, %s' % (x1, x2, x1))
        I('v_bfe_u32 %s, %s, 8, 1' % (x2, R))
        I('v_lshl_add_u32 %s, %s, 4, %s' % (x1, x2, x1))
        I('v_add_u32 %s, %d, %s' % (x1, TPHI, x1))
        I('v_mul_u32_u24 %s, 960, %s' % (x2, x0))
        I('v_add_u32 %s, %s, %s' % (b0, x1, x2))
        I('v_mul_u32_u24 %s, 160, %s' % (x2, x0))
        I('v_add_u32 %s, %s, %s' % (b1, x1, x2))
        I('v_bfe_u32 %s, %s, 6, 1' % (x0, R))
        I('v_lshrrev_b32 %s, 9, %s' % (x2, R))
        I('v_cmp_eq_u32 vcc, %s, %s' % (x0, x2))
        I('v_cndmask_b32 %s, 0, -1, vcc' % msk)
        for Tt in range(2):
            for sq in range(5):
                self.lg('ds_read_b64_tr_b16 %s, %s offset:%d' %
                        (v(T + 12 * Tt + 2 * sq, 2), b0 if sq < 4 else b1, 160 * sq + 32 * Tt), 'phir')
        self.wait(lg=['phir'])
        for Tt in range(2):
            for i in range(12):
                if i < 10:
                    I('v_and_b32 %s, %s, %s' % (v(T + 12 * Tt + i), msk, v(T + 12 * Tt + i)))
                    I('v_accvgpr_write_b32 %s, %s' % (a(aPHI + 12 * Tt + i), v(T + 12 * Tt + i)))
                else:
                    I('v_accvgpr_write_b32 %s, 0' % a(aPHI + 12 * Tt + i))

    def p1(self, first):
        I = self.I
        cfg = self.cfg
        name = 'P1a' if first else 'P1b'
        SL = TMP + 44
        CF, SEL, CA, CB = TMP + 32, TMP + 36, TMP + 40, v(TMP + 52)

        def mf(s, f, r):
            c = v(ACC + 16 * f, 16)
            return ['v_mfma_f32_32x32x16_bf16 %s, %s, %s, %s' % (c, v(r, 4), a(4 * s, 4), c if s else '0')]

        hooks = {}

        def h_start():
            self.vm('buffer_load_dwordx4 %s, %s, %s, 0 offen sc1' % (v(SL, 4), V['LSt1'], srd(sLD)), 'st1')
            self.vm('buffer_load_dwordx4 %s, %s, %s, 0 offen offset:1024 sc1' % (v(SL + 4, 4), V['LSt1'], srd(sLD)), 'st1')
            if first:
                self.wait(lg_all=True)
                I('v_bfe_u32 %s, %s, 8, 1' % (v(SEL), V['Rd0']))
                I('v_bfe_u32 %s, %s, 6, 1' % (v(SEL + 1), V['Rd0']))
                I('v_cmp_eq_u32 vcc, %s, %s' % (v(SEL), v(SEL + 1)))
                I('v_mov_b32 %s, 0x3f803f80' % v(SEL + 1))
                I('v_cndmask_b32 %s, 0, %s, vcc' % (v(SEL), v(SEL + 1)))
                for i in range(1, 4):
                    I('v_mov_b32 %s, %s' % (v(SEL + i), v(SEL)))
                I('s_cmp_eq_u32 %s, 3' % sW)
                I('s_cselect_b64 vcc, -1, 0')
                I('v_cndmask_b32 %s, %s, %s, vcc' % (CB, V['TrA0'], V['TrB0']))
                I('s_lshr_b32 %s, %s, 2' % (t0, sW1k))
                I('v_add_u32 %s, %s, %s' % (CB, t0, CB))
        hooks[-1] = h_start
        if first:
            seg = [0]
            PL = TMP
            s_p2, s_phi, s_pf, s_ld = cfg.get('pre_steps', [2, 6, 13, 35])
            h_steps = cfg.get('h_steps', [])
            htouch = self.touches('O', always=True) + [('T', 'buffer_load_dword %s, %s, %s, %s offen sc1' %
                                                        (a(255), V['Fl'], srd(sTC), sFl32), 0)]
            if cfg.get('h_first', 0):
                htouch += self.touches('H', always=True)

            def cs_hook(s):
                def fn():
                    if s == 1:
                        I('v_lshlrev_b32 %s, 16, %s' % (v(TMP + 4), v(self.B1L)))
                        I('v_lshlrev_b32 %s, 16, %s' % (v(TMP + 5), v(self.B2L)))
                        I('v_min_u32 %s, 127, v0' % v(TMP + 6))
                        I('v_lshlrev_b32 %s, 2, %s' % (v(TMP + 6), v(TMP + 6)))
                        I('v_add_u32 %s, %d, %s' % (v(TMP + 6), PA, v(TMP + 6)))
                        self.lg('ds_write_b32 %s, %s offset:%d' % (v(TMP + 6), v(TMP + 4), TB1 - PA), 'tbw')
                        self.lg('ds_write_b32 %s, %s offset:%d' % (v(TMP + 6), v(TMP + 5), TB2 - PA), 'tbw')
                    if s == s_p2:
                        self.wait(lg=['tbw'])
                        self.prepass2()
                        self.pre_bar = False
                    if s == s_phi:
                        self.build_phi()
                    for _ in range(h_steps.count(s)):
                        self.vm(htouch.pop(0)[1])
                    if s == s_pf:
                        assert self.pre_bar
                        self.one_wave_store(sW, 'buffer_store_dword %s, off, %s, %s sc1' % (V['TagG'], srd(sWS), sPreP))
                    if s == s_ld:
                        I('s_mov_b32 %s, 0x%x' % (t1, PREF))
                        I('s_cmp_eq_u32 %s, 1' % sW)
                        I('s_cbranch_scc0 L_pre_nl')
                        I('buffer_load_dwordx4 %s, %s, %s, %s offen sc1' % (v(PL, 4), V['Rd0'], srd(sWS), t1))
                        I('L_pre_nl:')
                    if s > 0:
                        self.wait(lg=[('cs', s - 1)])
                        I('v_mfma_f32_16x16x32_bf16 %s, %s, %s, %s' %
                          (v(CA, 4), v(SEL, 4), v(CF, 4), v(CA, 4) if s > 1 else '0'))
                    if s < 40:
                        byte = slotQ(s) * 4096
                        if byte >> 16 != seg[0]:
                            I('v_add_u32 %s, 0x%x, %s' % (CB, (((byte >> 16) - seg[0]) << 16) & 0xffffffff, CB))
                            seg[0] = byte >> 16
                        for ab in range(2):
                            tag = self.lg('ds_read_b64_tr_b16 %s, %s offset:%d' %
                                          (v(CF + 2 * ab, 2), CB, (byte & 0xffff) + 1024 * ab), ('cs', s))
                            self.q_read(slotQ(s), ('Q', s), tag)
                        self.q_done(slotQ(s))
                return fn
            for s in range(40):
                hooks[s] = cs_hook(s)
            self.bgq = [('Q', n, cfg.get('p1a_gap', 100)) for n in range(40)]
            hooks[-2] = lambda: self.bg_burst(cfg.get('p1a_q0', 3))
            h0 = hooks[-1]
            hooks[-1] = lambda: (h0(), self.bg_burst(cfg.get('p1a_q1', 5)))
            bars = cfg.get('p1a_bars', [0, 2, 4, 7, 10, 13, 16, 20, 24, 28, 32, 36])
        else:
            self.bgq = [(a_, b_, cfg.get('p1b_gap', 96)) for a_, b_, c_ in self.bgq]
            bars = cfg.get('p1b_bars', [0, 8, 16, 24, 32])
        self.bgq += self.touches('O')
        self.gemm(name, 40, 4, 'Q', lambda i: 4 * i, V['A1'], 1, mf, L=5, we=2, bars=bars,
                  a0=cfg.get('p1a_a0' if first else 'p1b_a0', 4), arate=cfg.get('p1a_arate' if first else 'p1b_arate', 1.5),
                  hooks=hooks, tr=True, jobstart=0 if first else cfg.get('p1b_js', 0))
        assert not self.bgq, self.bgq
        self.wait(vm_all=True)
        if first:
            I('s_cmp_eq_u32 %s, 1' % sW)
            I('s_cbranch_scc0 L_pre_ok')
            I('s_branch L_pre_ck')
            I('L_pre_again:')
            I('s_sleep 8')
            I('buffer_load_dwordx4 %s, %s, %s, %s offen sc1' % (v(PL, 4), V['Rd0'], srd(sWS), t1))
            I('s_sub_u32 %s, %s, 1' % (sTO, sTO))
            I('s_cbranch_scc1 L_end')
            I('L_pre_ck:')
            I('s_waitcnt vmcnt(0)')
            for i in range(4):
                I('v_xor_b32 %s, %s, %s' % (v(PL + i), sTagG, v(PL + i)))
            I('v_or3_b32 %s, %s, %s, %s' % (v(PL), v(PL), v(PL + 1), v(PL + 2)))
            I('v_or_b32 %s, %s, %s' % (v(PL), v(PL), v(PL + 3)))
            I('v_cmp_ne_u32 vcc, 0, %s' % v(PL))
            I('s_cbranch_vccnz L_pre_again')
            I('L_pre_ok:')
            for x in htouch:
                I(x[1])
            cs_hook(40)()
            I('v_and_b32 %s, 0x7c, %s' % (v(CF), V['KFl']))
            I('s_lshr_b32 %s, %s, 3' % (t0, sW1k))
            I('s_add_u32 %s, %s, %d' % (t0, t0, TCS1))
            I('v_add_u32 %s, %s, %s' % (v(CF), t0, v(CF)))
            self.lg('ds_write_b32 %s, %s' % (v(CF), v(CA)))
            I('s_mov_b32 %s, %s' % (sQb, sQoff))
            if self.rot['Q'][1]:
                I('s_and_b32 %s, %s, 1' % (t0, sRb))
                I('s_mul_i32 %s, %s, 20480' % (t0, t0))
                I('v_add_u32 %s, %s, %s' % (V['A1'], t0, V['A1']))
            self.q_rot = True
        self.wait(lg_all=True)
        self.barrier()

    def barrier(self):
        super().barrier()
        self.pre_bar = 'pre' not in self.vmq

    def ln_coeffs(self, S, n):
        I = self.I
        x = v(n)
        I('v_mul_f32 %s, 0x%x, %s' % (v(S), 0x3acccccd, v(S)))
        I('v_mul_f32 %s, %s, %s' % (x, v(S), v(S)))
        I('v_mul_f32 %s, 0x%x, %s' % (v(S + 1), 0x3acccccd, v(S + 1)))
        I('v_sub_f32 %s, %s, %s' % (x, v(S + 1), x))
        I('v_max_f32 %s, 0, %s' % (x, x))
        I('v_add_f32 %s, 0x%x, %s' % (x, 0x3727c5ac, x))
        I('v_rsq_f32 %s, %s' % (x, x))
        I('v_mul_f32 %s, %s, %s' % (v(S + 1), x, v(S)))
        I('v_mov_b32 %s, %s' % (v(S), x))
        I('v_xor_b32 %s, 0x80000000, %s' % (v(S + 1), v(S + 1)))

    def softmax_pair(self, Pq, E, dst):
        I = self.I
        M = TMP + 54
        mx, mn = v(M), v(M + 1)
        I('v_max3_f32 %s, %s, %s, %s' % (mx, v(Pq), v(Pq + 1), v(Pq + 2)))
        I('v_min3_f32 %s, %s, %s, %s' % (mn, v(Pq), v(Pq + 1), v(Pq + 2)))
        for i in range(3, 19, 2):
            I('v_max3_f32 %s, %s, %s, %s' % (mx, mx, v(Pq + i), v(Pq + i + 1)))
            I('v_min3_f32 %s, %s, %s, %s' % (mn, mn, v(Pq + i), v(Pq + i + 1)))
        I('v_max_f32 %s, %s, %s' % (mx, mx, v(Pq + 19)))
        I('v_min_f32 %s, %s, %s' % (mn, mn, v(Pq + 19)))
        I('s_mov_b32 s100, 0x%x' % LOG2E)
        I('s_mov_b32 s101, 0x%x' % LOG2E)
        I('v_mul_f32 %s, 0x%x, %s' % (mx, LOG2E | 0x80000000, mx))
        I('v_mul_f32 %s, 0x%x, %s' % (mn, LOG2E, mn))
        for i in range(10):
            I('v_pk_fma_f32 %s, %s, s[100:101], %s op_sel_hi:[1,1,0]' % (v(E + 2 * i, 2), v(Pq + 2 * i, 2), v(M, 2)))
            I('v_pk_fma_f32 %s, %s, s[100:101], %s op_sel:[0,0,1] op_sel_hi:[1,1,1] neg_lo:[1,0,0] neg_hi:[1,0,0]' %
              (v(E + 20 + 2 * i, 2), v(Pq + 2 * i, 2), v(M, 2)))
        for i in range(40):
            I('v_exp_f32 %s, %s' % (v(E + i), v(E + i)))
        S0, S1 = Pq, Pq + 2
        for h, S in ((0, S0), (1, S1)):
            I('v_pk_add_f32 %s, %s, %s' % (v(S, 2), v(E + 20 * h, 2), v(E + 20 * h + 2, 2)))
        for i in range(2, 10):
            for h, S in ((0, S0), (1, S1)):
                I('v_pk_add_f32 %s, %s, %s' % (v(S, 2), v(S, 2), v(E + 20 * h + 2 * i, 2)))
        I('v_add_f32 %s, %s, %s' % (mx, v(S0), v(S0 + 1)))
        I('v_add_f32 %s, %s, %s' % (mn, v(S1), v(S1 + 1)))
        I('v_rcp_f32 %s, %s' % (mx, mx))
        I('v_rcp_f32 %s, %s' % (mn, mn))
        for i in range(20):
            sel = 'op_sel_hi:[1,0]' if i < 10 else 'op_sel:[0,1] op_sel_hi:[1,1]'
            I('v_pk_mul_f32 %s, %s, %s %s' % (v(E + 2 * i, 2), v(E + 2 * i, 2), v(M, 2), sel))
        for i in range(20):
            I('v_cvt_pk_bf16_f32 %s, %s, %s' % (dst(i), v(E + 2 * i), v(E + 2 * i + 1)))

    def phi_mfma(self, KP, D):
        for ks in range(3):
            for Tt in range(2):
                c = v(D + 16 * Tt, 16)
                self.I('v_mfma_f32_32x32x16_bf16 %s, %s, %s, %s' %
                       (c, a(aPHI + 12 * Tt + 4 * ks, 4), v(KP + 4 * ks, 4), c if ks else '0'))

    def attention(self):
        I = self.I
        cfg = self.cfg
        SL = TMP + 44
        CS = BF
        for st in ('O', 'F1', 'F2'):
            self.stream_reset(st)
        self.bgq = self.plan(cfg.get('at_plan', [['O', 25, 90], ['F1', 35, 150]]))
        self.bg_last = self.clk + cfg.get('at_delay', 0) - 90
        self.bg(True)
        for t in range(4):
            for gq in range(4):
                if t == 3 and gq == 3:
                    continue
                self.lg('ds_read_b128 %s, %s offset:%d' % (v(CS + 16 * t + 4 * gq, 4), V['Tb1'], TCS1 - PA + 128 * t + 32 * gq),
                        ('csr', t))
        I('v_pk_add_f32 %s, %s, %s' % (v(SL, 2), v(SL, 2), v(SL + 2, 2)))
        I('v_pk_add_f32 %s, %s, %s' % (v(SL + 4, 2), v(SL + 4, 2), v(SL + 6, 2)))
        I('v_pk_add_f32 %s, %s, %s' % (v(SL, 2), v(SL, 2), v(SL + 4, 2)))
        I('v_mov_b32 %s, %s' % (v(SL + 2), v(SL)))
        I('v_mov_b32 %s, %s' % (v(SL + 3), v(SL + 1)))
        I('v_permlane32_swap_b32 %s, %s' % (v(SL), v(SL + 2)))
        I('v_permlane32_swap_b32 %s, %s' % (v(SL + 1), v(SL + 3)))
        I('v_pk_add_f32 %s, %s, %s' % (v(SL, 2), v(SL, 2), v(SL + 2, 2)))
        self.ln_coeffs(SL, SL + 2)
        self.wait(lg_all=True)

        def ln(off, n):
            for i in range(0, n, 2):
                I('v_pk_mul_f32 %s, %s, %s op_sel:[0,1] op_sel_hi:[1,1]' % (v(CS + off + i, 2), v(CS + off + i, 2), v(SL, 2)))
                I('v_pk_fma_f32 %s, %s, %s, %s op_sel_hi:[1,0,1]' %
                  (v(ACC + off + i, 2), v(ACC + off + i, 2), v(SL, 2), v(CS + off + i, 2)))

        def pack20(P, main, extra):
            for i in range(8):
                I('v_cvt_pk_bf16_f32 %s, %s, %s' % (v(P + i), v(ACC + main + 2 * i), v(ACC + main + 2 * i + 1)))
            for i in range(2):
                I('v_cvt_pk_bf16_f32 %s, %s, %s' % (v(P + 8 + i), v(ACC + extra + 2 * i), v(ACC + extra + 2 * i + 1)))
        KP, D = TMP, TMP + 12
        ln(0, 16)
        ln(48, 4)
        pack20(KP, 0, 48)
        I('v_mov_b32 %s, 0' % v(KP + 10))
        I('v_mov_b32 %s, 0' % v(KP + 11))
        self.phi_mfma(KP, D)
        ln(16, 16)
        ln(52, 4)
        VP = ACC
        pack20(VP, 16, 52)
        I('v_mov_b32 %s, 0x3f80' % v(VP + 10))
        I('v_mov_b32 %s, 0' % v(VP + 11))
        WA = ACC + 16
        for u in range(8):
            I('v_xor_b32 %s, %d, %s' % (v(WA + u), 16 * u, V['TW']))

        def twrite(u, r):
            tag = self.lg('ds_write_b128 %s, %s' % (v(WA + u), v(r, 4)), 'tw')
            for q in range(8):
                self.q_fill(T_Q0 + q, 'T', tag)
        for u in range(3):
            twrite(5 + u, VP + 4 * u)
        ln(32, 16)
        ln(56, 4)
        pack20(KP, 32, 56)
        E = BF
        PK = BF + 40
        self.softmax_pair(D, E, lambda i: v(PK + i))
        for u in range(5):
            twrite(u, PK + 4 * u)
        self.phi_mfma(KP, D)
        self.bg(False)
        self.wait(lg_all=True)
        self.barrier()
        self.stamp(1)
        KA = ACC + 24
        I('v_xor_b32 %s, 32, %s' % (v(KA), V['KA']))
        I('v_xor_b32 %s, 64, %s' % (v(KA + 1), V['KA']))
        DK = ACC + 28
        FR = BF
        for ks in range(4):
            for f in range(4):
                base = V['KB'] if f == 3 else (V['KA'], v(KA), v(KA + 1))[f]
                for ab in range(2):
                    tag = self.lg('ds_read_b64_tr_b16 %s, %s offset:%d' %
                                  (v(FR + 16 * ks + 4 * f + 2 * ab, 2), base, 4096 * ks + 1024 * ab), ('kvr', ks))
                    for q in range(8):
                        self.q_read(T_Q0 + q, 'T', tag)
            if ks > 0:
                self.wait(lg=[('kvr', ks - 1)])
                for t in range(3):
                    c = v(DK + 4 * t, 4)
                    I('v_mfma_f32_16x16x32_bf16 %s, %s, %s, %s' %
                      (c, v(FR + 16 * (ks - 1) + 4 * t, 4), v(FR + 16 * (ks - 1) + 12, 4), c if ks > 1 else '0'))
        for q in range(8):
            self.q_done(T_Q0 + q)
        self.wait(lg_all=True)
        for t in range(3):
            c = v(DK + 4 * t, 4)
            I('v_mfma_f32_16x16x32_bf16 %s, %s, %s, %s' % (c, v(FR + 48 + 4 * t, 4), v(FR + 60, 4), c))
        PV = ACC + 40
        for i in range(6):
            I('v_cvt_pk_bf16_f32 %s, %s, %s' % (v(PV + i), v(DK + 2 * i), v(DK + 2 * i + 1)))
        self.vm('buffer_store_dwordx4 %s, %s, %s, 0 offen sc1' % (v(PV, 4), V['KS1'], srd(sWS)), 'kvs')
        self.vm('buffer_store_dwordx2 %s, %s, %s, 0 offen sc1' % (v(PV + 4, 2), V['KS2'], srd(sWS)), 'kvs')
        self.stamp(2)
        PQ = ACC
        qpos = lambda i: v(PQ + ((4 * ((i % 8) >> 1) + 2 * (i >> 3) + (i & 1)) if i < 16 else i))
        self.bg(True)
        self.softmax_pair(D, E, qpos)
        self.bg(False)
        self.wait(vm=['kvs'])
        self.barrier()
        self.one_wave_store(sW, 'buffer_store_dword %s, off, %s, %s sc1' % (V['TagG'], srd(sWS), sKVFp))
        for pr in range(2):
            for i in range(4):
                I('v_permlane32_swap_b32 %s, %s' % (v(PQ + 8 * pr + i), v(PQ + 8 * pr + 4 + i)))
        self.stamp(3)
        I('s_mov_b32 %s, 0x%x' % (t0, CSP))
        self.vm('buffer_load_dwordx4 %s, v1, %s, %s offen sc1' % (v(TMP + 16, 4), srd(sWS), t0), 'csp')
        self.bg_burst(cfg.get('at_b1', 8))
        I('v_min_u32 %s, 127, v0' % v(TMP + 20))
        I('v_lshlrev_b32 %s, 2, %s' % (v(TMP + 20), v(TMP + 20)))
        I('v_add_u32 %s, %d, %s' % (v(TMP + 20), TCS3, v(TMP + 20)))
        self.wait(vm=['csp'])
        I('v_pk_add_f32 %s, %s, %s' % (v(TMP + 16, 2), v(TMP + 16, 2), v(TMP + 18, 2)))
        I('v_add_f32 %s, %s, %s' % (v(TMP + 16), v(TMP + 16), v(TMP + 17)))
        self.lg('ds_write_b32 %s, %s' % (v(TMP + 20), v(TMP + 16)))
        self.poll(V['Fl'], sWS, sKVFc, 0, sTagG)
        self.stamp(4)
        G = BF
        for p in range(16):
            self.vm('buffer_load_dwordx4 %s, %s, %s, %s offen sc1' % (v(G + 4 * p, 4), V['KG'], srd(sWS), sK4(p)), ('kg', p))
        self.bg_burst(cfg.get('at_b2', 4))
        SM = TMP
        I('s_mov_b32 s100, 0x00003f80')
        I('s_mov_b32 s101, 0x3f800000')
        for i in range(8):
            I('v_mov_b32 %s, 0' % v(SM + i))
        for p in range(16):
            self.wait(vm=[('kg', p)])
            for i in range(4):
                I('v_dot2c_f32_bf16 %s, s100, %s' % (v(SM + 2 * i), v(G + 4 * p + i)))
                I('v_dot2c_f32_bf16 %s, s101, %s' % (v(SM + 2 * i + 1), v(G + 4 * p + i)))
        for i in range(4):
            I('v_cvt_pk_bf16_f32 %s, %s, %s' % (v(SM + 8 + i), v(SM + 2 * i), v(SM + 2 * i + 1)))
        tag = self.lg('ds_write_b128 %s, %s' % (V['KW'], v(SM + 8, 4)), 'ksw')
        self.q_fill(KS_Q, 'KS', tag)
        self.wait(lg_all=True)
        self.barrier()
        self.stamp(5)
        AF = BF
        for ks in range(3):
            for hd in range(2):
                base, off = (V['R1'], 1920 * hd + 768 * ks) if ks < 2 else (V['R2%d' % hd], 0)
                tag = self.lg('ds_read_b128 %s, %s offset:%d' % (v(AF + 8 * ks + 4 * hd, 4), base, off), ('ksr', ks))
                self.q_read(KS_Q, 'KS', tag)
        self.q_done(KS_Q)
        self.bg_burst(cfg.get('at_b3', 0))
        DO = TMP
        for ks in range(3):
            self.wait(lg=[('ksr', ks)])
            for hd in range(2):
                c = v(DO + 16 * hd, 16)
                b = v(PQ + 8 * ks + 4 * hd, 4) if ks < 2 else v(PQ + 16, 4)
                I('v_mfma_f32_32x32x16_bf16 %s, %s, %s, %s' % (c, v(AF + 8 * ks + 4 * hd, 4), b, c if ks else '0'))
        OP = ACC + 24
        for hd in range(2):
            dn = DO + 16 * hd + 12
            I('v_add_f32 %s, 0x%x, %s' % (v(dn), 0x358637bd, v(dn)))
            I('v_rcp_f32 %s, %s' % (v(dn), v(dn)))
        for hd in range(2):
            b = DO + 16 * hd
            for i in range(6):
                I('v_pk_mul_f32 %s, %s, %s op_sel_hi:[1,0]' % (v(b + 2 * i, 2), v(b + 2 * i, 2), v(b + 12, 2)))
            for i in range(6):
                d = OP + 4 * hd + i if i < 4 else OP + 8 + 2 * hd + (i - 4)
                I('v_cvt_pk_bf16_f32 %s, %s, %s' % (v(d), v(b + 2 * i), v(b + 2 * i + 1)))
        tags = self.dual([
            'buffer_store_dwordx4 %s, %s, %s, 0 offen' % (v(OP, 4), V['SO1'], srd(sST)),
            'buffer_store_dwordx4 %s, %s, %s, 0 offen offset:512' % (v(OP + 4, 4), V['SO1'], srd(sST)),
            'buffer_store_dwordx4 %s, %s, %s, 0 offen' % (v(OP + 8, 4), V['SO2'], srd(sST))])
        self.bg_burst(cfg.get('at_b4', 0))
        self.wait(vm=tags)
        self.flag_local(sFlP32, F_B)
        self.bg_burst(cfg.get('at_b5', 0))
        for n in ('KS1', 'KS2', 'KG'):
            I('v_add_u32 %s, 0x100000, %s' % (V[n], V[n]))
        I('s_add_u32 %s, %s, 0x1000' % (sKVFc, sKVFc))
        I('s_add_u32 %s, %s, 0x1000' % (sKVFp, sKVFp))
        self.stamp(6)

    def plan(self, spec):
        pos = {}
        out = []
        for st, cnt, gap in spec:
            for _ in range(cnt):
                out.append((st, pos.get(st, 0), gap))
                pos[st] = pos.get(st, 0) + 1
        return out

    def regap(self, gaps):
        self.bgq = [(st, n, gaps(st, n)) for st, n, g in self.bgq]

    def mf16(self, areg):
        def mf(s, f, r):
            c = v(RES + 4 * f, 4)
            return ['v_mfma_f32_16x16x32_bf16 %s, %s, %s, %s' % (c, v(r, 4), a(areg(s), 4), c)]
        return mf

    def p2(self):
        cfg = self.cfg
        self.poll(V['Fl'], sLD, sFl16, F_B, sTagL)
        self.next_tag()
        self.stamp(7)
        self.regap(lambda st, n: cfg.get('p2_gap', 100))
        self.bgq = self.touches('X1') + self.bgq
        self.gemm('P2', 20, 5, 'O', lambda i: 4 * i, V['A2'], 1, self.mf16(lambda s: 4 * s), L=10, we=5,
                  bars=cfg.get('p2_bars', [0, 10, 18]), a0=cfg.get('p2_a0', 4), arate=cfg.get('p2_arate', 1.25),
                  jobstart=cfg.get('p2_js', 4), jobstop=cfg.get('p2_je', 99))
        self.stamp(8)
        self.pack_res(TMP + 8)
        self.publish_x(TMP + 8, 'X1', burst=cfg.get('p2_burst', [4, 4]))
        self.stamp(9)

    def p3(self):
        I = self.I
        cfg = self.cfg
        SL = TMP + 44
        self.poll(V['Fl'], sLD, sFl32, F_X, sTagL)
        self.stamp(10)

        def mf(s, f, r):
            out = []
            for tt in range(2):
                c = v(ACC + 28 * tt + 4 * f, 4)
                out.append('v_mfma_f32_16x16x32_bf16 %s, %s, %s, %s' % (c, v(r, 4), a(8 * s + 4 * tt, 4), c if s else '0'))
            return out

        def h_start():
            for tt in range(2):
                self.vm('buffer_load_dwordx4 %s, %s, %s, 0 offen offset:%d sc1' %
                        (v(SL + 4 * tt, 4), V['LSt3'], srd(sLD), 256 * tt), 'st3')
        self.regap(lambda st, n: cfg.get('p3_gap1', 100))
        f2 = [('F2', n, cfg.get('p3_gap2', 200)) for n in range(68)]
        self.bgq += f2

        def h_touch():
            self.bgq = self.touches('H', cfg.get('p3_tgap', 64)) + self.bgq
        self.gemm('P3', 20, 7, 'F1', lambda i: 4 * i, V['A1'], 2, mf, L=5, we=2,
                  bars=cfg.get('p3_bars', [0, 4, 8, 12, 16, 19]), a0=cfg.get('p3_a0', 4), arate=cfg.get('p3_arate', 3),
                  hooks={-1: h_start, cfg.get('p3_tstep', 12): h_touch}, jobstart=cfg.get('p3_js', 0), jobstop=cfg.get('p3_je', 99))
        assert not [j for j in self.bgq if j[0] == 'T']
        self.regap(lambda st, n: cfg.get('e3_gap', 100))
        self.stamp(11)
        CS, B1 = BF, BF + 28
        for t in range(7):
            self.lg('ds_read_b128 %s, %s offset:%d' % (v(CS + 4 * t, 4), V['Tb4'], TCS3 - PA + 64 * t), 'tb')
            self.lg('ds_read_b128 %s, %s offset:%d' % (v(B1 + 4 * t, 4), V['Tb4'], TB1 - PA + 64 * t), 'tb')
        self.wait(vm=['st3'])
        self.bg(cfg.get('e3_bg', 1) > 0)
        for tt in range(2):
            S = SL + 4 * tt
            I('v_pk_add_f32 %s, %s, %s' % (v(S, 2), v(S, 2), v(S + 2, 2)))
            for sw in ('v_permlane32_swap_b32', 'v_permlane16_swap_b32'):
                I('v_mov_b32 %s, %s' % (v(S + 2), v(S)))
                I('v_mov_b32 %s, %s' % (v(S + 3), v(S + 1)))
                I('%s %s, %s' % (sw, v(S), v(S + 2)))
                I('%s %s, %s' % (sw, v(S + 1), v(S + 3)))
                I('v_pk_add_f32 %s, %s, %s' % (v(S, 2), v(S, 2), v(S + 2, 2)))
            self.ln_coeffs(S, S + 2)
        self.wait(lg_all=True)
        tags = []
        for tt in range(2):
            S = SL + 4 * tt
            Cc = ACC + 28 * tt
            HP = TMP + 16 * tt + 4
            for i in range(14):
                I('v_pk_fma_f32 %s, %s, %s, %s op_sel:[0,1,0] op_sel_hi:[1,1,1]' %
                  (v(TMP, 2), v(CS + 2 * i, 2), v(S, 2), v(B1 + 2 * i, 2)))
                I('v_pk_fma_f32 %s, %s, %s, %s op_sel_hi:[1,0,1]' % (v(Cc + 2 * i, 2), v(Cc + 2 * i, 2), v(S, 2), v(TMP, 2)))
                I('v_max_f32 %s, 0, %s' % (v(Cc + 2 * i), v(Cc + 2 * i)))
                I('v_max_f32 %s, 0, %s' % (v(Cc + 2 * i + 1), v(Cc + 2 * i + 1)))
                I('v_pk_mul_f32 %s, %s, %s' % (v(Cc + 2 * i, 2), v(Cc + 2 * i, 2), v(Cc + 2 * i, 2)))
                I('v_cvt_pk_bf16_f32 %s, %s, %s' % (v(HP + i), v(Cc + 2 * i), v(Cc + 2 * i + 1)))
            self.bg(False)
            so = sH54 if tt else '0'
            tags += self.dual(
                ['buffer_store_dwordx4 %s, %s, %s, %s offen offset:%d' % (v(HP + 4 * pr, 4), V['SH1'], srd(sST), so, 1024 * pr)
                 for pr in range(3)] +
                ['buffer_store_dwordx2 %s, %s, %s, %s offen' % (v(HP + 12, 2), V['SH2'], srd(sST), so)])
        for t in range(5):
            self.lg('ds_read_b128 %s, %s offset:%d' % (v(BF + 4 * t, 4), V['Tb4'], TB2 - PA + 64 * t), 'tb')
        self.wait(lg_all=True)
        for i in range(10):
            I('v_pk_add_f32 %s, %s, %s' % (v(RES + 2 * i, 2), v(RES + 2 * i, 2), v(BF + 2 * i, 2)))
        self.bg_burst(cfg.get('p3_burst', [4, 4])[0])
        self.wait(vm=tags)
        self.flag_local(sFlP32, F_B)
        self.bg_burst(cfg.get('p3_burst', [4, 4])[1])
        self.stamp(12)

    def p4(self):
        I = self.I
        cfg = self.cfg
        self.poll(V['Fl'], sLD, sFl16, F_B, sTagL)
        self.next_tag()
        self.stamp(13)
        I('s_cmp_eq_u32 %s, 0' % sLayer)
        I('s_cselect_b32 s%d, 0x1000000, 0' % (sWQ + 2))
        self.stream_reset('Q')
        self.regap(lambda st, n: cfg.get('p4_gap', 70))
        self.bgq += self.touches('XA') + [('Q', n, cfg.get('p4_gapq', 100)) for n in range(40)]
        ar = lambda i: 4 * (i % 40)
        self.gemm('P4', 54, 5, 'F2', ar, V['A4'], 1, self.mf16(ar), L=10, we=5,
                  bars=cfg.get('p4_bars', [0, 6, 12, 18, 24, 30, 36, 42, 48]), a0=cfg.get('p4_a0', 4),
                  arate=cfg.get('p4_arate', 1.25), jobstart=cfg.get('p4_js', 0), jobstop=cfg.get('p4_je', 99))
        self.stamp(14)
        self.pack_res(TMP + 8)

    def build(self):
        I = self.I
        if self.cfg.get('stamps'):
            I('v_mov_b32 %s, 0' % V['Stamp'])
            I('s_memrealtime s[98:99]')
            self.stamp(16)
            I('v_writelane_b32 %s, s98, 30' % V['Stamp'])
        self.prologue()
        self.stamp(23)
        self.p0()
        self.stamp(17)
        self.p1(True)
        snap = self.snapshot()
        I('L_body:')
        self.stamp(0)
        self.attention()
        self.p2()
        self.p3()
        self.p4()
        I('s_cmp_eq_u32 %s, 0' % sLayer)
        I('s_cbranch_scc0 L_final')
        self.publish_x(TMP + 8, 'XA', burst=self.cfg.get('p4_burst', [0, 0]))
        self.stamp(15)
        I('s_mov_b32 %s, 1' % sLayer)
        if self.cfg.get('stamps'):
            I('v_mov_b32 %s, %s' % (V['Stamp0'], V['Stamp']))
        self.poll(V['Fl'], sLD, sFl32, F_X, sTagL)
        self.stamp(17)
        self.p1(False)
        snap2 = self.snapshot()
        assert snap == snap2, (snap, snap2)
        I('s_nop 7')
        I('s_nop 3')
        I('s_branch L_body')
        I('L_final:')
        P = TMP + 8
        I('buffer_store_dwordx4 %s, %s, %s, 0 offen' % (v(P, 4), V['X1'], srd(sXO)))
        I('buffer_store_dwordx4 %s, %s, %s, 0 offen offset:64' % (v(P + 4, 4), V['X1'], srd(sXO)))
        I('buffer_store_dwordx2 %s, %s, %s, 0 offen offset:128' % (v(P + 8, 2), V['X3'], srd(sXO)))
        I('s_or_b32 %s, s2, %s' % (t0, sW))
        self.one_wave_store(t0, 'buffer_store_dword %s, off, %s, 0' % (V['TagG'], srd(sWS)))
        if self.cfg.get('stamps'):
            I('s_memrealtime s[98:99]')
            self.stamp(15)
            I('v_writelane_b32 %s, s98, 31' % V['Stamp'])
            I('s_lshl_b32 %s, s2, 11' % t0)
            I('s_lshr_b32 %s, %s, 1' % (t1, sW1k))
            I('s_add_u32 %s, %s, %s' % (t0, t0, t1))
            I('s_add_u32 %s, %s, 0x%x' % (t0, t0, STAMPS))
            I('buffer_store_dword %s, %s, %s, %s offen' % (V['Stamp0'], V['KFl'], srd(sWS), t0))
            I('buffer_store_dword %s, %s, %s, %s offen offset:256' % (V['Stamp'], V['KFl'], srd(sWS), t0))
        d = self.cfg.get('diag')
        if d:
            I('v_readfirstlane_b32 s60, %s' % V['Stamp' if d != 'clk' else 'Stamp0'])
            I('s_waitcnt vmcnt(0)')
            I('s_memrealtime s[100:101]')
            I('s_waitcnt lgkmcnt(0)')
            I('s_sub_u32 s61, s100, s60')
            if d == 'rt':
                I('s_mov_b32 s61, 20000')
            elif d == 'rtwb':
                I('buffer_wbl2 sc1')
                I('s_waitcnt vmcnt(0)')
                I('s_mov_b32 s61, 20000')
            elif d == 'durclk':
                I('v_readfirstlane_b32 s63, %s' % V['Stamp0'])
                I('s_memtime s[100:101]')
                I('s_waitcnt lgkmcnt(0)')
                I('s_sub_u32 s61, s100, s63')
                I('s_lshr_b32 s61, s61, 2')
            elif d == 'clk':
                I('s_mov_b32 s61, 480000')
            elif d == 'slow':
                I('s_mul_i32 s61, %s, 30000' % sSlow)
            elif d == 'dur':
                I('s_mul_i32 s61, s61, 10')
            elif d == 'mark':
                I('s_sub_u32 s61, s57, s60')
                I('s_mul_i32 s61, s61, 10')
                I('s_add_u32 s61, s61, 10000')
            I('L_diag:')
            I('%s s[100:101]' % ('s_memtime' if d == 'clk' else 's_memrealtime'))
            I('s_waitcnt lgkmcnt(0)')
            I('s_sub_u32 s62, s100, s60')
            I('s_cmp_lt_u32 s62, s61')
            I('s_cbranch_scc1 L_diag')
        I('L_end:')
        I('s_endpgm')


HEADER = """; Kernarg layout for this problem (96 bytes, ptrs only, base s[0:1]):
; @launch grid=(256,1,1) block=(256,1,1) lds=163840
.amdgcn_target "amdgcn-amd-amdhsa--gfx950"
.text
.globl {n}_kernel
.p2align 8
.type {n}_kernel,@function
{n}_kernel:
"""
FOOTER = """.section .rodata,"a"
.p2align 6
.amdhsa_kernel {n}_kernel
  .amdhsa_next_free_vgpr 512
  .amdhsa_next_free_sgpr 102
  .amdhsa_accum_offset 256
  .amdhsa_group_segment_fixed_size 0
  .amdhsa_kernarg_size 96
  .amdhsa_user_sgpr_count 2
  .amdhsa_user_sgpr_kernarg_segment_ptr 1
  .amdhsa_system_sgpr_workgroup_id_x 1
.end_amdhsa_kernel
"""


def generate(cfg):
    k = K(cfg)
    k.build()
    lines, added = fix_hazards(k.L)
    body = '\n'.join(x if x.endswith(':') else '    ' + x for x in lines)
    return HEADER.format(n=NAME) + body + '\n' + FOOTER.format(n=NAME), dict(n=len(lines), nops=added, maxvm=k.maxvm, notes=k.notes)


if __name__ == '__main__':
    import json
    cfg = json.loads(sys.argv[2]) if len(sys.argv) > 2 else {}
    text, info = generate(cfg)
    out = sys.argv[1] if len(sys.argv) > 1 else 'cdna_kernels/%s.s' % NAME
    open(out, 'w').write(text)
    print(info)
```

```python
import sys
import os
sys.path.insert(0, os.path.dirname(os.path.abspath(__file__)))
from asmlib import Gen, fix_hazards

NAME = 'interleave_layers__linear_kernel_hedgehog__dense_activation_squared_relu__prompt'

EPOCH, XF, PREF, QF, KVF, CSP = 0, 0x1000, 0x2000, 0x3000, 0x4000, 0x8000
KVP, WOT, W1T, W2T, WQC, STAMPS = 0x100000, 0x300000, 0x400000, 0x700000, 0xA00000, 0xD00000
ARENA0, ARENA, PAD = 0x1000000, 0xA00000, 0x10000
TGS = 152 * 1024
AL, ST, FL, BE = 0, 40 * 1024, 42 * 1024, 44 * 1024
F_X, F_B = 0, 64
OOB = 0x7ffffff0
NQ = 39
PA = NQ * 4096
TCS1, TCS3, TB1, TB2, TPHI = PA, PA + 512, PA + 1024, PA + 1536, PA + 2048
T_Q0 = 19
KS_Q = 27
STG_Q0 = 34
slotQ = lambda i: i % NQ
slotO = lambda i: (i + 28) % NQ
slotF1 = lambda i: (i + 14) % NQ
slotF2 = lambda i: (i + 10) % NQ
sWS, sLD, sWQ, sXO, sPS, sT2 = 4, 8, 12, 16, 20, 24
sST, sTC = 48, 52
sStep = 's56'
sWr = {'O': 's59', 'F1': 's60', 'F2': 's61'}
sWa = {'P3': 's62', 'P2': 's63', 'P4': 's64'}
sRa3, sXs = 's65', 's58'
NPIECE = {'Q': 160, 'O': 100, 'F1': 140, 'F2': 270}
PPS = {'Q': 4, 'O': 5, 'F1': 7, 'F2': 5}
srd = lambda b: 's[%d:%d]' % (b, b + 3)
sK4 = lambda i: '0' if i == 0 else 's%d' % (31 + i)
sH54 = 's47'
(sTagG, sW, sW1k, sLayer, sSlow, sJ, sRb, sC, sTO, sTagL, sFl32, sFl16, sFlP16, sFlP32, sQoff, sKVFc, sKVFp,
 sOb, sF1b, sF2b, sPreP, sTy) = ['s%d' % i for i in range(72, 94)]
sPst = ['s28', 's29', 's30', 's31', 's94']
t0, t1, t2, t3, t4, t5, t6 = 's95', 's96', 's97', 's98', 's99', 's100', 's101'
_names = ('Rd0 Rd1 Rd2 TrA0 TrA1 TrA2 TrB0 TrB1 TrB2 A1 A2 A4 SX1 SX3 S11 S13 SSt LSt1 LSt3 SO1 SO2 SH1 SH2 X1 X3 '
          'Fl TagL TagG DO DF1 DF2 KS1 KS2 KG RdW0 RdW1 RdW2 TW KA KB R1 R20 R21 Tb1 Tb4 KW Aw Stamp Stamp0').split()
V = {n: 'v%d' % (i + 2) for i, n in enumerate(_names)}
assert len(_names) + 2 <= 52
RES, ACC, BF, TMP = 52, 72, 136, 200
aPHI, aWIN, aDUM = 160, 184, 255
V.update(DQ='v%d' % (BF + 24), Cs='v%d' % (BF + 25), WT='v%d' % (BF + 26))
XD, XR = BF + 28, BF + 32
WRING, XRING0 = 18, 18
KU = 21


def v(i, n=1):
    return 'v%d' % i if n == 1 else 'v[%d:%d]' % (i, i + n - 1)


def a(i, n=1):
    return 'a%d' % i if n == 1 else 'a[%d:%d]' % (i, i + n - 1)


LOG2E = 0x3fb8aa3b


class K(Gen):
    def __init__(self, cfg):
        super().__init__(NQ)
        self.cfg = cfg
        self.notes = []
        self.stream_pos = {}
        self.clk = 0
        self.mf_free = 0
        self.bgq = []
        self.bg_on = False
        self.bg_last = -10 ** 9
        self.bg_pend = None
        self.xdone = {('xu', g) for g in range(-4, 0)}
        self.rot = {'Q': [0, 0], 'F1': [0, 10], 'O': [0, 5, 10, 15], 'F2': [0, 14, 26, 42]}
        for st in self.rot:
            if st not in cfg.get('rot', ['F2']):
                self.rot[st] = [0] * len(self.rot[st])
        self.first = True
        self.tail = []

    def I(self, t):
        for x in t.split('\n'):
            x = x.strip()
            if not x:
                continue
            self.L.append(x)
            op = x.split()[0]
            if op.startswith('v_mfma'):
                st = max(self.clk, self.mf_free)
                self.mf_free = st + (32 if '32x32' in op else 16)
                self.clk = st + 8
            elif op.endswith(':') or op.startswith('.'):
                pass
            elif op.startswith(('v_exp', 'v_rcp', 'v_rsq', 'v_permlane')):
                self.clk += 8
            elif op.startswith('ds_write_b128'):
                self.clk += 30
            else:
                self.clk += 4
            if self.bg_on and op.startswith('v_') and not op.startswith(('v_cmp', 'v_cndmask')):
                self.bg_on = False
                self.bg_step()
                self.bg_on = True

    def bg_step(self):
        if self.bg_pend is not None:
            f, self.bg_pend = self.bg_pend, None
            f()
            return True
        if self.bgq and self.clk - self.bg_last >= self.bgq[0][2]:
            st, n, gap = self.bgq[0]
            if st == 'T':
                self.bgq.pop(0)
                self.vm(n)
                self.bg_last = self.clk
                return True
            slot, pre, issue = self.dma(st, n)
            if st == 'QW':
                if self.q_is_free(slot):
                    self.bgq.pop(0)
                    issue()
                    self.bg_last = self.clk
                return False
            if (('xu', n[0] - 4) in self.xdone and ('xu', n[0] - 4) not in self.lgq) if st == 'X' else self.q_is_free(slot):
                self.bgq.pop(0)
                pre()
                self.bg_pend = issue
                self.bg_last = self.clk
        return False

    def bg(self, on):
        if not on:
            self.bg_on = False
            if self.bg_pend is not None:
                self.bg_step()
        else:
            self.bg_on = True

    def bg_burst(self, k):
        self.bg(False)
        for _ in range(k):
            if not self.bgq:
                break
            n0 = len(self.bgq)
            self.bg_last = -10 ** 9
            self.bg_step()
            if len(self.bgq) == n0:
                break
            self.bg(False)

    def stamp(self, idx):
        if self.cfg.get('diag') == 'mark' and self.cfg['mark'][1] == idx:
            lab = self.label('L_mk')
            self.wait(lg_all=True)
            if idx < 18:
                self.I('s_cmp_eq_u32 %s, %d' % (sLayer, self.cfg['mark'][0]))
                self.I('s_cbranch_scc0 %s' % lab)
            self.I('s_memrealtime s[100:101]')
            self.I('s_waitcnt lgkmcnt(0)')
            self.I('s_mov_b32 s57, s100')
            self.I('%s:' % lab)
        if not self.cfg.get('stamps'):
            return
        self.wait(lg_all=True)
        self.I('s_memtime s[100:101]')
        self.I('s_waitcnt lgkmcnt(0)')
        self.I('v_writelane_b32 %s, s100, %d' % (V['Stamp'], idx))

    def note(self, name):
        self.notes.append('%s>%s%s' % ((name,) + (self.bgq[0][:2] if self.bgq else ('', ''))))

    def ldsaddr(self, byte, kind='Rd'):
        return V['%s%d' % (kind, byte >> 16)], byte & 0xffff

    def dual(self, stores):
        lab = self.label('L_st')
        self.I('s_cmp_eq_u32 %s, 0' % sSlow)
        self.I('s_cbranch_scc0 %s_s' % lab)
        tags = [self.vm(x + ' ; nopad') for x in stores]
        self.I('%s_e:' % lab)
        self.tail += ['%s_s:' % lab] + [x + ' sc1' for x in stores] + ['s_nop 0', 's_branch %s_e' % lab]
        return tags

    def one_wave_store(self, cond_reg, text):
        lab = self.label('L_ow')
        self.I('s_cmp_eq_u32 %s, 0' % cond_reg)
        self.I('s_cbranch_scc0 %s' % lab)
        self.I('s_mov_b64 exec, 1')
        self.I(text)
        self.I('s_mov_b64 exec, -1')
        self.I('%s:' % lab)

    def flag_local(self, soff, imm):
        self.I('s_mov_b64 exec, 1')
        self.dual(['buffer_store_dword %s, off, %s, %s offset:%d' % (V['TagL'], srd(sST), soff, imm)])
        self.I('s_mov_b64 exec, -1')
        self.I('s_mov_b64 s[%d:%d], s[%d:%d]' % (sLD, sLD + 1, sST, sST + 1))
        self.I('s_add_u32 s%d, s%d, %s' % (sST, sST, sStep))
        self.I('s_addc_u32 s%d, s%d, 0' % (sST + 1, sST + 1))

    def next_tag(self):
        self.I('s_add_u32 %s, %s, 32' % (sTagL, sTagL))
        self.I('v_mov_b32 %s, %s' % (V['TagL'], sTagL))

    def touches(self, which, gap=0, always=False):
        L = {'XA': [('SX1', '0', 0), ('SX1', '0', 2048), ('SX3', '0', 0), ('SSt', '0', 0)],
             'X1': [('S11', '0', 0), ('S11', '0', 2048), ('S13', '0', 0), ('SSt', '0', 0)],
             'O': [('SO1', '0', 0), ('SO1', '0', 512), ('SO2', '0', 0)],
             'H': [('SH1', so, 1024 * pr) for so in ('0', sH54) for pr in range(3)] + [('SH2', so, 0) for so in ('0', sH54)]}[which]
        if not always and which not in self.cfg.get('touch', ['H']):
            return []
        return [('T', 'buffer_load_dword %s, %s, %s, %s offen offset:%d sc1' % (a(aDUM), V[r], srd(sTC), so, off), gap)
                for r, so, off in L]

    def poll(self, addr, sd, soff, imm, tag, width=1):
        lab = self.label('L_poll')
        T = TMP + 52
        self.I('%s:' % lab)
        if width == 1:
            self.I('buffer_load_dword %s, %s, %s, %s offen offset:%d sc1' % (v(T), addr, srd(sd), soff, imm))
        else:
            self.I('buffer_load_dwordx4 %s, %s, %s, %s offen offset:%d sc1' % (v(T, 4), addr, srd(sd), soff, imm))
        self.I('s_sub_u32 %s, %s, 1' % (sTO, sTO))
        self.I('s_cbranch_scc1 L_end')
        self.force_wait('vmcnt(0)')
        if width == 4:
            for i in range(4):
                self.I('v_xor_b32 %s, %s, %s' % (v(T + i), tag, v(T + i)))
            self.I('v_or3_b32 %s, %s, %s, %s' % (v(T), v(T), v(T + 1), v(T + 2)))
            self.I('v_or_b32 %s, %s, %s' % (v(T), v(T), v(T + 3)))
            self.I('v_cmp_ne_u32 vcc, 0, %s' % v(T))
        else:
            self.I('v_cmp_ne_u32 vcc, %s, %s' % (tag, v(T)))
        self.I('s_cbranch_vccnz %s' % lab)

    def stream_reset(self, st):
        base, slot = {'O': (sOb, slotO), 'F1': (sF1b, slotF1), 'F2': (sF2b, slotF2)}[st]
        self.I('v_add_u32 %s, %s, %s' % (V['D' + st], base, V['Rd0']))
        self.stream_pos[st] = -slot(0)

    def slotf(self, st):
        if st == 'Q' and self.first:
            return lambda i: i % WRING
        return {'Q': slotQ, 'QW': slotQ, 'O': slotO, 'F1': slotF1, 'F2': slotF2}[st]

    def dma(self, st, n):
        if st == 'X':
            G, p = n

            def prex():
                if p == 0:
                    self.I('s_mov_b32 %s, %d' % (sXs, 128 * G))
                self.I('s_lshl2_add_u32 m0, %s, %d' % (sW1k, (XRING0 + 4 * (G % 4)) * 4096 + 1024 * p))
            return None, prex, lambda: self.vm('buffer_load_dwordx4 %s, %s, %s offen lds' % (v(XD + p), srd(sXO), sXs), ('X', G))
        slot = self.slotf(st)(n)
        if st == 'QW':

            def put():
                base, off = self.ldsaddr(slot * 4096, 'RdW')
                tag = self.lg('ds_write_b128 %s, %s offset:%d' % (base, a(4 * n, 4), off), ('Q', n))
                self.q_fill(slot, ('Q', n), tag)
            return slot, None, put

        def pre():
            if st == 'Q':
                self.I('s_mov_b32 %s, %d' % (sQoff, 16 * 3840 * n))
            else:
                cand = {-(-(NPIECE[st] - PPS[st] * r - w) // 4) for r in self.rot[st] if r for w in range(4)}
                if n in cand:
                    self.I('s_cmp_eq_u32 %s, %d' % (sWr[st], n))
                    self.I('s_cselect_b32 s3, 0x%x, 0' % ((-NPIECE[st] * 1024) & 0xffffffff))
                    self.I('v_add_u32 %s, s3, %s' % (V['D' + st], V['D' + st]))
                if n - slot != self.stream_pos[st]:
                    d = (n - slot - self.stream_pos[st]) * 4096
                    self.I('v_add_u32 %s, 0x%x, %s' % (V['D' + st], d, V['D' + st]))
                    self.stream_pos[st] = n - slot
            self.I('s_add_u32 m0, %s, %d' % (sW1k, slot * 4096))

        def issue():
            if st == 'Q':
                tag = self.vm('buffer_load_dwordx4 %s, %s, %s offen lds' % (V['DQ'], srd(sWQ), sQoff), (st, n))
            else:
                tag = self.vm('buffer_load_dwordx4 %s, %s, m0 offen lds' % (V['D' + st], srd(sWS)), (st, n))
            self.q_fill(slot, (st, n), tag)
        return slot, pre, issue

    def dma_now(self, st, n):
        slot, pre, issue = self.dma(st, n)
        pre()
        issue()

    def gemm(self, name, steps, nfr, st, areg, avaddr, nA, mf, L, we, bars, a0, arate, jobstart=0, jobstop=999,
             hooks=None, tr=False, win=99, shadow=None, jobrate=None):
        hooks = hooks or {}
        self.bg(False)
        slotf = self.slotf(st)
        shadow = shadow if shadow is not None else []
        total = steps * nfr
        P = L + 1
        pool = lambda n: BF + 4 * (n % P)
        nAtot = steps * nA
        state = dict(cur=0, an=0, aacc=0.0, jacc=0.0)
        acand = {nAtot - r * nA for r in self.rot[st] if r}
        if acand:
            if name == 'P3':
                self.I('v_add_u32 %s, %s, %s' % (V['Aw'], sRa3, avaddr))
            else:
                self.I('v_mov_b32 %s, %s' % (V['Aw'], avaddr))
            avaddr = V['Aw']

        def a_ok():
            i = state['an']
            if i >= nAtot or i >= state['cur'] * nA + win:
                return False
            if name == 'P1b':
                return ('Q', i) not in self.lgq and not any(j[0] == 'QW' and j[1] == i for j in self.bgq)
            return True

        def quad_of(n):
            return (n // nfr) if tr else (n >> 2)

        def aload():
            assert a_ok()
            i = state['an']
            state['an'] += 1
            assert all(areg(m) != areg(i) for m in range(state['cur'] * nA, i)), 'A window overrun'
            if i in acand:
                self.I('s_cmp_eq_u32 %s, %d' % (sWa[name], i))
                self.I('s_cselect_b32 s3, 0x%x, 0' % ((-nAtot * 1024) & 0xffffffff))
                self.I('v_add_u32 %s, s3, %s' % (avaddr, avaddr))
            self.vm('buffer_load_dwordx4 %s, %s, %s, %s offen offset:%d sc1' %
                    (a(areg(i), 4), avaddr, srd(sLD), sK4(i >> 2), (i & 3) * 1024), (name, 'A', i))

        def read(n):
            s, f = divmod(n, nfr)
            if f == 0 and s in bars:
                nxt = min([b for b in bars if b > s] + [steps])
                need = {(st, quad_of(m)) for m in range(n, nxt * nfr)}
                self.bg(False)
                late = [i for i, j in enumerate(self.bgq) if (j[0].replace('QW', 'Q'), j[1]) in need]
                if late:
                    self.notes.append('LATE %s@%d x%d' % (name, s, late[-1] + 1))
                    self.bg_burst(late[-1] + 1)
                late = [j for j in self.bgq if (j[0].replace('QW', 'Q'), j[1]) in need]
                assert not late, ('%s: not issued before the barrier of step %d' % (name, s), late)
                self.wait(vm=need, lg=need)
                self.barrier()
            qn = quad_of(n)
            r = pool(n)
            if tr:
                byte = slotf(qn) * 4096 + 256 * f
                base, off = self.ldsaddr(byte, 'TrB' if f == 3 else 'TrA')
                for ab in range(2):
                    tag = self.lg('ds_read_b64_tr_b16 %s, %s offset:%d' % (v(r + 2 * ab, 2), base, off + 1024 * ab),
                                  (name, 'B', n))
                    self.q_read(slotf(qn), (st, qn), tag)
            else:
                base, off = self.ldsaddr(slotf(qn) * 4096 + (n & 3) * 1024)
                tag = self.lg('ds_read_b128 %s, %s offset:%d' % (v(r, 4), base, off), (name, 'B', n))
                self.q_read(slotf(qn), (st, qn), tag)
            if n + 1 == total or quad_of(n + 1) != qn:
                if not (name == 'P1a'):
                    self.q_done(slotf(qn))

        def run_shadow(s):
            while shadow and shadow[0][0] <= s and self.clk + 4 <= self.mf_free:
                x = shadow.pop(0)[1]
                x() if callable(x) else self.I(x)

        def filler(s):
            if self.bg_pend is not None:
                self.bg_step()
                run_shadow(s)
                return
            did = False
            if state['aacc'] >= 1 and a_ok():
                state['aacc'] -= 1
                aload()
                did = True
            if jobstart <= s < jobstop and not (did and self.bgq and self.bgq[0][0] == 'T') and \
                    (jobrate is None or state['jacc'] >= 1):
                n0 = len(self.bgq)
                self.bg_step()
                state['jacc'] -= n0 - len(self.bgq)
            run_shadow(s)

        if -2 in hooks:
            hooks[-2]()
        for _ in range(min(a0, nAtot)):
            aload()
        if -1 in hooks:
            hooks[-1]()
        for n in range(L):
            read(n)
        for n in range(total):
            s, f = divmod(n, nfr)
            if f == 0:
                state['cur'] = s
                if s in hooks:
                    self.bg(False)
                    hooks[s]()
                state['jacc'] = min(state['jacc'] + (jobrate or 0), 3)
                state['aacc'] = min(state['aacc'] + arate, arate + 1)
            vt = [(name, 'A', s * nA + q) for q in range(nA)] if f == 0 else []
            while f == 0 and state['an'] < (s + 1) * nA:
                aload()
            lt = [(name, 'B', m) for m in range(n, min(n + we, total))] if n % we == 0 else []
            if name == 'P1a' and f == 0:
                assert ('xu', s >> 2) in self.xdone
                lt.append(('xu', s >> 2))
            self.wait(vm=vt, lg=lt)
            ms = mf(s, f, pool(n))
            self.I(ms[0])
            if n + L < total:
                read(n + L)
            if len(ms) > 1:
                self.I(ms[1])
            filler(s)
        self.bg(False)
        if shadow:
            self.notes.append('%s shadow left %d' % (name, len(shadow)))
        for _, x in shadow:
            x() if callable(x) else self.I(x)

    def prologue(self):
        I = self.I
        I('s_cmp_ge_u32 s2, 256')
        I('s_cbranch_scc1 L_end')
        if self.cfg.get('diag'):
            I('s_memrealtime s[100:101]')
            I('s_memtime s[98:99]')
            I('s_waitcnt lgkmcnt(0)')
            I('v_mov_b32 %s, s100' % V['Stamp'])
            I('v_mov_b32 %s, s98' % V['Stamp0'])
        if self.cfg.get('diag') == 'probe':
            slot, off = self.cfg['probe']
            I('s_load_dwordx2 s[4:5], s[0:1], %d' % slot)
            I('s_mov_b32 s6, 0x%x' % (2048 * 1280 if slot != 88 else 0x10000000))
            I('s_mov_b32 s7, 0x20000')
            I('s_mul_i32 s3, s2, 8192')
            I('s_add_u32 s3, s3, 0x%x' % off)
            I('v_lshl_add_u32 v1, v0, 4, s3')
            I('s_mov_b32 s8, 0x%x' % (off + 0x270000))
            I('s_mov_b32 s9, 4096')
            I('s_waitcnt lgkmcnt(0)')
            I('buffer_load_dword v8, off, s[4:7], s8')
            I('s_waitcnt vmcnt(0)')
            I('s_memtime s[10:11]')
            I('s_waitcnt lgkmcnt(0)')
            I('buffer_load_dwordx4 v[8:11], v1, s[4:7], 0 offen')
            I('buffer_load_dwordx4 v[12:15], v1, s[4:7], s9 offen')
            I('s_waitcnt vmcnt(0)')
            I('s_memtime s[12:13]')
            I('s_waitcnt lgkmcnt(0)')
            I('s_sub_u32 s3, s12, s10')
            I('v_mov_b32 %s, s3' % V['Stamp0'])
        I('s_load_dwordx16 s[48:63], s[0:1], 0')
        I('s_load_dwordx8 s[64:71], s[0:1], 64')
        T = TMP
        lane, g, tok, x0, x1, x2 = v(T), v(T + 1), v(T + 2), v(T + 3), v(T + 4), v(T + 5)
        self.lane, self.g, self.tok = lane, g, tok
        NL = self.cfg.get('code_lines', 11)
        I('s_getpc_b64 s[100:101]')
        I('L_pc:')
        I('s_lshr_b32 s3, s2, 3')
        I('s_mul_i32 s3, s3, %d' % NL)
        I('v_add_lshl_u32 %s, v0, s3, 7' % x0)
        I('v_min_u32 %s, L_end-L_pc, %s' % (x0, x0))
        I('v_mov_b32 %s, s101' % x2)
        I('v_add_co_u32 %s, vcc, s100, %s' % (x1, x0))
        I('v_addc_co_u32 %s, vcc, 0, %s, vcc' % (x2, x2))
        I('v_cmp_gt_u32 vcc, %d, v0' % NL)
        I('s_and_saveexec_b64 s[100:101], vcc')
        I('s_cbranch_execz L_nopf')
        I('global_load_dword %s, %s, off' % (a(aDUM), v(T + 4, 2)))
        I('L_nopf:')
        I('s_mov_b64 exec, -1')
        I('v_lshrrev_b32 %s, 6, v0' % x0)
        I('v_and_b32 %s, 63, v0' % lane)
        I('v_readfirstlane_b32 %s, %s' % (sW, x0))
        I('s_and_b32 %s, s2, 7' % t0)
        I('s_lshr_b32 %s, s2, 7' % t1)
        I('s_lshl_b32 %s, %s, 1' % (t0, t0))
        I('s_add_u32 %s, %s, %s' % (sRb, t0, t1))
        I('s_bfe_u32 %s, s2, 0x40003' % sJ)
        I('s_and_b32 %s, %s, 7' % (sC, sJ))
        I('s_lshl_b32 %s, %s, 10' % (sW1k, sW))
        I('s_lshr_b32 %s, %s, 3' % (t2, sJ))
        I('s_lshl_b32 %s, %s, 2' % (t2, t2))
        I('s_add_u32 %s, %s, %s' % (t2, t2, sW))
        I('s_lshl_b32 %s, %s, 3' % (t3, sRb))
        I('s_add_u32 %s, %s, %s' % (t3, t3, t2))
        I('s_mul_i32 %s, %s, %d' % (t0, t3, 16 * 1280))
        I('s_mul_i32 %s, %s, 160' % (t1, sC))
        I('s_add_u32 %s, %s, %s' % (t0, t0, t1))
        I('v_lshrrev_b32 %s, 4, %s' % (g, lane))
        I('v_and_b32 %s, 15, %s' % (tok, lane))
        I('v_mul_u32_u24 %s, 1280, %s' % (x0, tok))
        I('v_add_u32 %s, %s, %s' % (x0, t0, x0))
        I('v_lshl_add_u32 %s, %s, 4, %s' % (V['X1'], g, x0))
        I('v_lshl_add_u32 %s, %s, 3, %s' % (V['X3'], g, x0))
        I('s_lshr_b32 %s, s2, 3' % t0)
        I('s_lshl_b32 %s, %s, 2' % (t0, t0))
        I('s_add_u32 %s, %s, %s' % (t0, t0, sW))
        I('s_mul_i32 %s, %s, 3840' % (t0, t0))
        I('v_min_u32 %s, 29, %s' % (x0, lane))
        I('v_lshl_add_u32 %s, %s, 7, %s' % (V['WT'], x0, t0))
        for b, size in ((sXO, 2048 * 1280), (sWQ, 640 * 3840)):
            I('s_mov_b32 s%d, 0x%x' % (b + 2, size))
            I('s_mov_b32 s%d, 0x20000' % (b + 3))
        I('s_waitcnt lgkmcnt(0)')
        I('s_mov_b64 s[%d:%d], s[48:49]' % (sXO, sXO + 1))
        I('s_mov_b64 s[%d:%d], s[50:51]' % (sWQ, sWQ + 1))
        XL = TMP + 40
        self.XL = XL
        self.vm('buffer_load_dwordx4 %s, %s, %s, 0 offen' % (v(XL, 4), V['X1'], srd(sXO)), 'x')
        self.wtouch(0)
        self.vm('buffer_load_dwordx4 %s, %s, %s, 0 offen offset:64' % (v(XL + 4, 4), V['X1'], srd(sXO)), 'x')
        self.vm('buffer_load_dwordx2 %s, %s, %s, 0 offen offset:128' % (v(XL + 8, 2), V['X3'], srd(sXO)), 'x')
        I('s_load_dword %s, s[70:71], 0' % sTagG)
        I('v_lshlrev_b32 %s, 4, %s' % (V['Rd0'], lane))
        I('s_mov_b64 s[%d:%d], s[70:71]' % (sWS, sWS + 1))
        I('s_mov_b32 s%d, 0x1000000' % (sWS + 2))
        I('s_mov_b32 s%d, 0x20000' % (sWS + 3))
        I('s_add_u32 s%d, s70, 0x%x' % (sLD, ARENA0))
        I('s_addc_u32 s%d, s71, 0' % (sLD + 1))
        I('s_mov_b32 s%d, 0x%x' % (sLD + 2, ARENA))
        I('s_mov_b32 s%d, 0x20000' % (sLD + 3))
        self.stamp(18)
        self.prepass1()
        self.prepass1_issue()
        self.small_loads(0)
        self.small_loads(1)
        if self.cfg.get('wt1_early', 1):
            self.wtouch(1)
        I('v_and_b32 %s, 3, %s' % (x0, lane))
        I('v_lshrrev_b32 %s, 1, %s' % (x1, x0))
        I('v_add_u32 %s, %s, %s' % (x1, x0, x1))
        I('v_cmp_eq_u32 vcc, 3, %s' % g)
        I('v_cndmask_b32 %s, %s, 2, vcc' % (x1, x1))
        I('v_cndmask_b32 %s, %s, %s, vcc' % (x0, g, x0))
        I('v_add_u32 %s, 1, %s' % (x2, x0))
        I('v_cmp_gt_u32 vcc, 2, %s' % x0)
        I('v_cndmask_b32 %s, 0, %s, vcc' % (x2, x2))
        I('v_mul_u32_u24 %s, 1280, %s' % (x2, x2))
        I('v_lshl_add_u32 %s, %s, 4, %s' % (x2, x1, x2))
        I('v_bfe_u32 %s, %s, 2, 2' % (x0, lane))
        I('v_mul_u32_u24 %s, 3840, %s' % (x0, x0))
        I('s_mul_i32 %s, %s, %d' % (t0, sW, 4 * 3840))
        I('s_mul_i32 %s, %s, 80' % (t1, sJ))
        I('s_add_u32 %s, %s, %s' % (t0, t0, t1))
        I('v_add3_u32 %s, %s, %s, %s' % (V['DQ'], x0, x2, t0))
        I('s_lshl_b32 %s, %s, 2' % (t0, sRb))
        I('s_add_u32 %s, %s, %s' % (t0, t0, sW))
        I('s_mul_i32 %s, %s, %d' % (t0, t0, 32 * 1280))
        I('v_lshrrev_b32 %s, 3, %s' % (x0, lane))
        I('v_mul_u32_u24 %s, 1280, %s' % (x0, x0))
        I('v_and_b32 %s, 7, %s' % (x1, lane))
        I('v_xor_b32 %s, %s, %s' % (x1, x1, g))
        I('v_lshlrev_b32 %s, 4, %s' % (x1, x1))
        I('v_add3_u32 %s, %s, %s, %s' % (v(XD), x0, x1, t0))
        I('v_xor_b32 %s, 64, %s' % (v(XD + 1), v(XD)))
        I('v_add_u32 %s, 10240, %s' % (v(XD + 1), v(XD + 1)))
        I('v_add_u32 %s, 20480, %s' % (v(XD + 2), v(XD)))
        I('v_add_u32 %s, 20480, %s' % (v(XD + 3), v(XD + 1)))
        xs = [('X', (G, p)) for G in range(10) for p in range(4)]
        qs = [('Q', n) for n in range(40)]
        order = xs[:4] + qs[:2]
        for i in range(4, 40):
            order += [xs[i], qs[i - 2]]
        order += qs[38:]
        self.p1a_jobs = [(a_, b_, 0) for a_, b_ in order]
        j0 = self.cfg.get('p1a_j0', 24)
        self.bgq = [(a_, b_, self.cfg.get('p0_gap', 60)) for a_, b_, c_ in self.p1a_jobs[:j0]]
        self.p1a_jobs = self.p1a_jobs[j0:]
        self.stamp(19)
        self.bg(True)
        self.addresses(1)
        self.addresses(2)
        I('v_and_b32 %s, 31, %s' % (x0, lane))
        I('v_bfe_u32 %s, %s, 1, 3' % (x1, lane))
        I('v_lshrrev_b32 %s, 5, %s' % (x2, lane))
        I('v_xor_b32 %s, %s, %s' % (x1, x1, x2))
        I('v_lshlrev_b32 %s, 4, %s' % (x1, x1))
        I('v_lshl_add_u32 %s, %s, 7, %s' % (x0, x0, x1))
        I('s_lshl_b32 %s, %s, 2' % (t0, sW1k))
        I('s_add_u32 %s, %s, %d' % (t0, t0, XRING0 * 4096))
        I('v_add_u32 %s, %s, %s' % (v(XR), t0, x0))
        for i in range(1, 4):
            I('v_xor_b32 %s, %d, %s' % (v(XR + i), 32 * i, v(XR)))
        self.bg(False)

    def wtouch(self, m):
        if m:
            self.I('v_add_u32 %s, %d, %s' % (V['WT'], 128 * 3840, V['WT']))
        if self.cfg.get('wtouch', 1):
            self.vm('buffer_load_dword %s, %s, %s, 0 offen' % (a(aDUM), V['WT'], srd(sWQ)))

    def prepass1(self):
        I = self.I
        lane = self.lane
        T = TMP + 8
        po = [v(T + i) for i in range(5)]
        e, row, u, y = v(T + 5), v(T + 6), v(T + 7), v(T + 8)
        I('s_mov_b32 s%d, 0x20000' % (sPS + 3))
        I('s_cmp_lt_u32 s2, 40')
        I('s_cbranch_scc1 L_pp_wo')
        I('s_cmp_lt_u32 s2, 148')
        I('s_cbranch_scc1 L_pp_w1')
        I('s_sub_u32 %s, s2, 148' % t0)
        I('s_lshl_b32 %s, %s, 2' % (t0, t0))
        I('s_add_u32 %s, %s, %s' % (t0, t0, sW))
        I('s_and_b32 %s, %s, 7' % (t1, t0))
        I('s_lshr_b32 %s, %s, 3' % (t0, t0))
        I('s_mul_i32 %s, %s, 272' % (t4, t1))
        I('s_mul_i32 %s, %s, 5' % (t5, t0))
        I('s_add_u32 %s, %s, %s' % (t4, t4, t5))
        I('s_lshl_b32 %s, %s, 10' % (t4, t4))
        I('s_add_u32 %s, %s, 0x%x' % (sPst[0], t4, W2T))
        I('s_lshl_b32 %s, %s, 5' % (t0, t0))
        I('s_mov_b32 %s, 4' % t4)
        I('s_mov_b32 %s, 0' % t5)
        I('s_mov_b32 %s, 16' % t6)
        I('s_mov_b32 s%d, s62' % sPS)
        I('s_mov_b32 s%d, s63' % (sPS + 1))
        I('s_mov_b32 s%d, 0x%x' % (sPS + 2, 1728 * 1280))
        I('s_branch L_pp_80')
        I('L_pp_wo:')
        I('s_lshl_b32 %s, s2, 2' % t0)
        I('s_add_u32 %s, %s, %s' % (t0, t0, sW))
        I('s_and_b32 %s, %s, 7' % (t1, t0))
        I('s_lshr_b32 %s, %s, 3' % (t0, t0))
        I('s_mul_i32 %s, %s, 100' % (t4, t1))
        I('s_mul_i32 %s, %s, 5' % (t5, t0))
        I('s_add_u32 %s, %s, %s' % (t4, t4, t5))
        I('s_lshl_b32 %s, %s, 10' % (t4, t4))
        I('s_add_u32 %s, %s, 0x%x' % (sPst[0], t4, WOT))
        I('s_mul_i32 %s, %s, 52' % (t4, t0))
        I('s_lshr_b32 %s, %s, 8' % (t4, t4))
        I('s_mul_i32 %s, %s, 5' % (t5, t4))
        I('s_sub_u32 %s, %s, %s' % (t5, t0, t5))
        I('s_mul_i32 %s, %s, 160' % (t0, t4))
        I('s_mul_i32 %s, %s, 40' % (t6, t5))
        I('s_cmp_eq_u32 %s, 4' % t5)
        I('s_cselect_b32 %s, 16, %s' % (t6, t6))
        I('s_cselect_b32 %s, 40, 8' % t4)
        I('s_cselect_b32 %s, 0, 8' % t5)
        I('s_add_u32 %s, %s, %s' % (t0, t0, t6))
        I('s_mov_b32 %s, 4' % t6)
        I('s_mov_b32 s%d, s54' % sPS)
        I('s_mov_b32 s%d, s55' % (sPS + 1))
        I('s_mov_b32 s%d, 0x%x' % (sPS + 2, 640 * 1280))
        I('L_pp_80:')
        I('s_mul_i32 %s, %s, 160' % (t1, t1))
        I('s_mov_b32 %s, 0' % sTy)
        for n in range(5):
            I('v_add_u32 %s, %d, %s' % (e, 64 * n, lane))
            I('v_mul_u32_u24 %s, 6554, %s' % (row, e))
            I('v_lshrrev_b32 %s, 16, %s' % (row, row))
            I('v_mul_u32_u24 %s, 10, %s' % (u, row))
            I('v_sub_u32 %s, %s, %s' % (u, e, u))
            I('v_and_b32 %s, 3, %s' % (e, row))
            I('v_add_u32 %s, %s, %s' % (e, t0, e))
            I('v_lshrrev_b32 %s, 3, %s' % (y, row))
            I('v_mad_u32_u24 %s, %s, %s, %s' % (e, y, t4, e))
            I('v_lshrrev_b32 %s, 4, %s' % (y, row))
            I('v_mad_u32_u24 %s, %s, %s, %s' % (e, y, t5, e))
            I('v_bfe_u32 %s, %s, 2, 1' % (y, row))
            I('v_mad_u32_u24 %s, %s, %s, %s' % (e, y, t6, e))
            I('v_mul_u32_u24 %s, 1280, %s' % (e, e))
            I('v_lshl_add_u32 %s, %s, 4, %s' % (e, u, e))
            I('v_add_u32 %s, %s, %s' % (po[n], t1, e))
        I('s_mov_b32 %s, 1024' % t0)
        I('v_mov_b32 %s, 0x%x' % (V['Cs'], OOB))
        I('s_branch L_pp_go')
        I('L_pp_w1:')
        I('s_sub_u32 %s, s2, 40' % t0)
        I('s_and_b32 %s, %s, 3' % (t1, t0))
        I('s_lshr_b32 %s, %s, 2' % (t0, t0))
        I('s_lshl_b32 %s, %s, 2' % (t4, t0))
        I('s_add_u32 %s, %s, %s' % (t4, t4, sW))
        I('s_lshl_b32 %s, %s, 8' % (t5, t4))
        I('s_lshl_b32 %s, %s, 2' % (t6, t1))
        I('s_add_u32 %s, %s, %s' % (t5, t5, t6))
        I('s_add_u32 %s, %s, 0x%x' % (t5, t5, CSP))
        I('v_add_u32 %s, %s, %s' % (e, t5, V['Rd0']))
        I('v_mov_b32 %s, 0x%x' % (V['Cs'], OOB))
        I('v_cmp_gt_u32 vcc, 16, %s' % lane)
        I('v_cndmask_b32 %s, %s, %s, vcc' % (V['Cs'], V['Cs'], e))
        I('s_mul_i32 %s, %s, 43' % (t5, t4))
        I('s_lshr_b32 %s, %s, 8' % (t5, t5))
        I('s_mul_i32 %s, %s, 6' % (t6, t5))
        I('s_sub_u32 %s, %s, %s' % (t6, t4, t6))
        I('s_sub_u32 s3, %s, 96' % t4)
        I('s_cmp_ge_u32 %s, 96' % t4)
        I('s_cselect_b32 %s, s3, %s' % (t5, t5))
        I('s_cselect_b32 %s, 6, %s' % (t6, t6))
        I('s_mul_i32 %s, %s, 140' % (t5, t5))
        I('s_mul_i32 s3, %s, 35' % t1)
        I('s_add_u32 %s, %s, s3' % (t5, t5))
        I('s_add_u32 %s, %s, %s' % (t5, t5, t6))
        I('s_lshl_b32 %s, %s, 10' % (t5, t5))
        I('s_add_u32 %s, %s, 0x%x' % (sPst[0], t5, W1T))
        I('s_mul_i32 %s, %s, 160' % (t1, t1))
        I('s_mul_i32 %s, %s, 40' % (t5, sW))
        I('s_add_u32 %s, %s, %s' % (t1, t1, t5))
        I('s_mul_i32 %s, %s, 3456' % (t1, t1))
        I('s_lshl_b32 %s, %s, 7' % (t0, t0))
        I('s_add_u32 %s, %s, %s' % (t1, t1, t0))
        I('v_lshrrev_b32 %s, 3, %s' % (row, lane))
        I('v_mul_u32_u24 %s, 3456, %s' % (row, row))
        I('v_and_b32 %s, 7, %s' % (u, lane))
        I('v_lshl_add_u32 %s, %s, 4, %s' % (row, u, row))
        I('v_add_u32 %s, %s, %s' % (po[0], t1, row))
        for n in range(1, 5):
            I('v_add_u32 %s, %d, %s' % (po[n], 8 * 3456 * n, po[0]))
        I('s_mov_b32 s%d, s58' % sPS)
        I('s_mov_b32 s%d, s59' % (sPS + 1))
        I('s_mov_b32 s%d, 0x%x' % (sPS + 2, 640 * 3456))
        I('s_mov_b32 %s, 1' % sTy)
        I('s_mov_b32 %s, 7168' % t0)
        I('L_pp_go:')
        for n in range(1, 5):
            I('s_add_u32 %s, %s, %s' % (sPst[n], sPst[n - 1], t0))
        self.po = po

    def prepass1_issue(self):
        I = self.I
        po = self.po
        I('s_mul_i32 %s, %s, 5' % (t0, sW1k))
        for n in range(5):
            I('s_add_u32 m0, %s, %d' % (t0, STG_Q0 * 4096 + 1024 * n))
            tag = self.vm('buffer_load_dwordx4 %s, %s, 0 offen lds' % (po[n], srd(sPS)), ('stg', n))
            for q in range(5):
                self.q_fill(STG_Q0 + q, 'stg', tag)

    def prepass2(self):
        I = self.I
        T = TMP
        fr = T
        bA, bB, x0, x1, one, cs = v(T + 20), v(T + 21), v(T + 22), v(T + 23), T + 24, T + 28
        I('v_lshrrev_b32 %s, 8, %s' % (x0, V['Rd0']))
        I('v_bfe_u32 %s, %s, 6, 2' % (x1, V['Rd0']))
        for i in range(4):
            I('v_mov_b32 %s, 0x3f803f80' % v(one + i))
        I('s_cmp_eq_u32 %s, 1' % sTy)
        I('s_cbranch_scc1 L_p2_w1')
        I('v_lshl_add_u32 %s, %s, 3, %s' % (x0, x0, x1))
        I('v_mul_u32_u24 %s, 160, %s' % (x0, x0))
        I('s_mul_i32 %s, %s, 5' % (t0, sW1k))
        I('s_add_u32 %s, %s, %d' % (t0, t0, STG_Q0 * 4096))
        I('v_add_u32 %s, %s, %s' % (x0, t0, x0))
        I('v_and_b32 %s, 48, %s' % (x1, V['Rd0']))
        I('v_add_u32 %s, %s, %s' % (bA, x0, x1))
        I('v_lshrrev_b32 %s, 1, %s' % (x1, x1))
        I('v_add_u32 %s, %s, %s' % (bB, x0, x1))
        for t in range(5):
            for ab in range(2):
                off = 640 * ab + (64 * (t >> 1) + 8 * (t & 1) if t < 4 else 128)
                I('ds_read_b64_tr_b16 %s, %s offset:%d' % (v(fr + 4 * t + 2 * ab, 2), bA if t < 4 else bB, off))
        I('s_branch L_p2_go')
        I('L_p2_w1:')
        I('v_lshl_add_u32 %s, %s, 3, %s' % (bA, x0, x1))
        I('v_lshl_add_u32 %s, %s, 2, %s' % (bB, x0, x1))
        I('v_and_b32 %s, 48, %s' % (x1, V['Rd0']))
        I('v_lshrrev_b32 %s, 1, %s' % (x1, x1))
        I('s_lshl_b32 %s, %s, 5' % (t0, sW))
        I('s_add_u32 %s, %s, %d' % (t0, t0, STG_Q0 * 4096))
        I('v_add_u32 %s, %s, %s' % (x1, t0, x1))
        I('v_lshl_add_u32 %s, %s, 7, %s' % (bA, bA, x1))
        I('v_lshl_add_u32 %s, %s, 7, %s' % (bB, bB, x1))
        for i in range(5):
            for ab in range(2):
                off = ((80 * (i >> 1) + 32 * (i & 1) + 4 * ab) if i < 4 else (80 * ab + 64)) * 128
                tag = self.lg('ds_read_b64_tr_b16 %s, %s offset:%d' % (v(fr + 4 * i + 2 * ab, 2), bA if i < 4 else bB, off),
                              'stgr')
                for q in range(5):
                    self.q_read(STG_Q0 + q, 'stg', tag)
        I('L_p2_go:')
        for q in range(5):
            self.q_done(STG_Q0 + q)
        self.wait(lg=['stgr'])
        for i in range(5):
            self.vm('buffer_store_dwordx4 %s, %s, %s, %s offen sc1' % (v(fr + 4 * i, 4), V['Rd0'], srd(sWS), sPst[i]), 'pre')
            I('v_mfma_f32_16x16x32_bf16 %s, %s, %s, %s' % (v(cs, 4), v(one, 4), v(fr + 4 * i, 4), v(cs, 4) if i else '0'))
        self.vm('buffer_store_dword %s, %s, %s, 0 offen sc1' % (v(cs), V['Cs'], srd(sWS)), 'pre')

    def small_loads(self, part):
        I = self.I
        T = TMP + 20
        x0, x1, x2, x3 = v(T), v(T + 1), v(T + 2), v(T + 5)
        self.B1L, self.B2L = T + 3, T + 4
        if part == 1:
            I('s_lshr_b32 %s, %s, 2' % (t1, sW1k))
            I('s_add_u32 m0, %s, %d' % (t1, TPHI))
            I('s_mov_b64 s[%d:%d], s[60:61]' % (sPS, sPS + 1))
            I('s_mov_b32 s%d, %d' % (sPS + 2, 1728 * 2))
            self.vm('buffer_load_dword %s, %s, 0 offen lds' % (x2, srd(sT2)), 'phi')
            self.vm('buffer_load_dword %s, %s, 0 offen offset:1024 lds' % (x2, srd(sT2)), 'phi')
            self.vm('buffer_load_ushort %s, %s, %s, 0 offen' % (v(self.B1L), x3, srd(sPS)), 'bias')
            I('s_mov_b64 s[%d:%d], s[64:65]' % (sT2, sT2 + 1))
            I('s_mov_b32 s%d, %d' % (sT2 + 2, 640 * 2))
            self.vm('buffer_load_ushort %s, %s, %s, 0 offen' % (v(self.B2L), x0, srd(sT2)), 'bias')
            return
        I('s_mov_b64 s[%d:%d], s[52:53]' % (sT2, sT2 + 1))
        I('s_mov_b32 s%d, %d' % (sT2 + 2, 32 * 800))
        I('s_mov_b32 s%d, 0x20000' % (sT2 + 3))
        I('s_mul_i32 %s, %s, 1600' % (t0, sJ))
        I('v_lshl_add_u32 %s, v0, 2, %s' % (x2, t0))
        I('s_mul_i32 %s, %s, 96' % (t0, sJ))
        I('s_lshl_b32 %s, %s, 4' % (t1, sJ))
        I('s_add_u32 %s, %s, %d' % (t1, t1, 1536 - 96))
        I('v_add_u32 %s, %s, v0' % (x0, t0))
        I('v_add_u32 %s, %s, v0' % (x1, t1))
        I('v_cmp_gt_u32 vcc, 96, v0')
        I('v_cndmask_b32 %s, %s, %s, vcc' % (x0, x1, x0))
        I('v_lshlrev_b32 v1, 4, %s' % x0)
        I('v_lshlrev_b32 %s, 1, %s' % (x3, x0))
        I('v_bfe_u32 %s, v0, 2, 2' % x0)
        I('v_lshlrev_b32 %s, 3, %s' % (x0, x0))
        I('v_bfe_u32 %s, v0, 4, 1' % x1)
        I('v_lshl_add_u32 %s, %s, 2, %s' % (x0, x1, x0))
        I('v_and_b32 %s, 0x23, v0' % x1)
        I('v_add_u32 %s, %s, %s' % (x0, x0, x1))
        I('v_cmp_gt_u32 vcc, 64, v0')
        I('v_cndmask_b32 %s, v0, %s, vcc' % (x0, x0))
        I('s_mul_i32 %s, %s, 80' % (t0, sC))
        I('v_add_lshl_u32 %s, %s, %s, 1' % (x0, x0, t0))

    def addresses(self, part):
        I = self.I
        lane, g, tok = self.lane, self.g, self.tok
        T = TMP + 3
        x0, x1, x2, x3 = v(T), v(T + 1), v(T + 2), v(T + 3)
        if part == 1:
            for i in range(1, 16):
                I('s_mov_b32 %s, %d' % (sK4(i), 4096 * i))
            I('s_mov_b32 %s, %d' % (sH54, 54 * 1024))
            for b in (sST, sTC):
                I('s_mov_b64 s[%d:%d], s[%d:%d]' % (b, b + 1, sLD, sLD + 1))
                I('s_mov_b32 s%d, 0x%x' % (b + 2, ARENA))
                I('s_mov_b32 s%d, 0x20000' % (b + 3))
            I('s_mov_b32 %s, 0' % sStep)
            I('s_mov_b32 %s, 0' % sLayer)
            I('s_mov_b32 %s, 0' % sSlow)
            I('s_mov_b32 %s, 0x%x' % (sTO, self.cfg.get('timeout', 0x20000)))
            I('s_lshl_b32 %s, %s, 2' % (t4, sRb))
            I('s_add_u32 %s, %s, %s' % (t4, t4, sW))
            I('s_lshr_b32 %s, %s, 1' % (t5, t3))
            I('s_and_b32 %s, %s, 1' % (t6, t2))
            I('s_lshl_b32 %s, %s, 2' % (sKVFp, sRb))
            I('s_mul_i32 %s, %s, %d' % (t4, t4, TGS))
            I('s_add_u32 %s, %s, 0x%x' % (t4, t4, PAD))
            I('s_mul_i32 %s, %s, %d' % (t5, t5, TGS))
            I('s_add_u32 %s, %s, 0x%x' % (t5, t5, PAD))
            I('v_add_u32 %s, %s, %s' % (V['A1'], t4, V['Rd0']))
            I('s_mul_i32 %s, %s, 20480' % (t0, t6))
            I('s_add_u32 %s, %s, %s' % (t0, t0, t5))
            I('s_add_u32 %s, %s, 0x%x' % (t0, t0, BE))
            I('v_add_u32 %s, %s, %s' % (V['A2'], t0, V['Rd0']))
            I('s_mul_i32 %s, %s, %d' % (t0, t6, 54 * 1024))
            I('s_add_u32 %s, %s, %s' % (t0, t0, t5))
            I('s_add_u32 %s, %s, 0x%x' % (t0, t0, BE))
            I('v_add_u32 %s, %s, %s' % (V['A4'], t0, V['Rd0']))
            I('s_mov_b32 %s, %s' % (t0, t5))
            I('s_mul_i32 %s, %s, %d' % (t1, sC, 5120))
            I('s_add_u32 %s, %s, %s' % (t1, t1, t0))
            I('s_lshl_b32 s3, %s, 8' % t6)
            I('s_add_u32 %s, %s, s3' % (t1, t1))
            I('v_lshl_add_u32 %s, %s, 4, %s' % (x0, tok, t1))
            I('v_lshl_add_u32 %s, %s, 9, %s' % (V['SX1'], g, x0))
            I('v_lshrrev_b32 %s, 1, %s' % (x1, g))
            I('v_lshl_add_u32 %s, %s, 9, %s' % (x0, x1, x0))
            I('v_and_b32 %s, 1, %s' % (x2, g))
            I('v_lshl_add_u32 %s, %s, 3, %s' % (x0, x2, x0))
            I('v_add_u32 %s, 4096, %s' % (V['SX3'], x0))
            I('s_lshr_b32 %s, %s, 1' % (t1, sC))
            I('s_mul_i32 %s, %s, 10' % (t1, t1))
            I('s_add_u32 %s, %s, %s' % (t1, t1, t6))
            I('s_lshl_b32 %s, %s, 10' % (t1, t1))
            I('s_add_u32 %s, %s, %s' % (t0, t0, t1))
            I('s_and_b32 %s, %s, 1' % (t1, sC))
            I('s_lshl_b32 s3, %s, 12' % t1)
            I('s_add_u32 s3, s3, %s' % t0)
            I('v_add_u32 %s, s3, %s' % (V['S11'], V['Rd0']))
            I('s_lshl_b32 s3, %s, 3' % t1)
            I('s_add_u32 s3, s3, %s' % t0)
            I('s_add_u32 s3, s3, 8192')
            I('v_add_u32 %s, s3, %s' % (V['S13'], V['Rd0']))
            I('s_lshl_b32 s3, %s, 3' % t1)
            I('s_add_u32 %s, %s, s3' % (t0, t5))
            I('s_lshr_b32 s3, %s, 1' % sC)
            I('s_lshl_b32 s3, s3, 9')
            I('s_add_u32 %s, %s, s3' % (t0, t0))
            I('s_lshl_b32 s3, %s, 8' % t6)
            I('s_add_u32 %s, %s, s3' % (t0, t0))
            I('s_add_u32 %s, %s, 0x%x' % (t0, t0, ST))
            I('v_lshl_add_u32 %s, %s, 4, %s' % (x0, tok, t0))
            I('v_lshl_add_u32 %s, %s, 2, %s' % (V['SSt'], x1, x0))
            I('s_add_u32 %s, %s, 0x%x' % (t0, t4, ST))
            I('v_add_u32 %s, %s, %s' % (V['LSt1'], t0, V['Rd0']))
            I('v_lshl_add_u32 %s, %s, 4, %s' % (x0, tok, t0))
            I('v_lshl_add_u32 %s, %s, 9, %s' % (V['LSt3'], g, x0))
            I('s_add_u32 %s, %s, 0x%x' % (sFl32, t4, FL))
            I('s_add_u32 %s, %s, 0x%x' % (sFl16, t5, FL))
            I('s_lshl_b32 s3, %s, 3' % t6)
            I('s_add_u32 s3, s3, %s' % sC)
            I('s_lshl_b32 s3, s3, 2')
            I('s_add_u32 %s, %s, s3' % (sFlP16, sFl16))
            I('s_lshl_b32 s3, %s, 2' % sJ)
            I('s_add_u32 %s, %s, s3' % (sFlP32, sFl32))
            I('v_lshlrev_b32 %s, 2, %s' % (V['Fl'], tok))
            I('s_lshl_b32 %s, %s, 7' % (sKVFc, sJ))
            I('s_add_u32 %s, %s, 0x%x' % (sKVFc, sKVFc, KVF))
            I('s_add_u32 %s, %s, %s' % (sKVFp, sKVFp, sKVFc))
            I('s_lshl_b32 %s, s2, 2' % sPreP)
            I('s_add_u32 %s, %s, 0x%x' % (sPreP, sPreP, PREF))
            self.force_wait('lgkmcnt(0)')
            I('s_add_u32 %s, %s, 0x9e377900' % (sTagG, sTagG))
            I('s_and_b32 %s, %s, 0xffffff00' % (sTagG, sTagG))
            I('s_getreg_b32 s3, hwreg(HW_REG_XCC_ID)')
            I('s_and_b32 s3, s3, 15')
            I('s_or_b32 s3, s3, 16')
            I('s_or_b32 %s, %s, s3' % (sTagL, sTagG))
            I('v_mov_b32 %s, %s' % (V['TagG'], sTagG))
            I('v_mov_b32 %s, %s' % (V['TagL'], sTagL))
            return
        I('v_add_u32 %s, 0x10000, %s' % (V['Rd1'], V['Rd0']))
        I('v_add_u32 %s, 0x20000, %s' % (V['Rd2'], V['Rd0']))
        for k in range(3):
            I('v_add_u32 %s, %s, %s' % (V['RdW%d' % k], sW1k, V['Rd%d' % k]))
        I('v_lshrrev_b32 %s, 5, %s' % (x0, lane))
        I('v_lshlrev_b32 %s, 11, %s' % (x0, x0))
        I('v_bfe_u32 %s, %s, 2, 2' % (x1, lane))
        I('v_lshl_add_u32 %s, %s, 6, %s' % (x0, x1, x0))
        I('v_and_b32 %s, 1, %s' % (x1, lane))
        I('v_lshl_add_u32 %s, %s, 5, %s' % (x2, x1, x0))
        I('v_and_b32 %s, 16, %s' % (x1, lane))
        I('v_add_u32 %s, %s, %s' % (x2, x2, x1))
        I('v_lshl_add_u32 %s, %s, 1, %s' % (x0, x1, x0))
        I('v_and_b32 %s, 2, %s' % (x1, lane))
        I('v_lshl_add_u32 %s, %s, 2, %s' % (V['TrA0'], x1, x2))
        I('v_and_b32 %s, 3, %s' % (x1, lane))
        I('v_lshl_add_u32 %s, %s, 3, %s' % (V['TrB0'], x1, x0))
        for k in 'AB':
            I('v_add_u32 %s, 0x10000, %s' % (V['Tr%s1' % k], V['Tr%s0' % k]))
            I('v_add_u32 %s, 0x20000, %s' % (V['Tr%s2' % k], V['Tr%s0' % k]))
        I('v_lshrrev_b32 %s, 1, %s' % (x1, g))
        I('v_and_b32 %s, 1, %s' % (x2, g))
        I('s_lshr_b32 %s, %s, 2' % (t1, sJ))
        I('s_mul_i32 %s, %s, 5120' % (t1, t1))
        I('s_add_u32 %s, %s, %s' % (t0, t4, t1))
        I('s_add_u32 %s, %s, 0x%x' % (t0, t0, BE))
        I('s_and_b32 %s, %s, 3' % (t1, sJ))
        I('v_mul_u32_u24 %s, 20480, %s' % (x0, x2))
        I('v_lshl_add_u32 %s, %s, 4, %s' % (x0, tok, x0))
        I('s_lshl_b32 s3, %s, 10' % t1)
        I('s_add_u32 s3, s3, %s' % t0)
        I('v_add_u32 %s, s3, %s' % (x3, x0))
        I('v_lshl_add_u32 %s, %s, 8, %s' % (V['SO1'], x1, x3))
        I('s_lshl_b32 s3, %s, 8' % t1)
        I('s_add_u32 s3, s3, %s' % t0)
        I('s_add_u32 s3, s3, 4096')
        I('v_add_u32 %s, s3, %s' % (x3, x0))
        I('v_mov_b32 %s, 0x%x' % (V['SO2'], OOB))
        I('v_cmp_gt_u32 vcc, 32, %s' % lane)
        I('v_cndmask_b32 %s, %s, %s, vcc' % (V['SO2'], V['SO2'], x3))
        I('s_add_u32 %s, %s, 0x%x' % (t0, t4, BE))
        I('s_mul_i32 s3, %s, 3072' % sJ)
        I('s_add_u32 s3, s3, %s' % t0)
        I('v_add_u32 %s, s3, %s' % (V['SH1'], V['Rd0']))
        I('s_lshr_b32 s3, %s, 1' % sJ)
        I('s_add_u32 s3, s3, 48')
        I('s_lshl_b32 s3, s3, 10')
        I('s_add_u32 %s, %s, s3' % (t0, t0))
        I('s_and_b32 s3, %s, 1' % sJ)
        I('s_lshl_b32 s3, s3, 3')
        I('s_add_u32 %s, %s, s3' % (t0, t0))
        I('s_cmp_ge_u32 %s, 12' % sJ)
        I('s_cselect_b32 %s, 0x40000000, %s' % (t0, t0))
        I('v_add_u32 %s, %s, %s' % (V['SH2'], t0, V['Rd0']))
        I('s_mul_i32 %s, %s, %d' % (sOb, sC, 100 * 1024))
        I('s_add_u32 %s, %s, 0x%x' % (sOb, sOb, WOT - slotO(0) * 4096))
        I('s_mul_i32 %s, %s, %d' % (sF1b, sJ, 140 * 1024))
        I('s_add_u32 %s, %s, 0x%x' % (sF1b, sF1b, W1T - slotF1(0) * 4096))
        I('s_mul_i32 %s, %s, %d' % (sF2b, sC, 272 * 1024))
        I('s_add_u32 %s, %s, 0x%x' % (sF2b, sF2b, W2T - slotF2(0) * 4096))
        I('s_lshl_b32 %s, %s, 16' % (t0, sJ))
        I('s_add_u32 %s, %s, 0x%x' % (t0, t0, KVP))
        I('v_lshl_add_u32 %s, v0, 4, %s' % (x0, t0))
        I('v_mov_b32 %s, 0x40000000' % V['KG'])
        I('v_cmp_gt_u32 vcc, %d, v0' % (10 * KU))
        I('v_cndmask_b32 %s, %s, %s, vcc' % (V['KG'], V['KG'], x0))
        I('s_lshl_b32 s3, %s, 12' % sRb)
        I('s_add_u32 %s, %s, s3' % (t0, t0))
        I('s_lshr_b32 %s, %s, 1' % (t5, sW))
        I('s_and_b32 %s, %s, 1' % (t6, sW))
        I('s_mul_i32 s3, %s, %d' % (t5, 80 * KU))
        I('s_add_u32 %s, %s, s3' % (t0, t0))
        I('s_lshl_b32 s3, %s, 4' % t6)
        I('v_add_u32 %s, s3, %s' % (x0, tok))
        I('v_cmp_gt_u32 vcc, %d, %s' % (KU, x0))
        I('v_lshl_add_u32 %s, %s, 4, %s' % (x0, x0, t0))
        I('v_mov_b32 %s, 0x40000000' % x3)
        I('v_cndmask_b32 %s, %s, %s, vcc' % (x0, x3, x0))
        I('v_mul_u32_u24 %s, %d, %s' % (V['KS1'], 16 * KU, g))
        I('v_add_u32 %s, %s, %s' % (V['KS1'], V['KS1'], x0))
        I('v_lshl_add_u32 %s, %s, 3, %s' % (x0, g, x0))
        I('v_add_u32 %s, %d, %s' % (x0, 64 * KU, x0))
        I('v_cmp_gt_u32 vcc, 32, %s' % lane)
        I('v_cndmask_b32 %s, %s, %s, vcc' % (V['KS2'], x3, x0))
        I('v_lshlrev_b32 %s, 4, v0' % V['KW'])
        I('v_add_u32 %s, %d, %s' % (V['KW'], KS_Q * 4096, V['KW']))
        I('v_and_b32 %s, 31, %s' % (x0, lane))
        I('v_lshlrev_b32 %s, 7, %s' % (x0, x0))
        I('v_lshl_add_u32 %s, %s, 14, %s' % (x0, x1, x0))
        I('v_and_b32 %s, 7, %s' % (x3, lane))
        I('v_lshl_add_u32 %s, %s, 4, %s' % (x0, x3, x0))
        I('s_lshl_b32 s3, %s, 12' % sW)
        I('s_add_u32 s3, s3, %d' % (T_Q0 * 4096))
        I('v_add_u32 %s, s3, %s' % (V['TW'], x0))
        I('v_bfe_u32 %s, %s, 2, 3' % (x0, lane))
        I('v_lshl_add_u32 %s, %s, 4, %s' % (x3, x1, x0))
        I('v_lshlrev_b32 %s, 7, %s' % (x3, x3))
        I('s_lshl_b32 s3, %s, 14' % t5)
        I('s_add_u32 s3, s3, %d' % (T_Q0 * 4096))
        I('v_add_u32 %s, s3, %s' % (x3, x3))
        I('v_and_b32 %s, 1, %s' % (x2, lane))
        I('v_lshl_add_u32 %s, %s, 3, %s' % (x3, x2, x3))
        I('v_bfe_u32 %s, %s, 1, 1' % (x2, lane))
        I('v_xor_b32 %s, %s, %s' % (V['KA'], x2, x0))
        I('v_lshl_add_u32 %s, %s, 4, %s' % (V['KA'], V['KA'], x3))
        I('v_add_u32 %s, 5, %s' % (x2, x2))
        I('s_cmp_eq_u32 %s, 1' % t6)
        I('s_cselect_b64 vcc, -1, 0')
        I('v_cndmask_b32 %s, %s, 7, vcc' % (x2, x2))
        I('v_xor_b32 %s, %s, %s' % (x2, x2, x0))
        I('v_lshl_add_u32 %s, %s, 4, %s' % (V['KB'], x2, x3))
        I('v_bfe_u32 %s, %s, 3, 2' % (x0, lane))
        I('v_bfe_u32 %s, %s, 2, 1' % (x2, lane))
        I('v_cmp_gt_u32 vcc, 2, %s' % x0)
        I('v_cndmask_b32 %s, 1, %s, vcc' % (x2, x2))
        I('v_lshlrev_b32 %s, 3, %s' % (x2, x2))
        I('v_lshl_add_u32 %s, %s, 2, %s' % (x2, x0, x2))
        I('v_and_b32 %s, 3, %s' % (x0, lane))
        I('v_add_u32 %s, %s, %s' % (x2, x2, x0))
        I('v_mul_u32_u24 %s, %d, %s' % (x0, KU, x1))
        I('v_add_lshl_u32 %s, %s, %s, 4' % (x0, x0, x2))
        I('v_add_u32 %s, %d, %s' % (V['R1'], KS_Q * 4096, x0))
        I('v_cmp_gt_u32 vcc, 32, %s' % lane)
        I('v_mov_b32 %s, %d' % (x3, 6 * KU + 4))
        I('v_cndmask_b32 %s, %s, %s, vcc' % (x0, x3, x2))
        I('v_cndmask_b32 %s, %s, %d, vcc' % (x3, x2, KU + 4))
        I('v_lshlrev_b32 %s, 4, %s' % (x0, x0))
        I('v_lshlrev_b32 %s, 4, %s' % (x3, x3))
        I('v_add_u32 %s, %d, %s' % (V['R20'], KS_Q * 4096 + 64 * KU, x0))
        I('v_add_u32 %s, %d, %s' % (V['R21'], KS_Q * 4096 + 144 * KU, x3))
        I('v_lshlrev_b32 %s, 4, %s' % (x0, x1))
        I('v_add_u32 %s, %d, %s' % (V['Tb1'], PA, x0))
        I('v_lshlrev_b32 %s, 4, %s' % (x0, g))
        I('v_add_u32 %s, %d, %s' % (V['Tb4'], PA, x0))
        I('s_and_b32 %s, %s, 1' % (t0, sRb))
        I('s_lshr_b32 %s, %s, 3' % (t1, sJ))
        I('s_lshl_b32 s3, %s, 1' % t0)
        I('s_add_u32 %s, %s, s3' % (t1, t1))
        for st, r, base, wa, nA, steps, av in (('F1', t0, sF1b, 'P3', 2, 20, None),
                                               ('O', t1, sOb, 'P2', 1, 20, 'A2'), ('F2', t1, sF2b, 'P4', 1, 54, 'A4')):
            pk = 0
            for i, x in enumerate(self.rot[st]):
                pk |= x << (8 * i)
            I('s_lshl_b32 s3, %s, 3' % r)
            I('s_lshr_b32 s3, 0x%x, s3' % pk)
            I('s_and_b32 s3, s3, 0xff')
            I('s_mul_i32 %s, s3, %d' % (t5, nA))
            I('s_sub_u32 %s, %d, %s' % (sWa[wa], steps * nA, t5))
            if not av:
                I('s_lshl_b32 %s, %s, 10' % (sRa3, t5))
            if av:
                I('s_lshl_b32 %s, s3, 10' % t5)
                I('v_add_u32 %s, %s, %s' % (V[av], t5, V[av]))
            I('s_mul_i32 s3, s3, %d' % PPS[st])
            I('s_lshl_b32 %s, s3, 10' % t5)
            I('s_add_u32 %s, %s, %s' % (base, base, t5))
            I('s_add_u32 s3, s3, %s' % sW)
            I('s_sub_u32 s3, %d, s3' % (NPIECE[st] + 3))
            I('s_lshr_b32 %s, s3, 2' % sWr[st])

    def stats(self):
        I = self.I
        T = TMP + 28
        I('v_pk_add_f32 %s, %s, %s' % (v(T, 2), v(RES, 2), v(RES + 2, 2)))
        I('v_pk_mul_f32 %s, %s, %s' % (v(T + 2, 2), v(RES, 2), v(RES, 2)))
        for i in range(1, 10):
            if i > 1:
                I('v_pk_add_f32 %s, %s, %s' % (v(T, 2), v(T, 2), v(RES + 2 * i, 2)))
            I('v_pk_fma_f32 %s, %s, %s, %s' % (v(T + 2, 2), v(RES + 2 * i, 2), v(RES + 2 * i, 2), v(T + 2, 2)))
        I('v_add_f32 %s, %s, %s' % (v(T), v(T), v(T + 1)))
        I('v_add_f32 %s, %s, %s' % (v(T + 2), v(T + 2), v(T + 3)))
        I('v_permlane32_swap_b32 %s, %s' % (v(T), v(T + 2)))
        I('v_add_f32 %s, %s, %s' % (v(T), v(T), v(T + 2)))
        I('v_mov_b32 %s, %s' % (v(T + 2), v(T)))
        I('v_permlane16_swap_b32 %s, %s' % (v(T), v(T + 2)))
        I('v_add_f32 %s, %s, %s' % (v(T + 2), v(T), v(T + 2)))

    def pack_res(self, P):
        for i in range(10):
            self.I('v_cvt_pk_bf16_f32 %s, %s, %s' % (v(P + i), v(RES + 2 * i), v(RES + 2 * i + 1)))

    def publish_x(self, P, which, burst=(0, 0)):
        a1, a3 = (V['SX1'], V['SX3']) if which == 'XA' else (V['S11'], V['S13'])
        tags = self.dual([
            'buffer_store_dwordx4 %s, %s, %s, 0 offen' % (v(P, 4), a1, srd(sST)),
            'buffer_store_dwordx4 %s, %s, %s, 0 offen offset:2048' % (v(P + 4, 4), a1, srd(sST)),
            'buffer_store_dwordx2 %s, %s, %s, 0 offen' % (v(P + 8, 2), a3, srd(sST))])
        self.stats()
        tags += self.dual(['buffer_store_dword %s, %s, %s, 0 offen' % (v(TMP + 30), V['SSt'], srd(sST))])
        self.bg_burst(burst[0])
        self.wait(vm=tags)
        self.flag_local(sFlP16, F_X)
        self.bg_burst(burst[1])

    def p0(self):
        I = self.I
        XL = self.XL
        self.wait(vm=['x'])
        self.bg(True)
        for i in range(10):
            I('v_lshlrev_b32 %s, 16, %s' % (v(RES + 2 * i), v(XL + i)))
            I('v_and_b32 %s, 0xffff0000, %s' % (v(RES + 2 * i + 1), v(XL + i)))
        self.stats()
        I('v_mov_b32 %s, %s' % (v(TMP + 53), v(TMP + 30)))
        self.bg_burst(99)
        assert not self.bgq
        self.stamp(20)
        self.wait(vm=['bias'])
        I('v_lshlrev_b32 %s, 16, %s' % (v(TMP + 4), v(self.B1L)))
        I('v_lshlrev_b32 %s, 16, %s' % (v(TMP + 5), v(self.B2L)))
        I('v_min_u32 %s, 127, v0' % v(TMP + 6))
        I('v_lshlrev_b32 %s, 2, %s' % (v(TMP + 6), v(TMP + 6)))
        I('v_add_u32 %s, %d, %s' % (v(TMP + 6), PA, v(TMP + 6)))
        self.lg('ds_write_b32 %s, %s offset:%d' % (v(TMP + 6), v(TMP + 4), TB1 - PA))
        self.lg('ds_write_b32 %s, %s offset:%d' % (v(TMP + 6), v(TMP + 5), TB2 - PA))
        self.wait(lg_all=True)
        self.barrier()
        self.stamp(21)
        self.vm('buffer_store_dword %s, %s, %s, 0 offen sc1' % (v(TMP + 53), V['SSt'], srd(sST)), 'pre')
        self.prepass2()
        self.pre_bar = False
        self.build_phi()
        self.stamp(22)

    def build_phi(self):
        I = self.I
        T = TMP
        x0, x1, x2, b0, b1, msk = v(T + 24), v(T + 25), v(T + 26), v(T + 27), v(T + 28), v(T + 29)
        R = V['Rd0']
        I('v_bfe_u32 %s, %s, 4, 1' % (x0, R))
        I('v_bfe_u32 %s, %s, 6, 2' % (x1, R))
        I('v_mul_u32_u24 %s, 40, %s' % (x1, x1))
        I('v_bfe_u32 %s, %s, 5, 1' % (x2, R))
        I('v_lshl_add_u32 %s, %s, 3, %s' % (x1, x2, x1))
        I('v_bfe_u32 %s, %s, 8, 1' % (x2, R))
        I('v_lshl_add_u32 %s, %s, 4, %s' % (x1, x2, x1))
        I('v_add_u32 %s, %d, %s' % (x1, TPHI, x1))
        I('v_mul_u32_u24 %s, 960, %s' % (x2, x0))
        I('v_add_u32 %s, %s, %s' % (b0, x1, x2))
        I('v_mul_u32_u24 %s, 160, %s' % (x2, x0))
        I('v_add_u32 %s, %s, %s' % (b1, x1, x2))
        I('v_bfe_u32 %s, %s, 6, 1' % (x0, R))
        I('v_lshrrev_b32 %s, 9, %s' % (x2, R))
        I('v_cmp_eq_u32 vcc, %s, %s' % (x0, x2))
        I('v_cndmask_b32 %s, 0, -1, vcc' % msk)
        for Tt in range(2):
            for sq in range(5):
                self.lg('ds_read_b64_tr_b16 %s, %s offset:%d' %
                        (v(T + 12 * Tt + 2 * sq, 2), b0 if sq < 4 else b1, 160 * sq + 32 * Tt), 'phir')
        self.wait(lg=['phir'])
        for Tt in range(2):
            for i in range(12):
                if i < 10:
                    I('v_and_b32 %s, %s, %s' % (v(T + 12 * Tt + i), msk, v(T + 12 * Tt + i)))
                    I('v_accvgpr_write_b32 %s, %s' % (a(aPHI + 12 * Tt + i), v(T + 12 * Tt + i)))
                else:
                    I('v_accvgpr_write_b32 %s, 0' % a(aPHI + 12 * Tt + i))

    def ln1_ops(self):
        SL, CS = TMP + 44, BF + 24
        ops = [lambda: self.wait(vm=['st1'])]
        for i in range(2):
            ops += ['v_add_f32 %s, %s, %s' % (v(SL + i), v(SL + i), v(SL + 2 + i)),
                    'v_add_f32 %s, %s, %s' % (v(SL + 4 + i), v(SL + 4 + i), v(SL + 6 + i))]
        for i in range(2):
            ops += ['v_add_f32 %s, %s, %s' % (v(SL + i), v(SL + i), v(SL + 4 + i))]
        for i in range(2):
            ops += ['v_mov_b32 %s, %s' % (v(SL + 2 + i), v(SL + i))]
        for i in range(2):
            ops += ['v_permlane32_swap_b32 %s, %s' % (v(SL + i), v(SL + 2 + i))]
        for i in range(2):
            ops += ['v_add_f32 %s, %s, %s' % (v(SL + i), v(SL + i), v(SL + 2 + i))]
        ops += self.ln_coeffs(SL, SL + 2)
        rd = []
        for q in range(15):
            rd.append(lambda q=q: self.lg('ds_read_b128 %s, %s offset:%d' % (v(CS + 4 * q, 4), V['Tb1'], TCS1 - PA + 32 * q),
                                          ('csr', q)))
        mul = []
        for q in range(15):
            mul.append(lambda q=q: self.wait(lg=[('csr', q)]))
            mul += ['v_mul_f32 %s, %s, %s' % (v(CS + 4 * q + i), v(SL + 1), v(CS + 4 * q + i)) for i in range(4)]
        return ops, rd, mul

    def p1(self, first):
        I = self.I
        cfg = self.cfg
        name = 'P1a' if first else 'P1b'
        SL = TMP + 44
        CF, SEL, CA, CB = TMP + 32, TMP + 36, TMP + 40, v(TMP + 52)

        def mf(s, f, r):
            c = v(ACC + 16 * f, 16)
            return ['v_mfma_f32_32x32x16_bf16 %s, %s, %s, %s' % (c, v(r, 4), a(4 * s, 4), c if s else '0')]

        def st_loads():
            self.vm('buffer_load_dwordx4 %s, %s, %s, 0 offen sc1' % (v(SL, 4), V['LSt1'], srd(sLD)), 'st1')
            self.vm('buffer_load_dwordx4 %s, %s, %s, 0 offen offset:1024 sc1' % (v(SL + 4, 4), V['LSt1'], srd(sLD)), 'st1')
        ops, rd, mul = self.ln1_ops()
        if not first:
            self.regap(lambda st, n: cfg.get('p1b_gap', 100))
            self.bgq += self.touches('O')
            self.wait(lg_all=True)
            sh = [(12, x) for x in ops + rd + mul]
            self.gemm(name, 40, 4, 'Q', lambda i: 4 * i, V['A1'], 1, mf, L=5, we=2, bars=cfg.get('p1b_bars', [0, 14, 26]),
                      a0=cfg.get('p1b_a0', 4), arate=cfg.get('p1b_arate', 1.5), hooks={2: st_loads}, tr=True, shadow=sh)
            assert not self.bgq, self.bgq
            self.wait(vm_all=True, lg_all=True)
            self.barrier()
            return

        hooks = {}
        slot = self.slotf('Q')
        seg = [0]
        PL, XP = TMP, TMP + 4
        s_pf, s_xl, s_xc, s_ld = cfg.get('pre_steps', [13, 27, 32, 36])
        wt_steps = cfg.get('wt_steps', [0, 6, 14])
        wt = [1 if cfg.get('wt1_early', 1) else 0]
        f_steps = cfg.get('f_steps', [])
        ftouch = []
        for w in cfg.get('first_touch', ['O', 'X1']):
            ftouch += self.touches(w, always=True)
        ftouch += [('T', 'buffer_load_dword %s, %s, %s, %s offen sc1' % (a(aDUM), V['Fl'], srd(sTC), sFl32), 0)]

        def unload(G):
            assert not any(j[0] == 'X' and j[1][0] == G for j in self.bgq), ('x group late', G)
            self.wait(vm=[('X', G)])
            for i in range(4):
                self.lg('ds_read_b128 %s, %s offset:%d' % (a(16 * G + 4 * i, 4), v(XR + i), 16384 * (G % 4)), ('xu', G))
            self.xdone.add(('xu', G))

        def h_start():
            I('v_bfe_u32 %s, %s, 8, 1' % (v(SEL), V['Rd0']))
            I('v_bfe_u32 %s, %s, 6, 1' % (v(SEL + 1), V['Rd0']))
            I('v_cmp_eq_u32 vcc, %s, %s' % (v(SEL), v(SEL + 1)))
            I('v_mov_b32 %s, 0x3f803f80' % v(SEL + 1))
            I('v_cndmask_b32 %s, 0, %s, vcc' % (v(SEL), v(SEL + 1)))
            for i in range(1, 4):
                I('v_mov_b32 %s, %s' % (v(SEL + i), v(SEL)))
            I('s_cmp_eq_u32 %s, 3' % sW)
            I('s_cselect_b64 vcc, -1, 0')
            I('v_cndmask_b32 %s, %s, %s, vcc' % (CB, V['TrA0'], V['TrB0']))
            I('s_lshr_b32 %s, %s, 2' % (t0, sW1k))
            I('v_add_u32 %s, %s, %s' % (CB, t0, CB))
            I('s_lshl_b32 %s, %s, 7' % (t2, sRb))
            I('s_add_u32 %s, %s, 0x%x' % (t2, t2, XF))
            I('s_lshl2_add_u32 %s, %s, %s' % (t3, sJ, t2))
            I('s_mov_b32 %s, 0x%x' % (t1, PREF))
            unload(0)
        hooks[-1] = h_start

        def step_hook(s):
            def fn():
                if s in (0, 10, 20, 30):
                    self.stamp(25 + s // 10)
                for _ in range(wt_steps.count(s)):
                    wt[0] += 1
                    self.wtouch(wt[0])
                if s % 4 == 2 and s < 36:
                    unload(s // 4 + 1)
                if s == s_pf:
                    assert self.pre_bar
                    self.one_wave_store(sW, 'buffer_store_dword %s, off, %s, %s sc1\nbuffer_store_dword %s, off, %s, %s sc1' %
                                        (V['TagL'], srd(sWS), t3, V['TagG'], srd(sWS), sPreP))
                if s == s_xl:
                    self.vm('buffer_load_dword %s, %s, %s, %s offen sc1' % (v(XP), V['Fl'], srd(sWS), t2), 'xf')
                if s == s_xc:
                    self.wait(vm=['xf'])
                    I('L_xf_ck:')
                    I('v_xor_b32 %s, %s, %s' % (v(XP), sTagL, v(XP)))
                    I('v_cmp_ne_u32 vcc, 0, %s' % v(XP))
                    I('s_cbranch_vccnz L_xf_more')
                    I('L_xf_ok:')
                    self.tail += [
                        'L_xf_more:',
                        'v_cmp_lt_u32 vcc, 15, %s' % v(XP),
                        's_cbranch_vccz L_xf_slow',
                        's_sleep 8',
                        'buffer_load_dword %s, %s, %s, %s offen sc1' % (v(XP), V['Fl'], srd(sWS), t2),
                        's_sub_u32 %s, %s, 1' % (sTO, sTO),
                        's_cbranch_scc1 L_end',
                        's_waitcnt vmcnt(0)',
                        's_branch L_xf_ck',
                        'L_xf_slow:',
                        's_mov_b32 %s, 1' % sSlow,
                        's_mov_b32 %s, %s' % (sTagL, sTagG),
                        'v_mov_b32 %s, %s' % (V['TagL'], sTagG),
                        's_mov_b32 %s, 0x%x' % (sStep, ARENA),
                        's_add_u32 s%d, s%d, 0x%x' % (sST, sST, ARENA),
                        's_addc_u32 s%d, s%d, 0' % (sST + 1, sST + 1),
                        's_mov_b32 s%d, 0' % (sTC + 2),
                        's_branch L_xf_ok']
                    st_loads()
                if s == s_ld:
                    I('s_cmp_eq_u32 %s, 1' % sW)
                    I('s_cbranch_scc0 L_pre_nl')
                    I('buffer_load_dwordx4 %s, %s, %s, %s offen sc1' % (v(PL, 4), V['Rd0'], srd(sWS), t1))
                    I('L_pre_nl:')
                for _ in range(f_steps.count(s)):
                    assert s > s_xc
                    self.vm(ftouch.pop(0)[1])
                if s > 0:
                    self.wait(lg=[('cs', s - 1)])
                    I('v_mfma_f32_16x16x32_bf16 %s, %s, %s, %s' %
                      (v(CA, 4), v(SEL, 4), v(CF, 4), v(CA, 4) if s > 1 else '0'))
                    base, off = self.ldsaddr(slot(s - 1) * 4096, 'RdW')
                    tag = self.lg('ds_read_b128 %s, %s offset:%d' % (a(4 * (s - 1), 4), base, off), ('cap', s - 1))
                    self.q_read(slot(s - 1), ('Q', s - 1), tag)
                    self.q_done(slot(s - 1))
                if s < 40:
                    byte = slot(s) * 4096
                    if byte >> 16 != seg[0]:
                        I('v_add_u32 %s, 0x%x, %s' % (CB, (((byte >> 16) - seg[0]) << 16) & 0xffffffff, CB))
                        seg[0] = byte >> 16
                    for ab in range(2):
                        tag = self.lg('ds_read_b64_tr_b16 %s, %s offset:%d' %
                                      (v(CF + 2 * ab, 2), CB, (byte & 0xffff) + 1024 * ab), ('cs', s))
                        self.q_read(slot(s), ('Q', s), tag)
            return fn
        for s in range(40):
            hooks[s] = step_hook(s)
        self.bgq = self.p1a_jobs
        self.gemm(name, 40, 4, 'Q', None, None, 0, mf, L=5, we=2,
                  bars=cfg.get('p1a_bars', [0, 4, 8, 12, 16, 20, 23, 26, 29, 32, 34, 36, 38]), a0=0, arate=0, hooks=hooks, tr=True,
                  shadow=[(s_xc + 5, x) for x in ops], jobrate=cfg.get('p1a_rate', 1.75))
        assert not self.bgq, self.bgq
        assert wt[0] == 4
        self.stamp(24)
        step_hook(40)()
        I('v_bfe_u32 %s, %s, 2, 7' % (v(CF), V['Rd0']))
        I('s_lshr_b32 %s, %s, 3' % (t0, sW1k))
        I('s_add_u32 %s, %s, %d' % (t0, t0, TCS1))
        I('v_add_u32 %s, %s, %s' % (v(CF), t0, v(CF)))
        self.lg('ds_write_b32 %s, %s' % (v(CF), v(CA)))
        I('s_mov_b64 s[%d:%d], s[66:67]' % (sXO, sXO + 1))
        self.wait(vm_all=True)
        I('s_cmp_eq_u32 %s, 1' % sW)
        I('s_cbranch_scc0 L_pre_ok')
        I('L_pre_ck:')
        I('s_waitcnt vmcnt(0)')
        for i in range(4):
            I('v_xor_b32 %s, %s, %s' % (v(PL + i), sTagG, v(PL + i)))
        I('v_or3_b32 %s, %s, %s, %s' % (v(PL), v(PL), v(PL + 1), v(PL + 2)))
        I('v_or_b32 %s, %s, %s' % (v(PL), v(PL), v(PL + 3)))
        I('v_cmp_ne_u32 vcc, 0, %s' % v(PL))
        I('s_cbranch_vccnz L_pre_again')
        I('L_pre_ok:')
        self.tail += ['L_pre_again:', 's_sleep 8',
                      'buffer_load_dwordx4 %s, %s, %s, %s offen sc1' % (v(PL, 4), V['Rd0'], srd(sWS), t1),
                      's_sub_u32 %s, %s, 1' % (sTO, sTO), 's_cbranch_scc1 L_end', 's_branch L_pre_ck']
        for x in ftouch:
            I(x[1])
        self.wait(lg_all=True)
        self.barrier()
        for x in rd:
            x()
        CS = BF + 24
        I('.p2align 3')
        for q in range(15):
            self.wait(lg=[('csr', q | 3)] if q < 12 else [('csr', 14)])
            for i in (0, 2):
                I('v_pk_mul_f32 %s, %s, %s op_sel:[0,1] op_sel_hi:[1,1]' % (v(CS + 4 * q + i, 2), v(CS + 4 * q + i, 2), v(SL, 2)))
        self.first = False

    def barrier(self):
        super().barrier()
        self.pre_bar = 'pre' not in self.vmq

    def ln_coeffs(self, S, n):
        x = v(n)
        return ['v_mul_f32 %s, 0x%x, %s' % (v(S), 0xbacccccd, v(S)),
                'v_mul_f32 %s, %s, %s' % (x, v(S), v(S)),
                'v_mul_f32 %s, 0x%x, %s' % (v(S + 1), 0x3acccccd, v(S + 1)),
                'v_sub_f32 %s, %s, %s' % (x, v(S + 1), x),
                'v_max_f32 %s, 0, %s' % (x, x),
                'v_add_f32 %s, 0x%x, %s' % (x, 0x3727c5ac, x),
                'v_rsq_f32 %s, %s' % (x, x),
                'v_mul_f32 %s, %s, %s' % (v(S + 1), x, v(S)),
                'v_mov_b32 %s, %s' % (v(S), x)]

    def softmax_pair(self, Pq, E, dst, after=None, mid=None):
        I = self.I
        M = TMP + 54
        mx, mn = v(M), v(M + 1)
        I('s_mov_b32 s100, 0x%x' % LOG2E)
        I('s_mov_b32 s101, 0x%x' % LOG2E)
        I('.p2align 3')
        I('v_max3_f32 %s, %s, %s, %s' % (mx, v(Pq), v(Pq + 1), v(Pq + 2)))
        I('v_min3_f32 %s, %s, %s, %s' % (mn, v(Pq), v(Pq + 1), v(Pq + 2)))
        for i in range(3, 19, 2):
            I('v_max3_f32 %s, %s, %s, %s' % (mx, mx, v(Pq + i), v(Pq + i + 1)))
            I('v_min3_f32 %s, %s, %s, %s' % (mn, mn, v(Pq + i), v(Pq + i + 1)))
        I('v_max_f32 %s, %s, %s' % (mx, mx, v(Pq + 19)))
        I('v_min_f32 %s, %s, %s' % (mn, mn, v(Pq + 19)))
        I('v_pk_mul_f32 %s, %s, s[100:101] neg_lo:[1,0]' % (v(M, 2), v(M, 2)))
        for i in range(10):
            I('v_pk_fma_f32 %s, %s, s[100:101], %s op_sel_hi:[1,1,0]' % (v(E + 2 * i, 2), v(Pq + 2 * i, 2), v(M, 2)))
            I('v_pk_fma_f32 %s, %s, s[100:101], %s op_sel:[0,0,1] op_sel_hi:[1,1,1] neg_lo:[1,0,0] neg_hi:[1,0,0]' %
              (v(E + 20 + 2 * i, 2), v(Pq + 2 * i, 2), v(M, 2)))
        for i in range(40):
            I('v_exp_f32 %s, %s' % (v(E + i), v(E + i)))
            if mid and i == mid[0]:
                mid[1]()
        S0, S1 = Pq, Pq + 2
        I('.p2align 3')
        for h, S in ((0, S0), (1, S1)):
            I('v_pk_add_f32 %s, %s, %s' % (v(S, 2), v(E + 20 * h, 2), v(E + 20 * h + 2, 2)))
        for i in range(2, 10):
            for h, S in ((0, S0), (1, S1)):
                I('v_pk_add_f32 %s, %s, %s' % (v(S, 2), v(S, 2), v(E + 20 * h + 2 * i, 2)))
        I('v_add_f32 %s, %s, %s' % (mx, v(S0), v(S0 + 1)))
        I('v_add_f32 %s, %s, %s' % (mn, v(S1), v(S1 + 1)))
        I('v_rcp_f32 %s, %s' % (mx, mx))
        I('v_rcp_f32 %s, %s' % (mn, mn))
        for u in range(5):
            for i in range(4 * u, 4 * u + 4):
                sel = 'op_sel_hi:[1,0]' if i < 10 else 'op_sel:[0,1] op_sel_hi:[1,1]'
                I('v_pk_mul_f32 %s, %s, %s %s' % (v(E + 2 * i, 2), v(E + 2 * i, 2), v(M, 2), sel))
            for i in range(4 * u, 4 * u + 4):
                I('v_cvt_pk_bf16_f32 %s, %s, %s' % (dst(i), v(E + 2 * i), v(E + 2 * i + 1)))
            if after:
                after(u)

    def phi_mfma(self, KP, D):
        out = []
        for ks in range(3):
            for Tt in range(2):
                c = v(D + 16 * Tt, 16)
                out.append('v_mfma_f32_32x32x16_bf16 %s, %s, %s, %s' %
                           (c, a(aPHI + 12 * Tt + 4 * ks, 4), v(KP + 4 * ks, 4), c if ks else '0'))
        return out

    def attention(self):
        I = self.I
        cfg = self.cfg
        SL = TMP + 44
        CS = BF + 24
        self.bgq = self.plan(cfg.get('at_plan', [['O', 25, 90], ['F1', 35, 150]]))
        self.bg_last = self.clk + cfg.get('at_delay', 0) - 90

        def ln(off, n, packed=True):
            for i in range(0, n, 2):
                if packed:
                    I('v_pk_fma_f32 %s, %s, %s, %s op_sel_hi:[1,0,1]' %
                      (v(ACC + off + i, 2), v(ACC + off + i, 2), v(SL, 2), v(CS + off + i, 2)))
                else:
                    for e in (i, i + 1):
                        I('v_fma_f32 %s, %s, %s, %s' % (v(ACC + off + e), v(ACC + off + e), v(SL), v(CS + off + e)))

        def pack20(P, main, extra):
            for i in range(8):
                I('v_cvt_pk_bf16_f32 %s, %s, %s' % (v(P + i), v(ACC + main + 2 * i), v(ACC + main + 2 * i + 1)))
            for i in range(2):
                I('v_cvt_pk_bf16_f32 %s, %s, %s' % (v(P + 8 + i), v(ACC + extra + 2 * i), v(ACC + extra + 2 * i + 1)))
        KP, D = TMP + 20, BF
        for st in ('O', 'F1', 'F2'):
            self.stream_reset(st)
        I('v_mov_b32 %s, 0' % v(KP + 10))
        I('v_mov_b32 %s, 0' % v(KP + 11))
        I('.p2align 3')
        ln(0, 16)
        ln(48, 4)
        pack20(KP, 0, 48)
        mfs = self.phi_mfma(KP, D)
        VP = ACC
        WA = TMP + 32
        side = ['v_fma_f32 %s, %s, %s, %s' % (v(ACC + e), v(ACC + e), v(SL), v(CS + e)) for e in list(range(16, 32)) + [52, 53, 54, 55]]
        side += ['v_xor_b32 %s, %d, %s' % (v(WA + u), 16 * u, V['TW']) for u in range(8)]
        side += ['v_mov_b32 %s, 0x3f80' % v(VP + 10), 'v_mov_b32 %s, 0' % v(VP + 11)]
        self.bg(True)
        for m in mfs:
            I(m)
            for _ in range(5):
                I(side.pop(0))
        assert not side
        pack20(VP, 16, 52)

        def twrite(u, r):
            tag = self.lg('ds_write_b128 %s, %s' % (v(WA + u), v(r, 4)), 'tw')
            for q in range(8):
                self.q_fill(T_Q0 + q, 'T', tag)
        for u in range(3):
            twrite(5 + u, VP + 4 * u)
        I('.p2align 3')
        ln(32, 16)
        ln(56, 4)
        E = BF + 32
        PK = ACC + 12
        self.softmax_pair(D, E, lambda i: v(PK + i), after=lambda u: twrite(u, PK + 4 * u))
        self.bg(False)
        pack20(KP, 32, 56)
        self.wait(lg_all=True)
        self.barrier()
        self.stamp(1)
        KA = TMP + 32
        I('v_xor_b32 %s, 32, %s' % (v(KA), V['KA']))
        I('v_xor_b32 %s, 64, %s' % (v(KA + 1), V['KA']))
        DK = TMP
        FR = ACC
        for ks in range(5):
            for f in range(4 if ks < 4 else 0):
                base = V['KB'] if f == 0 else (V['KA'], v(KA), v(KA + 1))[f - 1]
                for ab in range(2):
                    tag = self.lg('ds_read_b64_tr_b16 %s, %s offset:%d' %
                                  (v(FR + 16 * ks + 4 * f + 2 * ab, 2), base, 4096 * ks + 1024 * ab), ('kvr', ks, f))
                    for q in range(8):
                        self.q_read(T_Q0 + q, 'T', tag)
                if ks > 0 and f < 3:
                    self.wait(lg=[('kvr', ks - 1, f + 1)])
                    c = v(DK + 4 * f, 4)
                    I('v_mfma_f32_16x16x32_bf16 %s, %s, %s, %s' %
                      (c, v(FR + 16 * (ks - 1) + 4 * f + 4, 4), v(FR + 16 * (ks - 1), 4), c if ks > 1 else '0'))
        for q in range(8):
            self.q_done(T_Q0 + q)
        for t in range(3):
            self.wait(lg=[('kvr', 3, t + 1)])
            c = v(DK + 4 * t, 4)
            I('v_mfma_f32_16x16x32_bf16 %s, %s, %s, %s' % (c, v(FR + 52 + 4 * t, 4), v(FR + 48, 4), c))
        mfs = self.phi_mfma(KP, D)
        I(mfs.pop(0))
        PV = TMP + 12
        for i in range(6):
            I('v_cvt_pk_bf16_f32 %s, %s, %s' % (v(PV + i), v(DK + 2 * i), v(DK + 2 * i + 1)))
        self.vm('buffer_store_dwordx4 %s, %s, %s, 0 offen sc1' % (v(PV, 4), V['KS1'], srd(sWS)), 'kvs')
        self.vm('buffer_store_dwordx2 %s, %s, %s, 0 offen sc1' % (v(PV + 4, 2), V['KS2'], srd(sWS)), 'kvs')
        self.stamp(2)
        self.bg(True)
        for m in mfs:
            I(m)
        PQ = ACC
        qpos = lambda i: v(PQ + ((4 * ((i % 8) >> 1) + 2 * (i >> 3) + (i & 1)) if i < 16 else i))

        def kv_flag():
            self.bg(False)
            self.wait(vm=['kvs'])
            self.barrier()
            self.one_wave_store(sW, 'buffer_store_dword %s, off, %s, %s sc1' % (V['TagG'], srd(sWS), sKVFp))
            self.bg(True)
        self.softmax_pair(D, E, qpos, mid=(cfg.get('kvf_at', 30), kv_flag))
        for pr in range(2):
            for i in range(4):
                I('v_permlane32_swap_b32 %s, %s' % (v(PQ + 8 * pr + i), v(PQ + 8 * pr + 4 + i)))
        self.bg(False)
        self.stamp(3)
        I('s_mov_b32 %s, 0x%x' % (t0, CSP))
        self.vm('buffer_load_dwordx4 %s, v1, %s, %s offen sc1' % (v(TMP + 16, 4), srd(sWS), t0), 'csp')
        self.bg_burst(cfg.get('at_b1', 8))
        I('v_min_u32 %s, 127, v0' % v(TMP + 20))
        I('v_lshlrev_b32 %s, 2, %s' % (v(TMP + 20), v(TMP + 20)))
        I('v_add_u32 %s, %d, %s' % (v(TMP + 20), TCS3, v(TMP + 20)))
        self.wait(vm=['csp'])
        I('v_pk_add_f32 %s, %s, %s' % (v(TMP + 16, 2), v(TMP + 16, 2), v(TMP + 18, 2)))
        I('v_add_f32 %s, %s, %s' % (v(TMP + 16), v(TMP + 16), v(TMP + 17)))
        self.lg('ds_write_b32 %s, %s' % (v(TMP + 20), v(TMP + 16)))
        self.poll(V['Fl'], sWS, sKVFc, 0, sTagG)
        self.stamp(4)
        G = BF
        for p in range(16):
            self.vm('buffer_load_dwordx4 %s, %s, %s, %s offen sc1' % (v(G + 4 * p, 4), V['KG'], srd(sWS), sK4(p)), ('kg', p))
        self.bg_burst(cfg.get('at_b2', 4))
        SM = TMP
        I('s_mov_b32 s100, 0x00003f80')
        I('s_mov_b32 s101, 0x3f800000')
        for i in range(8):
            I('v_mov_b32 %s, 0' % v(SM + i))
        for p in range(16):
            self.wait(vm=[('kg', p)])
            for i in range(4):
                I('v_dot2c_f32_bf16 %s, s100, %s' % (v(SM + 2 * i), v(G + 4 * p + i)))
                I('v_dot2c_f32_bf16 %s, s101, %s' % (v(SM + 2 * i + 1), v(G + 4 * p + i)))
        for i in range(4):
            I('v_cvt_pk_bf16_f32 %s, %s, %s' % (v(SM + 8 + i), v(SM + 2 * i), v(SM + 2 * i + 1)))
        tag = self.lg('ds_write_b128 %s, %s' % (V['KW'], v(SM + 8, 4)), 'ksw')
        self.q_fill(KS_Q, 'KS', tag)
        self.wait(lg_all=True)
        self.barrier()
        self.stamp(5)
        AF = BF
        for ks in range(3):
            for hd in range(2):
                base, off = (V['R1'], 80 * KU * hd + 32 * KU * ks) if ks < 2 else (V['R2%d' % hd], 0)
                tag = self.lg('ds_read_b128 %s, %s offset:%d' % (v(AF + 8 * ks + 4 * hd, 4), base, off), ('ksr', ks))
                self.q_read(KS_Q, 'KS', tag)
        self.q_done(KS_Q)
        self.bg_burst(cfg.get('at_b3', 0))
        DO = TMP
        for ks in range(3):
            self.wait(lg=[('ksr', ks)])
            for hd in range(2):
                c = v(DO + 16 * hd, 16)
                b = v(PQ + 8 * ks + 4 * hd, 4) if ks < 2 else v(PQ + 16, 4)
                I('v_mfma_f32_32x32x16_bf16 %s, %s, %s, %s' % (c, v(AF + 8 * ks + 4 * hd, 4), b, c if ks else '0'))
        OP = ACC + 24
        for hd in range(2):
            dn = DO + 16 * hd + 12
            I('v_add_f32 %s, 0x%x, %s' % (v(dn), 0x358637bd, v(dn)))
            I('v_rcp_f32 %s, %s' % (v(dn), v(dn)))
        for hd in range(2):
            b = DO + 16 * hd
            for i in range(6):
                I('v_pk_mul_f32 %s, %s, %s op_sel_hi:[1,0]' % (v(b + 2 * i, 2), v(b + 2 * i, 2), v(b + 12, 2)))
            for i in range(6):
                d = OP + 4 * hd + i if i < 4 else OP + 8 + 2 * hd + (i - 4)
                I('v_cvt_pk_bf16_f32 %s, %s, %s' % (v(d), v(b + 2 * i), v(b + 2 * i + 1)))
        tags = self.dual([
            'buffer_store_dwordx4 %s, %s, %s, 0 offen' % (v(OP, 4), V['SO1'], srd(sST)),
            'buffer_store_dwordx4 %s, %s, %s, 0 offen offset:512' % (v(OP + 4, 4), V['SO1'], srd(sST)),
            'buffer_store_dwordx4 %s, %s, %s, 0 offen' % (v(OP + 8, 4), V['SO2'], srd(sST))])
        self.bg_burst(cfg.get('at_b4', 0))
        self.wait(vm=tags)
        self.flag_local(sFlP32, F_B)
        self.bg_burst(cfg.get('at_b5', 0))
        for n in ('KS1', 'KS2', 'KG'):
            I('v_add_u32 %s, 0x100000, %s' % (V[n], V[n]))
        I('s_add_u32 %s, %s, 0x1000' % (sKVFc, sKVFc))
        I('s_add_u32 %s, %s, 0x1000' % (sKVFp, sKVFp))
        self.stamp(6)

    def plan(self, spec):
        pos = {}
        out = []
        for st, cnt, gap in spec:
            for _ in range(cnt):
                out.append((st, pos.get(st, 0), gap))
                pos[st] = pos.get(st, 0) + 1
        return out

    def regap(self, gaps):
        self.bgq = [(st, n, gaps(st, n)) for st, n, g in self.bgq]

    def mf16(self, areg):
        def mf(s, f, r):
            c = v(RES + 4 * f, 4)
            return ['v_mfma_f32_16x16x32_bf16 %s, %s, %s, %s' % (c, v(r, 4), a(areg(s), 4), c)]
        return mf

    def p2(self):
        cfg = self.cfg
        self.poll(V['Fl'], sLD, sFl16, F_B, sTagL)
        self.next_tag()
        self.stamp(7)
        self.regap(lambda st, n: cfg.get('p2_gap', 100))
        self.bgq = self.touches('X1') + self.bgq
        ar = lambda i: aWIN + 4 * (i % 17)
        self.gemm('P2', 20, 5, 'O', ar, V['A2'], 1, self.mf16(ar), L=10, we=5, win=17,
                  bars=cfg.get('p2_bars', [0, 10, 18]), a0=cfg.get('p2_a0', 4), arate=cfg.get('p2_arate', 1.25),
                  jobstart=cfg.get('p2_js', 4), jobstop=cfg.get('p2_je', 99))
        self.stamp(8)
        self.pack_res(TMP + 8)
        self.publish_x(TMP + 8, 'X1', burst=cfg.get('p2_burst', [4, 4]))
        self.stamp(9)

    def p3(self):
        I = self.I
        cfg = self.cfg
        SL = TMP + 44
        self.poll(V['Fl'], sLD, sFl32, F_X, sTagL)
        self.stamp(10)

        def mf(s, f, r):
            out = []
            for tt in range(2):
                c = v(ACC + 28 * tt + 4 * f, 4)
                out.append('v_mfma_f32_16x16x32_bf16 %s, %s, %s, %s' % (c, v(r, 4), a(aWIN + 8 * (s % 8) + 4 * tt, 4), c if s else '0'))
            return out

        def h_start():
            for tt in range(2):
                self.vm('buffer_load_dwordx4 %s, %s, %s, 0 offen offset:%d sc1' %
                        (v(SL + 4 * tt, 4), V['LSt3'], srd(sLD), 256 * tt), 'st3')
        self.regap(lambda st, n: cfg.get('p3_gap1', 100))
        self.bgq += [('F2', n, cfg.get('p3_gap2', 200)) for n in range(68)]

        def h_touch():
            self.bgq = self.touches('H', cfg.get('p3_tgap', 64)) + self.bgq
        CS, T1, T0 = BF + 24, BF + 52, TMP + 16
        sh = [lambda: self.wait(vm=['st3'])]
        for tt in range(2):
            S = SL + 4 * tt
            sh += ['v_add_f32 %s, %s, %s' % (v(S + i), v(S + i), v(S + 2 + i)) for i in range(2)]
            for sw in ('v_permlane32_swap_b32', 'v_permlane16_swap_b32'):
                sh += ['v_mov_b32 %s, %s' % (v(S + 2 + i), v(S + i)) for i in range(2)]
                sh += ['%s %s, %s' % (sw, v(S + i), v(S + 2 + i)) for i in range(2)]
                sh += ['v_add_f32 %s, %s, %s' % (v(S + i), v(S + i), v(S + 2 + i)) for i in range(2)]
            sh += self.ln_coeffs(S, S + 2)
        for t in range(7):
            sh.append(lambda t=t: self.lg('ds_read_b128 %s, %s offset:%d' % (v(CS + 4 * t, 4), V['Tb4'], TCS3 - PA + 64 * t), ('tb', t)))
            sh.append(lambda t=t: self.lg('ds_read_b128 %s, %s offset:%d' % (v(T1 + 4 * t, 4), V['Tb4'], TB1 - PA + 64 * t), ('tb', t)))
        for t in range(7):
            sh.append(lambda t=t: self.wait(lg=[('tb', t)]))
            for i in range(4 * t, 4 * t + 4):
                sh.append('v_fma_f32 %s, %s, %s, %s' % (v(T0 + i), v(CS + i), v(SL + 1), v(T1 + i)))
                sh.append('v_fmac_f32 %s, %s, %s' % (v(T1 + i), v(CS + i), v(SL + 5)))
        self.gemm('P3', 20, 7, 'F1', lambda i: aWIN + 4 * (i % 16), V['A1'], 2, mf, L=5, we=2, win=16,
                  bars=cfg.get('p3_bars', [0, 4, 8, 12, 16, 19]), a0=cfg.get('p3_a0', 4), arate=cfg.get('p3_arate', 3),
                  hooks={1: h_start, cfg.get('p3_tstep', 12): h_touch}, jobstart=cfg.get('p3_js', 0),
                  jobstop=cfg.get('p3_je', 99), shadow=[(5, x) for x in sh])
        assert not [j for j in self.bgq if j[0] == 'T']
        self.regap(lambda st, n: cfg.get('e3_gap', 100))
        self.stamp(11)
        self.bg(cfg.get('e3_bg', 1) > 0)
        tags = []
        for tt in range(2):
            S = SL + 4 * tt
            Cc = ACC + 28 * tt
            TT = (T0, T1)[tt]
            HP = BF + 20 + 16 * tt
            I('.p2align 3')
            for i in range(14):
                I('v_pk_fma_f32 %s, %s, %s, %s op_sel_hi:[1,0,1]' % (v(Cc + 2 * i, 2), v(Cc + 2 * i, 2), v(S, 2), v(TT + 2 * i, 2)))
                I('v_max_f32 %s, 0, %s' % (v(Cc + 2 * i), v(Cc + 2 * i)))
                I('v_max_f32 %s, 0, %s' % (v(Cc + 2 * i + 1), v(Cc + 2 * i + 1)))
                I('v_pk_mul_f32 %s, %s, %s' % (v(Cc + 2 * i, 2), v(Cc + 2 * i, 2), v(Cc + 2 * i, 2)))
                I('v_cvt_pk_bf16_f32 %s, %s, %s' % (v(HP + i), v(Cc + 2 * i), v(Cc + 2 * i + 1)))
            self.bg(False)
            so = sH54 if tt else '0'
            tags += self.dual(
                ['buffer_store_dwordx4 %s, %s, %s, %s offen offset:%d' % (v(HP + 4 * pr, 4), V['SH1'], srd(sST), so, 1024 * pr)
                 for pr in range(3)] +
                ['buffer_store_dwordx2 %s, %s, %s, %s offen' % (v(HP + 12, 2), V['SH2'], srd(sST), so)])
            self.bg(cfg.get('e3_bg', 1) > 1 and tt == 0)
        for t in range(5):
            self.lg('ds_read_b128 %s, %s offset:%d' % (v(BF + 4 * t, 4), V['Tb4'], TB2 - PA + 64 * t), 'tb')
        self.wait(lg_all=True)
        for i in range(10):
            I('v_pk_add_f32 %s, %s, %s' % (v(RES + 2 * i, 2), v(RES + 2 * i, 2), v(BF + 2 * i, 2)))
        self.bg_burst(cfg.get('p3_burst', [4, 4])[0])
        self.wait(vm=tags)
        self.flag_local(sFlP32, F_B)
        self.bg_burst(cfg.get('p3_burst', [4, 4])[1])
        self.stamp(12)

    def p4(self):
        I = self.I
        cfg = self.cfg
        self.poll(V['Fl'], sLD, sFl16, F_B, sTagL)
        self.next_tag()
        self.stamp(13)
        self.regap(lambda st, n: cfg.get('p4_gap', 70))
        self.bgq += self.touches('XA')
        ar = lambda i: aWIN + 4 * (i % 17)
        self.gemm('P4', 54, 5, 'F2', ar, V['A4'], 1, self.mf16(ar), L=10, we=5, win=17,
                  bars=cfg.get('p4_bars', [0, 6, 12, 18, 24, 30, 36, 42, 48]), a0=cfg.get('p4_a0', 4),
                  arate=cfg.get('p4_arate', 1.25), jobstart=cfg.get('p4_js', 0), jobstop=cfg.get('p4_je', 99))
        assert not self.bgq
        self.stamp(14)
        self.pack_res(TMP + 8)

    def build(self):
        I = self.I
        if self.cfg.get('stamps'):
            I('v_mov_b32 %s, 0' % V['Stamp'])
            I('s_memrealtime s[98:99]')
            self.stamp(16)
            I('v_writelane_b32 %s, s98, 30' % V['Stamp'])
        self.prologue()
        self.stamp(23)
        self.p0()
        self.p1(True)
        snap = self.snapshot()
        I('L_body:')
        self.stamp(0)
        self.attention()
        self.p2()
        self.p3()
        self.p4()
        I('s_cmp_eq_u32 %s, 0' % sLayer)
        I('s_cbranch_scc0 L_final')
        self.bgq = [('QW', n, 0) for n in range(40)]
        self.publish_x(TMP + 8, 'XA', burst=self.cfg.get('p4_burst', [7, 9]))
        self.stamp(15)
        I('s_mov_b32 %s, 1' % sLayer)
        if self.cfg.get('stamps'):
            I('v_mov_b32 %s, %s' % (V['Stamp0'], V['Stamp']))
        self.poll(V['Fl'], sLD, sFl32, F_X, sTagL)
        self.stamp(17)
        self.p1(False)
        snap2 = self.snapshot()
        assert snap == snap2, (snap, snap2)
        I('s_nop 7')
        I('s_nop 3')
        I('s_branch L_body')
        I('L_final:')
        P = TMP + 8
        I('buffer_store_dwordx4 %s, %s, %s, 0 offen' % (v(P, 4), V['X1'], srd(sXO)))
        I('buffer_store_dwordx4 %s, %s, %s, 0 offen offset:64' % (v(P + 4, 4), V['X1'], srd(sXO)))
        I('buffer_store_dwordx2 %s, %s, %s, 0 offen offset:128' % (v(P + 8, 2), V['X3'], srd(sXO)))
        I('s_or_b32 %s, s2, %s' % (t0, sW))
        self.one_wave_store(t0, 'buffer_store_dword %s, off, %s, 0' % (V['TagG'], srd(sWS)))
        if self.cfg.get('stamps'):
            I('s_memrealtime s[98:99]')
            self.stamp(15)
            I('v_writelane_b32 %s, s98, 31' % V['Stamp'])
            I('v_lshrrev_b32 %s, 2, %s' % (v(TMP), V['Rd0']))
            I('s_lshl_b32 %s, s2, 11' % t0)
            I('s_lshr_b32 %s, %s, 1' % (t1, sW1k))
            I('s_add_u32 %s, %s, %s' % (t0, t0, t1))
            I('s_add_u32 %s, %s, 0x%x' % (t0, t0, STAMPS))
            I('buffer_store_dword %s, %s, %s, %s offen' % (V['Stamp0'], v(TMP), srd(sWS), t0))
            I('buffer_store_dword %s, %s, %s, %s offen offset:256' % (V['Stamp'], v(TMP), srd(sWS), t0))
        d = self.cfg.get('diag')
        if d:
            I('v_readfirstlane_b32 s60, %s' % V['Stamp' if d != 'clk' else 'Stamp0'])
            I('s_waitcnt vmcnt(0)')
            I('s_memrealtime s[100:101]')
            I('s_waitcnt lgkmcnt(0)')
            I('s_sub_u32 s61, s100, s60')
            if d == 'rt':
                I('s_mov_b32 s61, 20000')
            elif d == 'rtwb':
                I('buffer_wbl2 sc1')
                I('s_waitcnt vmcnt(0)')
                I('s_mov_b32 s61, 20000')
            elif d == 'probe':
                I('v_readfirstlane_b32 s61, %s' % V['Stamp0'])
                I('s_mul_i32 s61, s61, 10')
                I('s_add_u32 s61, s61, 10000')
            elif d == 'durclk':
                I('v_readfirstlane_b32 s63, %s' % V['Stamp0'])
                I('s_memtime s[100:101]')
                I('s_waitcnt lgkmcnt(0)')
                I('s_sub_u32 s61, s100, s63')
                I('s_lshr_b32 s61, s61, 2')
            elif d == 'clk':
                I('s_mov_b32 s61, 480000')
            elif d == 'slow':
                I('s_mul_i32 s61, %s, 30000' % sSlow)
            elif d == 'dur':
                I('s_mul_i32 s61, s61, 10')
            elif d == 'mark':
                I('s_sub_u32 s61, s57, s60')
                I('s_mul_i32 s61, s61, 10')
                I('s_add_u32 s61, s61, 10000')
            I('L_diag:')
            I('%s s[100:101]' % ('s_memtime' if d == 'clk' else 's_memrealtime'))
            I('s_waitcnt lgkmcnt(0)')
            I('s_sub_u32 s62, s100, s60')
            I('s_cmp_lt_u32 s62, s61')
            I('s_cbranch_scc1 L_diag')
        I('L_end:')
        I('s_endpgm')
        for x in self.tail:
            I(x)


HEADER = """; Kernarg layout for this problem (96 bytes, ptrs only, base s[0:1]):
; @launch grid=(256,1,1) block=(256,1,1) lds=163840
.amdgcn_target "amdgcn-amd-amdhsa--gfx950"
.text
.globl {n}_kernel
.p2align 8
.type {n}_kernel,@function
{n}_kernel:
"""
FOOTER = """.section .rodata,"a"
.p2align 6
.amdhsa_kernel {n}_kernel
  .amdhsa_next_free_vgpr 512
  .amdhsa_next_free_sgpr 102
  .amdhsa_accum_offset 256
  .amdhsa_group_segment_fixed_size 0
  .amdhsa_kernarg_size 96
  .amdhsa_user_sgpr_count 2
  .amdhsa_user_sgpr_kernarg_segment_ptr 1
  .amdhsa_system_sgpr_workgroup_id_x 1
.end_amdhsa_kernel
"""


def generate(cfg):
    k = K(cfg)
    k.build()
    lines, added = fix_hazards(k.L)
    body = '\n'.join(x if x.endswith(':') else '    ' + x for x in lines)
    return HEADER.format(n=NAME) + body + '\n' + FOOTER.format(n=NAME), dict(n=len(lines), nops=added, maxvm=k.maxvm, notes=k.notes)


if __name__ == '__main__':
    import json
    cfg = json.loads(sys.argv[2]) if len(sys.argv) > 2 else {}
    text, info = generate(cfg)
    out = sys.argv[1] if len(sys.argv) > 1 else 'cdna_kernels/%s.s' % NAME
    open(out, 'w').write(text)
    print(info)
```

```python
import sys
import os
sys.path.insert(0, os.path.dirname(os.path.abspath(__file__)))
from asmlib import Gen, fix_hazards

NAME = 'interleave_layers__linear_kernel_hedgehog__dense_activation_squared_relu__prompt'

EPOCH, XF, PREF, QF, KVF, CSP = 0, 0x1000, 0x2000, 0x3000, 0x4000, 0x8000
KVP, WOT, W1T, W2T, WQC, STAMPS = 0x100000, 0x300000, 0x400000, 0x700000, 0xA00000, 0xD00000
ARENA0, ARENA, PAD = 0x1000000, 0xA00000, 0x10000
TGS = 152 * 1024
AL, ST, FL, BE = 0, 40 * 1024, 42 * 1024, 44 * 1024
F_X, F_B = 0, 64
OOB = 0x7ffffff0
NQ = 39
PA = NQ * 4096
TCS1, TCS3, TB1, TB2, TPHI = PA, PA + 512, PA + 1024, PA + 1536, PA + 2048
T_Q0 = 19
KS_Q = 27
STG_Q0 = 34
slotQ = lambda i: i % NQ
slotO = lambda i: (i + 28) % NQ
slotF1 = lambda i: (i + 14) % NQ
slotF2 = lambda i: (i + 10) % NQ
sWS, sLD, sWQ, sXO, sPS, sT2 = 4, 8, 12, 16, 20, 24
sST, sTC = 48, 52
sStep = 's56'
sWr = {'O': 's59', 'F1': 's60', 'F2': 's61'}
sWa = {'P3': 's62', 'P2': 's63', 'P4': 's64'}
sRa3, sXs = 's65', 's58'
NPIECE = {'Q': 160, 'O': 100, 'F1': 140, 'F2': 270}
PPS = {'Q': 4, 'O': 5, 'F1': 7, 'F2': 5}
srd = lambda b: 's[%d:%d]' % (b, b + 3)
sK4 = lambda i: '0' if i == 0 else 's%d' % (31 + i)
sH54 = 's47'
(sTagG, sW, sW1k, sLayer, sSlow, sJ, sRb, sC, sTO, sTagL, sFl32, sFl16, sFlP16, sFlP32, sQoff, sKVFc, sKVFp,
 sOb, sF1b, sF2b, sPreP, sTy) = ['s%d' % i for i in range(72, 94)]
sPst = ['s28', 's29', 's30', 's31', 's94']
t0, t1, t2, t3, t4, t5, t6 = 's95', 's96', 's97', 's98', 's99', 's100', 's101'
_names = ('Rd0 Rd1 Rd2 TrA0 TrA1 TrA2 TrB0 TrB1 TrB2 A1 A2 A4 SX1 SX3 S11 S13 SSt LSt1 LSt3 SO1 SO2 SH1 SH2 X1 X3 '
          'Fl TagL TagG DO DF1 DF2 KS1 KS2 KG RdW0 RdW1 RdW2 TW KA KB R1 R20 R21 Tb1 Tb4 KW Aw Stamp Stamp0').split()
V = {n: 'v%d' % (i + 2) for i, n in enumerate(_names)}
assert len(_names) + 2 <= 52
RES, ACC, BF, TMP = 52, 72, 136, 200
aPHI, aWIN, aDUM = 160, 184, 255
V.update(DQ='v%d' % (BF + 24), Cs='v%d' % (BF + 25), QS='v%d' % (BF + 26))
XD, XR = BF + 28, BF + 32
xslot = lambda G: 6 + 4 * (G if G < 7 else G - 3)
KU = 21


def v(i, n=1):
    return 'v%d' % i if n == 1 else 'v[%d:%d]' % (i, i + n - 1)


def a(i, n=1):
    return 'a%d' % i if n == 1 else 'a[%d:%d]' % (i, i + n - 1)


LOG2E = 0x3fb8aa3b


class K(Gen):
    def __init__(self, cfg):
        super().__init__(NQ)
        self.cfg = cfg
        self.notes = []
        self.stream_pos = {}
        self.clk = 0
        self.mf_free = 0
        self.bgq = []
        self.bg_on = False
        self.bg_last = -10 ** 9
        self.bg_pend = None
        self.xdone = set()
        self.rot = {'Q': [0, 0], 'F1': [0, 10], 'O': [0, 5, 10, 15], 'F2': [0, 14, 26, 42]}
        for st in self.rot:
            if st not in cfg.get('rot', ['F2']):
                self.rot[st] = [0] * len(self.rot[st])
        self.first = True
        self.tail = []

    def I(self, t):
        for x in t.split('\n'):
            x = x.strip()
            if not x:
                continue
            self.L.append(x)
            op = x.split()[0]
            if op.startswith('v_mfma'):
                st = max(self.clk, self.mf_free)
                self.mf_free = st + (32 if '32x32' in op else 16)
                self.clk = st + 8
            elif op.endswith(':') or op.startswith('.'):
                pass
            elif op.startswith(('v_exp', 'v_rcp', 'v_rsq', 'v_permlane')):
                self.clk += 8
            elif op.startswith('ds_write_b128'):
                self.clk += 30
            else:
                self.clk += 4
            if self.bg_on and op.startswith('v_') and not op.startswith(('v_cmp', 'v_cndmask')):
                self.bg_on = False
                self.bg_step()
                self.bg_on = True

    def bg_step(self):
        if self.bg_pend is not None:
            f, self.bg_pend = self.bg_pend, None
            f()
            return True
        if self.bgq and self.clk - self.bg_last >= self.bgq[0][2]:
            st, n, gap = self.bgq[0]
            if st == 'T':
                self.bgq.pop(0)
                self.vm(n)
                self.bg_last = self.clk
                return True
            slot, pre, issue = self.dma(st, n)
            if st == 'QW':
                if self.q_is_free(slot):
                    self.bgq.pop(0)
                    issue()
                    self.bg_last = self.clk
                return False
            if (n[0] < 7 or (('xu', n[0] - 3) in self.xdone and ('xu', n[0] - 3) not in self.lgq)) if st == 'X' \
                    else self.q_is_free(slot):
                self.bgq.pop(0)
                pre()
                self.bg_pend = issue
                self.bg_last = self.clk
        return False

    def bg(self, on):
        if not on:
            self.bg_on = False
            if self.bg_pend is not None:
                self.bg_step()
        else:
            self.bg_on = True

    def bg_burst(self, k):
        self.bg(False)
        for _ in range(k):
            if not self.bgq:
                break
            n0 = len(self.bgq)
            self.bg_last = -10 ** 9
            self.bg_step()
            if len(self.bgq) == n0:
                break
            self.bg(False)

    def stamp(self, idx):
        if self.cfg.get('diag') == 'mark' and self.cfg['mark'][1] == idx:
            lab = self.label('L_mk')
            self.wait(lg_all=True)
            if idx < 18:
                self.I('s_cmp_eq_u32 %s, %d' % (sLayer, self.cfg['mark'][0]))
                self.I('s_cbranch_scc0 %s' % lab)
            self.I('s_memrealtime s[100:101]')
            self.I('s_waitcnt lgkmcnt(0)')
            self.I('s_mov_b32 s57, s100')
            self.I('%s:' % lab)
        if not self.cfg.get('stamps'):
            return
        self.wait(lg_all=True)
        self.I('s_memtime s[100:101]')
        self.I('s_waitcnt lgkmcnt(0)')
        self.I('v_writelane_b32 %s, s100, %d' % (V['Stamp'], idx))

    def note(self, name):
        self.notes.append('%s>%s%s' % ((name,) + (self.bgq[0][:2] if self.bgq else ('', ''))))

    def ldsaddr(self, byte, kind='Rd'):
        return V['%s%d' % (kind, byte >> 16)], byte & 0xffff

    def dual(self, stores):
        lab = self.label('L_st')
        self.I('s_cmp_eq_u32 %s, 0' % sSlow)
        self.I('s_cbranch_scc0 %s_s' % lab)
        tags = [self.vm(x + ' ; nopad') for x in stores]
        self.I('%s_e:' % lab)
        self.tail += ['%s_s:' % lab] + [x + ' sc1' for x in stores] + ['s_nop 0', 's_branch %s_e' % lab]
        return tags

    def dual_section(self, fn):
        import copy
        self.bg(False)
        lab = self.label('L_sec')
        self.I('s_cmp_eq_u32 %s, 0' % sSlow)
        self.I('s_cbranch_scc0 %s_s' % lab)
        keys = ('vmq', 'lgq', 'q', 'clk', 'mf_free', 'bgq', 'bg_last', 'stream_pos', 'notes')
        saved = {k: copy.deepcopy(getattr(self, k)) for k in keys}
        main, self.L = self.L, []
        fn(' sc1')
        self.bg(False)
        self.tail += ['%s_s:' % lab, 's_nop 7', 's_nop 3'] + self.L + ['s_nop 7', 's_nop 3', 's_branch %s_e' % lab]
        self.L = main
        for k in keys:
            setattr(self, k, saved[k])
        fn('')
        self.bg(False)
        self.I('%s_e:' % lab)

    def one_wave_store(self, cond_reg, text):
        lab = self.label('L_ow')
        self.I('s_cmp_eq_u32 %s, 0' % cond_reg)
        self.I('s_cbranch_scc0 %s' % lab)
        self.I('s_mov_b64 exec, 1')
        self.I(text)
        self.I('s_mov_b64 exec, -1')
        self.I('%s:' % lab)

    def flag_local(self, soff, imm, sfx):
        self.I('s_mov_b64 exec, 1')
        self.vm('buffer_store_dword %s, off, %s, %s offset:%d%s' % (V['TagL'], srd(sST), soff, imm, sfx))
        self.I('s_mov_b64 exec, -1')
        self.I('s_mov_b64 s[%d:%d], s[%d:%d]' % (sLD, sLD + 1, sST, sST + 1))
        self.I('s_add_u32 s%d, s%d, %s' % (sST, sST, sStep))
        self.I('s_addc_u32 s%d, s%d, 0' % (sST + 1, sST + 1))

    def next_tag(self):
        self.I('s_add_u32 %s, %s, 32' % (sTagL, sTagL))
        self.I('v_mov_b32 %s, %s' % (V['TagL'], sTagL))

    def touches(self, which, gap=0, always=False):
        L = {'XA': [('SX1', '0', 0), ('SX1', '0', 2048), ('SX3', '0', 0), ('SSt', '0', 0)],
             'X1': [('S11', '0', 0), ('S11', '0', 2048), ('S13', '0', 0), ('SSt', '0', 0)],
             'O': [('SO1', '0', 0), ('SO1', '0', 512), ('SO2', '0', 0)],
             'H': [('SH1', so, 1024 * pr) for so in ('0', sH54) for pr in range(3)] + [('SH2', so, 0) for so in ('0', sH54)]}[which]
        if not always and which not in self.cfg.get('touch', ['H']):
            return []
        return [('T', 'buffer_load_dword %s, %s, %s, %s offen offset:%d sc1' % (a(aDUM), V[r], srd(sTC), so, off), gap)
                for r, so, off in L]

    def poll(self, addr, sd, soff, imm, tag, width=1):
        lab = self.label('L_poll')
        T = TMP + 52
        self.I('%s:' % lab)
        if width == 1:
            self.I('buffer_load_dword %s, %s, %s, %s offen offset:%d sc1' % (v(T), addr, srd(sd), soff, imm))
        else:
            self.I('buffer_load_dwordx4 %s, %s, %s, %s offen offset:%d sc1' % (v(T, 4), addr, srd(sd), soff, imm))
        self.I('s_sub_u32 %s, %s, 1' % (sTO, sTO))
        self.I('s_cbranch_scc1 L_end')
        self.force_wait('vmcnt(0)')
        if width == 4:
            for i in range(4):
                self.I('v_xor_b32 %s, %s, %s' % (v(T + i), tag, v(T + i)))
            self.I('v_or3_b32 %s, %s, %s, %s' % (v(T), v(T), v(T + 1), v(T + 2)))
            self.I('v_or_b32 %s, %s, %s' % (v(T), v(T), v(T + 3)))
            self.I('v_cmp_ne_u32 vcc, 0, %s' % v(T))
        else:
            self.I('v_cmp_ne_u32 vcc, %s, %s' % (tag, v(T)))
        self.I('s_cbranch_vccnz %s' % lab)

    def stream_reset(self, st):
        base, slot = {'Q': (sQoff, slotQ), 'O': (sOb, slotO), 'F1': (sF1b, slotF1), 'F2': (sF2b, slotF2)}[st]
        self.I('v_add_u32 %s, %s, %s' % (V['D' + st], base, V['Rd0']))
        self.stream_pos[st] = -slot(0)

    def slotf(self, st):
        return {'Q': slotQ, 'QW': slotQ, 'O': slotO, 'F1': slotF1, 'F2': slotF2}[st]

    def dma(self, st, n):
        if st == 'X':
            G, p = n

            def prex():
                if p == 0:
                    self.I('s_mov_b32 %s, %d' % (sXs, 128 * G))
                self.I('s_lshl2_add_u32 m0, %s, %d' % (sW1k, xslot(G) * 4096 + 1024 * p))

            def issuex():
                tag = self.vm('buffer_load_dwordx4 %s, %s, %s offen lds' % (v(XD + p), srd(sXO), sXs), ('X', G))
                for q in range(4):
                    if G >= 7 and p == 0:
                        self.q[xslot(G) + q]['free'] = True
                    self.q_fill(xslot(G) + q, ('X', G), tag)
            return None, prex, issuex
        slot = self.slotf(st)(n)
        if st == 'QW':

            def put():
                base, off = self.ldsaddr(slot * 4096, 'RdW')
                tag = self.lg('ds_write_b128 %s, %s offset:%d' % (base, a(4 * n, 4), off), ('Q', n))
                self.q_fill(slot, ('Q', n), tag)
            return slot, None, put

        def pre():
            cand = {-(-(NPIECE[st] - PPS[st] * r - w) // 4) for r in self.rot[st] if r for w in range(4)}
            if n in cand:
                self.I('s_cmp_eq_u32 %s, %d' % (sWr[st], n))
                self.I('s_cselect_b32 s3, 0x%x, 0' % ((-NPIECE[st] * 1024) & 0xffffffff))
                self.I('v_add_u32 %s, s3, %s' % (V['D' + st], V['D' + st]))
            if n - slot != self.stream_pos[st]:
                d = (n - slot - self.stream_pos[st]) * 4096
                self.I('v_add_u32 %s, 0x%x, %s' % (V['D' + st], d, V['D' + st]))
                self.stream_pos[st] = n - slot
            self.I('s_add_u32 m0, %s, %d' % (sW1k, slot * 4096))

        def issue():
            tag = self.vm('buffer_load_dwordx4 %s, %s, m0 offen lds' % (V['D' + st], srd(sWS)), (st, n))
            self.q_fill(slot, (st, n), tag)
        return slot, pre, issue

    def dma_now(self, st, n):
        slot, pre, issue = self.dma(st, n)
        pre()
        issue()

    def gemm(self, name, steps, nfr, st, areg, avaddr, nA, mf, L, we, bars, a0, arate, jobstart=0, jobstop=999,
             hooks=None, tr=False, win=99, shadow=None, jobrate=None, entry=None):
        hooks = hooks or {}
        self.bg(False)
        slotf = self.slotf(st)
        shadow = shadow if shadow is not None else []
        total = steps * nfr
        P = L + 1
        pool = lambda n: BF + 4 * (n % P)
        nAtot = steps * nA
        state = dict(res=0, cur=0, an=0, aacc=0.0, jacc=0.0)
        acand = {nAtot - r * nA for r in self.rot[st] if r}
        if acand:
            if name == 'P3':
                self.I('v_add_u32 %s, %s, %s' % (V['Aw'], sRa3, avaddr))
            else:
                self.I('v_mov_b32 %s, %s' % (V['Aw'], avaddr))
            avaddr = V['Aw']

        def a_ok():
            i = state['an']
            if i >= nAtot or i >= state['cur'] * nA + win:
                return False
            if name == 'P1b':
                return ('Q', i) not in self.lgq and not any(j[0] == 'QW' and j[1] == i for j in self.bgq)
            return True

        def quad_of(n):
            return (n // nfr) if tr else (n >> 2)

        def aload():
            assert a_ok()
            i = state['an']
            state['an'] += 1
            assert all(areg(m) != areg(i) for m in range(state['cur'] * nA, i)), 'A window overrun'
            if i in acand:
                self.I('s_cmp_eq_u32 %s, %d' % (sWa[name], i))
                self.I('s_cselect_b32 s3, 0x%x, 0' % ((-nAtot * 1024) & 0xffffffff))
                self.I('v_add_u32 %s, s3, %s' % (avaddr, avaddr))
            self.vm('buffer_load_dwordx4 %s, %s, %s, %s offen offset:%d sc1' %
                    (a(areg(i), 4), avaddr, srd(sLD), sK4(i >> 2), (i & 3) * 1024), (name, 'A', i))

        def read(n):
            s, f = divmod(n, nfr)
            if f == 0 and s in bars:
                nxt = min([b for b in bars if b > s] + [steps])
                need = {(st, quad_of(m)) for m in range(n, nxt * nfr)}
                self.bg(False)
                late = [i for i, j in enumerate(self.bgq) if (j[0].replace('QW', 'Q'), j[1]) in need]
                if late:
                    self.notes.append('LATE %s@%d x%d' % (name, s, late[-1] + 1))
                    self.bg_burst(late[-1] + 1)
                late = [j for j in self.bgq if (j[0].replace('QW', 'Q'), j[1]) in need]
                assert not late, ('%s: not issued before the barrier of step %d' % (name, s), late)
                self.wait(vm=need, lg=need)
                self.barrier()
            qn = quad_of(n)
            r = pool(n)
            if tr:
                byte = slotf(qn) * 4096 + 256 * f
                base, off = self.ldsaddr(byte, 'TrB' if f == 3 else 'TrA')
                for ab in range(2):
                    tag = self.lg('ds_read_b64_tr_b16 %s, %s offset:%d' % (v(r + 2 * ab, 2), base, off + 1024 * ab),
                                  (name, 'B', n))
                    self.q_read(slotf(qn), (st, qn), tag)
            else:
                base, off = self.ldsaddr(slotf(qn) * 4096 + (n & 3) * 1024)
                tag = self.lg('ds_read_b128 %s, %s offset:%d' % (v(r, 4), base, off), (name, 'B', n))
                self.q_read(slotf(qn), (st, qn), tag)
            if n + 1 == total or quad_of(n + 1) != qn:
                if not (name == 'P1a'):
                    self.q_done(slotf(qn))

        def run_shadow(s):
            while shadow and shadow[0][0] <= s and self.clk + 4 + state['res'] <= self.mf_free:
                x = shadow.pop(0)[1]
                x() if callable(x) else self.I(x)

        def filler(s):
            if self.bg_pend is not None:
                self.bg_step()
                run_shadow(s)
                return
            did = False
            if state['aacc'] >= 1 and a_ok():
                state['aacc'] -= 1
                aload()
                did = True
            if jobstart <= s < jobstop and not (did and self.bgq and self.bgq[0][0] == 'T') and \
                    (jobrate is None or state['jacc'] >= 1):
                n0 = len(self.bgq)
                self.bg_step()
                state['jacc'] -= n0 - len(self.bgq)
            run_shadow(s)

        if -2 in hooks:
            hooks[-2]()
        for n in range(L):
            read(n)
        if entry:
            entry()
        for _ in range(min(a0, nAtot)):
            aload()
        if -1 in hooks:
            hooks[-1]()
        for n in range(total):
            s, f = divmod(n, nfr)
            if f == 0:
                state['cur'] = s
                if s in hooks:
                    self.bg(False)
                    hooks[s]()
                state['jacc'] = min(state['jacc'] + (jobrate or 0), 3)
                state['aacc'] = min(state['aacc'] + arate, arate + 1)
            vt = [(name, 'A', s * nA + q) for q in range(nA)] if f == 0 else []
            while f == 0 and state['an'] < (s + 1) * nA:
                aload()
            lt = [(name, 'B', m) for m in range(n, min(n + we, total))] if n % we == 0 else []
            if name == 'P1a' and f == 0:
                assert ('xu', s >> 2) in self.xdone
                lt.append(('xu', s >> 2))
            self.wait(vm=vt, lg=lt)
            ms = mf(s, f, pool(n))
            self.I(ms[0])
            if n + L < total:
                read(n + L)
            if len(ms) > 1:
                state['res'] = 0
                run_shadow(s)
                self.I(ms[1])
            state['res'] = 4 if ((n + 1) % we == 0 or f == nfr - 1) else 0
            filler(s)
        self.bg(False)
        if shadow:
            self.notes.append('%s shadow left %d' % (name, len(shadow)))
        for _, x in shadow:
            x() if callable(x) else self.I(x)

    def prologue(self):
        I = self.I
        I('s_cmp_ge_u32 s2, 256')
        I('s_cbranch_scc1 L_end')
        if self.cfg.get('diag'):
            I('s_memrealtime s[100:101]')
            I('s_memtime s[98:99]')
            I('s_waitcnt lgkmcnt(0)')
            I('v_mov_b32 %s, s100' % V['Stamp'])
            I('v_mov_b32 %s, s98' % V['Stamp0'])
        if self.cfg.get('diag') == 'probe':
            slot, off = self.cfg['probe']
            I('s_load_dwordx2 s[4:5], s[0:1], %d' % slot)
            I('s_mov_b32 s6, 0x%x' % (2048 * 1280 if slot != 88 else 0x10000000))
            I('s_mov_b32 s7, 0x20000')
            I('s_mul_i32 s3, s2, 8192')
            I('s_add_u32 s3, s3, 0x%x' % off)
            I('v_lshl_add_u32 v1, v0, 4, s3')
            I('s_mov_b32 s8, 0x%x' % (off + 0x270000))
            I('s_mov_b32 s9, 4096')
            I('s_waitcnt lgkmcnt(0)')
            I('buffer_load_dword v8, off, s[4:7], s8')
            I('s_waitcnt vmcnt(0)')
            I('s_memtime s[10:11]')
            I('s_waitcnt lgkmcnt(0)')
            I('buffer_load_dwordx4 v[8:11], v1, s[4:7], 0 offen')
            I('buffer_load_dwordx4 v[12:15], v1, s[4:7], s9 offen')
            I('s_waitcnt vmcnt(0)')
            I('s_memtime s[12:13]')
            I('s_waitcnt lgkmcnt(0)')
            I('s_sub_u32 s3, s12, s10')
            I('v_mov_b32 %s, s3' % V['Stamp0'])
        I('s_load_dwordx16 s[48:63], s[0:1], 0')
        I('s_load_dwordx8 s[64:71], s[0:1], 64')
        T = TMP
        lane, g, tok, x0, x1, x2 = v(T), v(T + 1), v(T + 2), v(T + 3), v(T + 4), v(T + 5)
        self.lane, self.g, self.tok = lane, g, tok
        NL = self.cfg.get('code_lines', 10)
        I('s_getpc_b64 s[100:101]')
        I('L_pc:')
        I('s_lshr_b32 s3, s2, 3')
        I('s_mul_i32 s3, s3, %d' % NL)
        I('v_add_lshl_u32 %s, v0, s3, 7' % x0)
        I('v_min_u32 %s, L_end-L_pc, %s' % (x0, x0))
        I('v_mov_b32 %s, s101' % x2)
        I('v_add_co_u32 %s, vcc, s100, %s' % (x1, x0))
        I('v_addc_co_u32 %s, vcc, 0, %s, vcc' % (x2, x2))
        I('v_cmp_gt_u32 vcc, %d, v0' % NL)
        I('s_and_saveexec_b64 s[100:101], vcc')
        I('s_cbranch_execz L_nopf')
        I('global_load_dword %s, %s, off' % (a(aDUM), v(T + 4, 2)))
        I('L_nopf:')
        I('s_mov_b64 exec, -1')
        I('v_lshrrev_b32 %s, 6, v0' % x0)
        I('v_and_b32 %s, 63, v0' % lane)
        I('v_readfirstlane_b32 %s, %s' % (sW, x0))
        I('s_and_b32 %s, s2, 7' % t0)
        I('s_lshr_b32 %s, s2, 7' % t1)
        I('s_lshl_b32 %s, %s, 1' % (t0, t0))
        I('s_add_u32 %s, %s, %s' % (sRb, t0, t1))
        I('s_bfe_u32 %s, s2, 0x40003' % sJ)
        I('s_and_b32 %s, %s, 7' % (sC, sJ))
        I('s_lshl_b32 %s, %s, 10' % (sW1k, sW))
        I('s_lshr_b32 %s, %s, 3' % (t2, sJ))
        I('s_lshl_b32 %s, %s, 2' % (t2, t2))
        I('s_add_u32 %s, %s, %s' % (t2, t2, sW))
        I('s_lshl_b32 %s, %s, 3' % (t3, sRb))
        I('s_add_u32 %s, %s, %s' % (t3, t3, t2))
        I('s_mul_i32 %s, %s, %d' % (t0, t3, 16 * 1280))
        I('s_mul_i32 %s, %s, 160' % (t1, sC))
        I('s_add_u32 %s, %s, %s' % (t0, t0, t1))
        I('v_lshrrev_b32 %s, 4, %s' % (g, lane))
        I('v_and_b32 %s, 15, %s' % (tok, lane))
        I('v_mul_u32_u24 %s, 1280, %s' % (x0, tok))
        I('v_add_u32 %s, %s, %s' % (x0, t0, x0))
        I('v_lshl_add_u32 %s, %s, 4, %s' % (V['X1'], g, x0))
        I('v_lshl_add_u32 %s, %s, 3, %s' % (V['X3'], g, x0))
        I('s_lshl2_add_u32 %s, %s, %s' % (t4, sRb, sW))
        I('s_mul_i32 %s, %s, 160' % (t5, t4))
        QS, QA, y0 = V['QS'], v(T + 7), v(T + 6)
        I('v_add_u32 %s, %s, %s' % (QS, t5, lane))
        I('v_bfe_u32 %s, %s, 4, 2' % (y0, QS))
        I('v_and_b32 %s, 3, %s' % (x0, lane))
        I('v_lshrrev_b32 %s, 1, %s' % (x1, x0))
        I('v_add_u32 %s, %s, %s' % (x1, x0, x1))
        I('v_cmp_eq_u32 vcc, 3, %s' % y0)
        I('v_lshrrev_b32 %s, 6, %s' % (QA, QS))
        I('v_bfe_u32 %s, %s, 2, 2' % (x2, lane))
        I('v_lshl_add_u32 %s, %s, 2, %s' % (QA, QA, x2))
        I('v_cndmask_b32 %s, %s, 2, vcc' % (x1, x1))
        I('v_cndmask_b32 %s, %s, %s, vcc' % (x0, y0, x0))
        I('v_add_u32 %s, 1, %s' % (x2, x0))
        I('v_cmp_gt_u32 vcc, 2, %s' % x0)
        I('v_mul_u32_u24 %s, 3840, %s' % (QA, QA))
        I('s_mul_i32 %s, %s, 80' % (t1, sJ))
        I('v_cndmask_b32 %s, 0, %s, vcc' % (x2, x2))
        I('v_mul_u32_u24 %s, 1280, %s' % (x2, x2))
        I('v_lshl_add_u32 %s, %s, 4, %s' % (x2, x1, x2))
        I('v_add3_u32 %s, %s, %s, %s' % (QA, QA, x2, t1))
        I('s_mov_b32 %s, 15360' % t5)
        I('s_mov_b32 %s, 30720' % t6)
        for b, size in ((sXO, 2048 * 1280), (sWQ, 640 * 3840)):
            I('s_mov_b32 s%d, 0x%x' % (b + 2, size))
            I('s_mov_b32 s%d, 0x20000' % (b + 3))
        I('s_waitcnt lgkmcnt(0)')
        I('s_mov_b64 s[%d:%d], s[50:51]' % (sWQ, sWQ + 1))
        I('s_mov_b64 s[%d:%d], s[48:49]' % (sXO, sXO + 1))
        QL = BF
        self.vm('buffer_load_dwordx4 %s, %s, %s, 0 offen' % (v(QL, 4), QA, srd(sWQ)), 'q')
        self.vm('buffer_load_dwordx4 %s, %s, %s, %s offen' % (v(QL + 4, 4), QA, srd(sWQ), t5), 'q')
        I('s_mov_b32 exec_hi, 0')
        self.vm('buffer_load_dwordx4 %s, %s, %s, %s offen' % (v(QL + 8, 4), QA, srd(sWQ), t6), 'q')
        I('s_mov_b64 exec, -1')
        I('s_load_dword %s, s[70:71], 0' % sTagG)
        XL = TMP + 40
        self.XL = XL
        self.vm('buffer_load_dwordx4 %s, %s, %s, 0 offen' % (v(XL, 4), V['X1'], srd(sXO)), 'x')
        self.vm('buffer_load_dwordx4 %s, %s, %s, 0 offen offset:64' % (v(XL + 4, 4), V['X1'], srd(sXO)), 'x')
        self.vm('buffer_load_dwordx2 %s, %s, %s, 0 offen offset:128' % (v(XL + 8, 2), V['X3'], srd(sXO)), 'x')
        I('v_lshlrev_b32 %s, 4, %s' % (V['Rd0'], lane))
        I('s_mul_i32 %s, %s, %d' % (sQoff, sJ, 160 * 1024))
        I('s_add_u32 %s, %s, 0x%x' % (sQoff, sQoff, WQC))
        I('v_lshl_add_u32 %s, %s, 4, %s' % (QS, QS, sQoff))
        I('s_mov_b64 s[%d:%d], s[70:71]' % (sWS, sWS + 1))
        I('s_mov_b32 s%d, 0x1000000' % (sWS + 2))
        I('s_mov_b32 s%d, 0x20000' % (sWS + 3))
        I('s_add_u32 s%d, s70, 0x%x' % (sLD, ARENA0))
        I('s_addc_u32 s%d, s71, 0' % (sLD + 1))
        I('s_mov_b32 s%d, 0x%x' % (sLD + 2, ARENA))
        I('s_mov_b32 s%d, 0x20000' % (sLD + 3))
        I('s_mul_i32 %s, %s, %d' % (t0, t4, 32 * 1280))
        I('v_lshrrev_b32 %s, 3, %s' % (x0, lane))
        I('v_mul_u32_u24 %s, 1280, %s' % (x0, x0))
        I('v_and_b32 %s, 7, %s' % (x1, lane))
        I('v_xor_b32 %s, %s, %s' % (x1, x1, g))
        I('v_lshlrev_b32 %s, 4, %s' % (x1, x1))
        I('v_add3_u32 %s, %s, %s, %s' % (v(XD), x0, x1, t0))
        I('v_xor_b32 %s, 64, %s' % (v(XD + 1), v(XD)))
        I('v_add_u32 %s, 10240, %s' % (v(XD + 1), v(XD + 1)))
        I('v_add_u32 %s, 20480, %s' % (v(XD + 2), v(XD)))
        I('v_add_u32 %s, 20480, %s' % (v(XD + 3), v(XD + 1)))
        self.stamp(18)
        self.prepass1()
        self.small_loads(0)
        self.addresses(1)
        pp = self.cfg.get('pp_at', 0)
        if pp == 0:
            self.prepass1_issue()
            self.small_loads(1)
        self.stamp(19)
        self.wait(vm=['q'])
        self.vm('buffer_store_dwordx4 %s, %s, %s, 0 offen sc1' % (v(QL, 4), QS, srd(sWS)), 'p0s')
        self.vm('buffer_store_dwordx4 %s, %s, %s, 0 offen offset:1024 sc1' % (v(QL + 4, 4), QS, srd(sWS)), 'p0s')
        I('s_mov_b32 exec_hi, 0')
        self.vm('buffer_store_dwordx4 %s, %s, %s, 0 offen offset:2048 sc1' % (v(QL + 8, 4), QS, srd(sWS)), 'p0s')
        I('s_mov_b64 exec, -1')
        for i in range(4):
            I('v_mov_b32 %s, -1' % v(QL + 12 + i))
        I('s_lshl_b32 %s, %s, 12' % (t0, sRb))
        I('s_add_u32 %s, %s, 0x100000' % (t1, t0))
        self.vm('buffer_store_dwordx4 %s, %s, %s, %s offen sc1' % (v(QL + 12, 4), V['KG'], srd(sWS), t0), 'p0s')
        self.vm('buffer_store_dwordx4 %s, %s, %s, %s offen sc1' % (v(QL + 12, 4), V['KG'], srd(sWS), t1), 'p0s')

    def prepass1(self):
        I = self.I
        lane = self.lane
        T = TMP + 8
        po = [v(T + i) for i in range(5)]
        e, row, u, y = v(T + 5), v(T + 6), v(T + 7), v(T + 8)
        I('s_mov_b32 s%d, 0x20000' % (sPS + 3))
        I('s_cmp_lt_u32 s2, 40')
        I('s_cbranch_scc1 L_pp_wo')
        I('s_cmp_lt_u32 s2, 148')
        I('s_cbranch_scc1 L_pp_w1')
        I('s_sub_u32 %s, s2, 148' % t0)
        I('s_lshl_b32 %s, %s, 2' % (t0, t0))
        I('s_add_u32 %s, %s, %s' % (t0, t0, sW))
        I('s_and_b32 %s, %s, 7' % (t1, t0))
        I('s_lshr_b32 %s, %s, 3' % (t0, t0))
        I('s_mul_i32 %s, %s, 272' % (t4, t1))
        I('s_mul_i32 %s, %s, 5' % (t5, t0))
        I('s_add_u32 %s, %s, %s' % (t4, t4, t5))
        I('s_lshl_b32 %s, %s, 10' % (t4, t4))
        I('s_add_u32 %s, %s, 0x%x' % (sPst[0], t4, W2T))
        I('s_lshl_b32 %s, %s, 5' % (t0, t0))
        I('s_mov_b32 %s, 4' % t4)
        I('s_mov_b32 %s, 0' % t5)
        I('s_mov_b32 %s, 16' % t6)
        I('s_mov_b32 s%d, s62' % sPS)
        I('s_mov_b32 s%d, s63' % (sPS + 1))
        I('s_mov_b32 s%d, 0x%x' % (sPS + 2, 1728 * 1280))
        I('s_branch L_pp_80')
        I('L_pp_wo:')
        I('s_lshl_b32 %s, s2, 2' % t0)
        I('s_add_u32 %s, %s, %s' % (t0, t0, sW))
        I('s_and_b32 %s, %s, 7' % (t1, t0))
        I('s_lshr_b32 %s, %s, 3' % (t0, t0))
        I('s_mul_i32 %s, %s, 100' % (t4, t1))
        I('s_mul_i32 %s, %s, 5' % (t5, t0))
        I('s_add_u32 %s, %s, %s' % (t4, t4, t5))
        I('s_lshl_b32 %s, %s, 10' % (t4, t4))
        I('s_add_u32 %s, %s, 0x%x' % (sPst[0], t4, WOT))
        I('s_mul_i32 %s, %s, 52' % (t4, t0))
        I('s_lshr_b32 %s, %s, 8' % (t4, t4))
        I('s_mul_i32 %s, %s, 5' % (t5, t4))
        I('s_sub_u32 %s, %s, %s' % (t5, t0, t5))
        I('s_mul_i32 %s, %s, 160' % (t0, t4))
        I('s_mul_i32 %s, %s, 40' % (t6, t5))
        I('s_cmp_eq_u32 %s, 4' % t5)
        I('s_cselect_b32 %s, 16, %s' % (t6, t6))
        I('s_cselect_b32 %s, 40, 8' % t4)
        I('s_cselect_b32 %s, 0, 8' % t5)
        I('s_add_u32 %s, %s, %s' % (t0, t0, t6))
        I('s_mov_b32 %s, 4' % t6)
        I('s_mov_b32 s%d, s54' % sPS)
        I('s_mov_b32 s%d, s55' % (sPS + 1))
        I('s_mov_b32 s%d, 0x%x' % (sPS + 2, 640 * 1280))
        I('L_pp_80:')
        I('s_mul_i32 %s, %s, 160' % (t1, t1))
        I('s_mov_b32 %s, 0' % sTy)
        for n in range(5):
            I('v_add_u32 %s, %d, %s' % (e, 64 * n, lane))
            I('v_mul_u32_u24 %s, 6554, %s' % (row, e))
            I('v_lshrrev_b32 %s, 16, %s' % (row, row))
            I('v_mul_u32_u24 %s, 10, %s' % (u, row))
            I('v_sub_u32 %s, %s, %s' % (u, e, u))
            I('v_and_b32 %s, 3, %s' % (e, row))
            I('v_add_u32 %s, %s, %s' % (e, t0, e))
            I('v_lshrrev_b32 %s, 3, %s' % (y, row))
            I('v_mad_u32_u24 %s, %s, %s, %s' % (e, y, t4, e))
            I('v_lshrrev_b32 %s, 4, %s' % (y, row))
            I('v_mad_u32_u24 %s, %s, %s, %s' % (e, y, t5, e))
            I('v_bfe_u32 %s, %s, 2, 1' % (y, row))
            I('v_mad_u32_u24 %s, %s, %s, %s' % (e, y, t6, e))
            I('v_mul_u32_u24 %s, 1280, %s' % (e, e))
            I('v_lshl_add_u32 %s, %s, 4, %s' % (e, u, e))
            I('v_add_u32 %s, %s, %s' % (po[n], t1, e))
        I('s_mov_b32 %s, 1024' % t0)
        I('v_mov_b32 %s, 0x%x' % (V['Cs'], OOB))
        I('s_branch L_pp_go')
        I('L_pp_w1:')
        I('s_sub_u32 %s, s2, 40' % t0)
        I('s_and_b32 %s, %s, 3' % (t1, t0))
        I('s_lshr_b32 %s, %s, 2' % (t0, t0))
        I('s_lshl_b32 %s, %s, 2' % (t4, t0))
        I('s_add_u32 %s, %s, %s' % (t4, t4, sW))
        I('s_lshl_b32 %s, %s, 8' % (t5, t4))
        I('s_lshl_b32 %s, %s, 2' % (t6, t1))
        I('s_add_u32 %s, %s, %s' % (t5, t5, t6))
        I('s_add_u32 %s, %s, 0x%x' % (t5, t5, CSP))
        I('v_add_u32 %s, %s, %s' % (e, t5, V['Rd0']))
        I('v_mov_b32 %s, 0x%x' % (V['Cs'], OOB))
        I('v_cmp_gt_u32 vcc, 16, %s' % lane)
        I('v_cndmask_b32 %s, %s, %s, vcc' % (V['Cs'], V['Cs'], e))
        I('s_mul_i32 %s, %s, 43' % (t5, t4))
        I('s_lshr_b32 %s, %s, 8' % (t5, t5))
        I('s_mul_i32 %s, %s, 6' % (t6, t5))
        I('s_sub_u32 %s, %s, %s' % (t6, t4, t6))
        I('s_sub_u32 s3, %s, 96' % t4)
        I('s_cmp_ge_u32 %s, 96' % t4)
        I('s_cselect_b32 %s, s3, %s' % (t5, t5))
        I('s_cselect_b32 %s, 6, %s' % (t6, t6))
        I('s_mul_i32 %s, %s, 140' % (t5, t5))
        I('s_mul_i32 s3, %s, 35' % t1)
        I('s_add_u32 %s, %s, s3' % (t5, t5))
        I('s_add_u32 %s, %s, %s' % (t5, t5, t6))
        I('s_lshl_b32 %s, %s, 10' % (t5, t5))
        I('s_add_u32 %s, %s, 0x%x' % (sPst[0], t5, W1T))
        I('s_mul_i32 %s, %s, 160' % (t1, t1))
        I('s_mul_i32 %s, %s, 40' % (t5, sW))
        I('s_add_u32 %s, %s, %s' % (t1, t1, t5))
        I('s_mul_i32 %s, %s, 3456' % (t1, t1))
        I('s_lshl_b32 %s, %s, 7' % (t0, t0))
        I('s_add_u32 %s, %s, %s' % (t1, t1, t0))
        I('v_lshrrev_b32 %s, 3, %s' % (row, lane))
        I('v_mul_u32_u24 %s, 3456, %s' % (row, row))
        I('v_and_b32 %s, 7, %s' % (u, lane))
        I('v_lshl_add_u32 %s, %s, 4, %s' % (row, u, row))
        I('v_add_u32 %s, %s, %s' % (po[0], t1, row))
        for n in range(1, 5):
            I('v_add_u32 %s, %d, %s' % (po[n], 8 * 3456 * n, po[0]))
        I('s_mov_b32 s%d, s58' % sPS)
        I('s_mov_b32 s%d, s59' % (sPS + 1))
        I('s_mov_b32 s%d, 0x%x' % (sPS + 2, 640 * 3456))
        I('s_mov_b32 %s, 1' % sTy)
        I('s_mov_b32 %s, 7168' % t0)
        I('L_pp_go:')
        for n in range(1, 5):
            I('s_add_u32 %s, %s, %s' % (sPst[n], sPst[n - 1], t0))
        self.po = po

    def prepass1_issue(self):
        I = self.I
        po = self.po
        I('s_mul_i32 %s, %s, 5' % (t0, sW1k))
        for n in range(5):
            I('s_add_u32 m0, %s, %d' % (t0, STG_Q0 * 4096 + 1024 * n))
            tag = self.vm('buffer_load_dwordx4 %s, %s, 0 offen lds' % (po[n], srd(sPS)), ('stg', n))
            for q in range(5):
                self.q_fill(STG_Q0 + q, 'stg', tag)

    def prepass2(self):
        I = self.I
        T = TMP
        fr = T
        bA, bB, x0, x1, one, cs = v(T + 20), v(T + 21), v(T + 22), v(T + 23), T + 24, T + 28
        I('v_lshrrev_b32 %s, 8, %s' % (x0, V['Rd0']))
        I('v_bfe_u32 %s, %s, 6, 2' % (x1, V['Rd0']))
        for i in range(4):
            I('v_mov_b32 %s, 0x3f803f80' % v(one + i))
        I('s_cmp_eq_u32 %s, 1' % sTy)
        I('s_cbranch_scc1 L_p2_w1')
        I('v_lshl_add_u32 %s, %s, 3, %s' % (x0, x0, x1))
        I('v_mul_u32_u24 %s, 160, %s' % (x0, x0))
        I('s_mul_i32 %s, %s, 5' % (t0, sW1k))
        I('s_add_u32 %s, %s, %d' % (t0, t0, STG_Q0 * 4096))
        I('v_add_u32 %s, %s, %s' % (x0, t0, x0))
        I('v_and_b32 %s, 48, %s' % (x1, V['Rd0']))
        I('v_add_u32 %s, %s, %s' % (bA, x0, x1))
        I('v_lshrrev_b32 %s, 1, %s' % (x1, x1))
        I('v_add_u32 %s, %s, %s' % (bB, x0, x1))
        for t in range(5):
            for ab in range(2):
                off = 640 * ab + (64 * (t >> 1) + 8 * (t & 1) if t < 4 else 128)
                I('ds_read_b64_tr_b16 %s, %s offset:%d' % (v(fr + 4 * t + 2 * ab, 2), bA if t < 4 else bB, off))
        I('s_branch L_p2_go')
        I('L_p2_w1:')
        I('v_lshl_add_u32 %s, %s, 3, %s' % (bA, x0, x1))
        I('v_lshl_add_u32 %s, %s, 2, %s' % (bB, x0, x1))
        I('v_and_b32 %s, 48, %s' % (x1, V['Rd0']))
        I('v_lshrrev_b32 %s, 1, %s' % (x1, x1))
        I('s_lshl_b32 %s, %s, 5' % (t0, sW))
        I('s_add_u32 %s, %s, %d' % (t0, t0, STG_Q0 * 4096))
        I('v_add_u32 %s, %s, %s' % (x1, t0, x1))
        I('v_lshl_add_u32 %s, %s, 7, %s' % (bA, bA, x1))
        I('v_lshl_add_u32 %s, %s, 7, %s' % (bB, bB, x1))
        for i in range(5):
            for ab in range(2):
                off = ((80 * (i >> 1) + 32 * (i & 1) + 4 * ab) if i < 4 else (80 * ab + 64)) * 128
                tag = self.lg('ds_read_b64_tr_b16 %s, %s offset:%d' % (v(fr + 4 * i + 2 * ab, 2), bA if i < 4 else bB, off),
                              'stgr')
                for q in range(5):
                    self.q_read(STG_Q0 + q, 'stg', tag)
        I('L_p2_go:')
        for q in range(5):
            self.q_done(STG_Q0 + q)
        self.wait(lg=['stgr'])
        for i in range(5):
            self.vm('buffer_store_dwordx4 %s, %s, %s, %s offen sc1' % (v(fr + 4 * i, 4), V['Rd0'], srd(sWS), sPst[i]), 'pre')
            I('v_mfma_f32_16x16x32_bf16 %s, %s, %s, %s' % (v(cs, 4), v(one, 4), v(fr + 4 * i, 4), v(cs, 4) if i else '0'))
        self.vm('buffer_store_dword %s, %s, %s, 0 offen sc1' % (v(cs), V['Cs'], srd(sWS)), 'pre')

    def small_loads(self, part):
        I = self.I
        T = TMP + 20
        x0, x1, x2, x3 = v(T), v(T + 1), v(T + 2), v(T + 5)
        self.B1L, self.B2L = T + 3, T + 4
        if part == 1:
            I('s_lshr_b32 %s, %s, 2' % (t1, sW1k))
            I('s_add_u32 m0, %s, %d' % (t1, TPHI))
            I('s_mov_b64 s[%d:%d], s[60:61]' % (sPS, sPS + 1))
            I('s_mov_b32 s%d, %d' % (sPS + 2, 1728 * 2))
            self.vm('buffer_load_dword %s, %s, 0 offen lds' % (x2, srd(sT2)), 'phi')
            self.vm('buffer_load_dword %s, %s, 0 offen offset:1024 lds' % (x2, srd(sT2)), 'phi')
            self.vm('buffer_load_ushort %s, %s, %s, 0 offen' % (v(self.B1L), x3, srd(sPS)), 'bias')
            I('s_mov_b64 s[%d:%d], s[64:65]' % (sT2, sT2 + 1))
            I('s_mov_b32 s%d, %d' % (sT2 + 2, 640 * 2))
            self.vm('buffer_load_ushort %s, %s, %s, 0 offen' % (v(self.B2L), x0, srd(sT2)), 'bias')
            return
        I('s_mov_b64 s[%d:%d], s[52:53]' % (sT2, sT2 + 1))
        I('s_mov_b32 s%d, %d' % (sT2 + 2, 32 * 800))
        I('s_mov_b32 s%d, 0x20000' % (sT2 + 3))
        I('s_mul_i32 %s, %s, 1600' % (t0, sJ))
        I('v_lshl_add_u32 %s, v0, 2, %s' % (x2, t0))
        I('s_mul_i32 %s, %s, 96' % (t0, sJ))
        I('s_lshl_b32 %s, %s, 4' % (t1, sJ))
        I('s_add_u32 %s, %s, %d' % (t1, t1, 1536 - 96))
        I('v_add_u32 %s, %s, v0' % (x0, t0))
        I('v_add_u32 %s, %s, v0' % (x1, t1))
        I('v_cmp_gt_u32 vcc, 96, v0')
        I('v_cndmask_b32 %s, %s, %s, vcc' % (x0, x1, x0))
        I('v_lshlrev_b32 v1, 4, %s' % x0)
        I('v_lshlrev_b32 %s, 1, %s' % (x3, x0))
        I('v_bfe_u32 %s, v0, 2, 2' % x0)
        I('v_lshlrev_b32 %s, 3, %s' % (x0, x0))
        I('v_bfe_u32 %s, v0, 4, 1' % x1)
        I('v_lshl_add_u32 %s, %s, 2, %s' % (x0, x1, x0))
        I('v_and_b32 %s, 0x23, v0' % x1)
        I('v_add_u32 %s, %s, %s' % (x0, x0, x1))
        I('v_cmp_gt_u32 vcc, 64, v0')
        I('v_cndmask_b32 %s, v0, %s, vcc' % (x0, x0))
        I('s_mul_i32 %s, %s, 80' % (t0, sC))
        I('v_add_lshl_u32 %s, %s, %s, 1' % (x0, x0, t0))

    def addresses(self, part):
        I = self.I
        lane, g, tok = self.lane, self.g, self.tok
        T = TMP + 3
        x0, x1, x2, x3 = v(T), v(T + 1), v(T + 2), v(T + 3)
        if part == 1:
            for i in range(1, 16):
                I('s_mov_b32 %s, %d' % (sK4(i), 4096 * i))
            I('s_mov_b32 %s, %d' % (sH54, 54 * 1024))
            for b in (sST, sTC):
                I('s_mov_b64 s[%d:%d], s[%d:%d]' % (b, b + 1, sLD, sLD + 1))
                I('s_mov_b32 s%d, 0x%x' % (b + 2, ARENA))
                I('s_mov_b32 s%d, 0x20000' % (b + 3))
            I('s_mov_b32 %s, 0' % sStep)
            I('s_mov_b32 %s, 0' % sLayer)
            I('s_mov_b32 %s, 0' % sSlow)
            I('s_mov_b32 %s, 0x%x' % (sTO, self.cfg.get('timeout', 0x20000)))
            I('s_lshl_b32 %s, %s, 2' % (t4, sRb))
            I('s_add_u32 %s, %s, %s' % (t4, t4, sW))
            I('s_lshr_b32 %s, %s, 1' % (t5, t3))
            I('s_and_b32 %s, %s, 1' % (t6, t2))
            I('s_lshl_b32 %s, %s, 2' % (sKVFp, sRb))
            I('s_mul_i32 %s, %s, %d' % (t4, t4, TGS))
            I('s_add_u32 %s, %s, 0x%x' % (t4, t4, PAD))
            I('s_mul_i32 %s, %s, %d' % (t5, t5, TGS))
            I('s_add_u32 %s, %s, 0x%x' % (t5, t5, PAD))
            I('v_add_u32 %s, %s, %s' % (V['A1'], t4, V['Rd0']))
            I('s_mul_i32 %s, %s, 20480' % (t0, t6))
            I('s_add_u32 %s, %s, %s' % (t0, t0, t5))
            I('s_add_u32 %s, %s, 0x%x' % (t0, t0, BE))
            I('v_add_u32 %s, %s, %s' % (V['A2'], t0, V['Rd0']))
            I('s_mul_i32 %s, %s, %d' % (t0, t6, 54 * 1024))
            I('s_add_u32 %s, %s, %s' % (t0, t0, t5))
            I('s_add_u32 %s, %s, 0x%x' % (t0, t0, BE))
            I('v_add_u32 %s, %s, %s' % (V['A4'], t0, V['Rd0']))
            I('s_mov_b32 %s, %s' % (t0, t5))
            I('s_mul_i32 %s, %s, %d' % (t1, sC, 5120))
            I('s_add_u32 %s, %s, %s' % (t1, t1, t0))
            I('s_lshl_b32 s3, %s, 8' % t6)
            I('s_add_u32 %s, %s, s3' % (t1, t1))
            I('v_lshl_add_u32 %s, %s, 4, %s' % (x0, tok, t1))
            I('v_lshl_add_u32 %s, %s, 9, %s' % (V['SX1'], g, x0))
            I('v_lshrrev_b32 %s, 1, %s' % (x1, g))
            I('v_lshl_add_u32 %s, %s, 9, %s' % (x0, x1, x0))
            I('v_and_b32 %s, 1, %s' % (x2, g))
            I('v_lshl_add_u32 %s, %s, 3, %s' % (x0, x2, x0))
            I('v_add_u32 %s, 4096, %s' % (V['SX3'], x0))
            I('s_lshr_b32 %s, %s, 1' % (t1, sC))
            I('s_mul_i32 %s, %s, 10' % (t1, t1))
            I('s_add_u32 %s, %s, %s' % (t1, t1, t6))
            I('s_lshl_b32 %s, %s, 10' % (t1, t1))
            I('s_add_u32 %s, %s, %s' % (t0, t0, t1))
            I('s_and_b32 %s, %s, 1' % (t1, sC))
            I('s_lshl_b32 s3, %s, 12' % t1)
            I('s_add_u32 s3, s3, %s' % t0)
            I('v_add_u32 %s, s3, %s' % (V['S11'], V['Rd0']))
            I('s_lshl_b32 s3, %s, 3' % t1)
            I('s_add_u32 s3, s3, %s' % t0)
            I('s_add_u32 s3, s3, 8192')
            I('v_add_u32 %s, s3, %s' % (V['S13'], V['Rd0']))
            I('s_lshl_b32 s3, %s, 3' % t1)
            I('s_add_u32 %s, %s, s3' % (t0, t5))
            I('s_lshr_b32 s3, %s, 1' % sC)
            I('s_lshl_b32 s3, s3, 9')
            I('s_add_u32 %s, %s, s3' % (t0, t0))
            I('s_lshl_b32 s3, %s, 8' % t6)
            I('s_add_u32 %s, %s, s3' % (t0, t0))
            I('s_add_u32 %s, %s, 0x%x' % (t0, t0, ST))
            I('v_lshl_add_u32 %s, %s, 4, %s' % (x0, tok, t0))
            I('v_lshl_add_u32 %s, %s, 2, %s' % (V['SSt'], x1, x0))
            I('s_add_u32 %s, %s, 0x%x' % (t0, t4, ST))
            I('v_add_u32 %s, %s, %s' % (V['LSt1'], t0, V['Rd0']))
            I('v_lshl_add_u32 %s, %s, 4, %s' % (x0, tok, t0))
            I('v_lshl_add_u32 %s, %s, 9, %s' % (V['LSt3'], g, x0))
            I('s_add_u32 %s, %s, 0x%x' % (sFl32, t4, FL))
            I('s_add_u32 %s, %s, 0x%x' % (sFl16, t5, FL))
            I('s_lshl_b32 s3, %s, 3' % t6)
            I('s_add_u32 s3, s3, %s' % sC)
            I('s_lshl_b32 s3, s3, 2')
            I('s_add_u32 %s, %s, s3' % (sFlP16, sFl16))
            I('s_lshl_b32 s3, %s, 2' % sJ)
            I('s_add_u32 %s, %s, s3' % (sFlP32, sFl32))
            I('v_lshlrev_b32 %s, 2, %s' % (V['Fl'], tok))
            I('s_lshl_b32 %s, %s, 7' % (sKVFc, sJ))
            I('s_add_u32 %s, %s, 0x%x' % (sKVFc, sKVFc, QF))
            I('s_add_u32 %s, %s, %s' % (sKVFp, sKVFp, sKVFc))
            I('s_lshl_b32 %s, s2, 2' % sPreP)
            I('s_add_u32 %s, %s, 0x%x' % (sPreP, sPreP, PREF))
            I('s_lshl_b32 %s, %s, 16' % (t0, sJ))
            I('s_add_u32 %s, %s, 0x%x' % (t0, t0, KVP))
            I('v_lshl_add_u32 %s, v0, 4, %s' % (x0, t0))
            I('v_mov_b32 %s, 0x40000000' % V['KG'])
            I('v_cmp_gt_u32 vcc, %d, v0' % (10 * KU))
            I('v_cndmask_b32 %s, %s, %s, vcc' % (V['KG'], V['KG'], x0))
            self.force_wait('lgkmcnt(0)')
            I('s_add_u32 %s, %s, 0x9e377900' % (sTagG, sTagG))
            I('s_and_b32 %s, %s, 0xffffff00' % (sTagG, sTagG))
            I('s_getreg_b32 s3, hwreg(HW_REG_XCC_ID)')
            I('s_and_b32 s3, s3, 15')
            I('s_or_b32 s3, s3, 16')
            I('s_or_b32 %s, %s, s3' % (sTagL, sTagG))
            I('v_mov_b32 %s, %s' % (V['TagG'], sTagG))
            I('v_mov_b32 %s, %s' % (V['TagL'], sTagL))
            return
        I('v_add_u32 %s, 0x10000, %s' % (V['Rd1'], V['Rd0']))
        I('v_add_u32 %s, 0x20000, %s' % (V['Rd2'], V['Rd0']))
        for k in range(3):
            I('v_add_u32 %s, %s, %s' % (V['RdW%d' % k], sW1k, V['Rd%d' % k]))
        I('v_lshrrev_b32 %s, 5, %s' % (x0, lane))
        I('v_lshlrev_b32 %s, 11, %s' % (x0, x0))
        I('v_bfe_u32 %s, %s, 2, 2' % (x1, lane))
        I('v_lshl_add_u32 %s, %s, 6, %s' % (x0, x1, x0))
        I('v_and_b32 %s, 1, %s' % (x1, lane))
        I('v_lshl_add_u32 %s, %s, 5, %s' % (x2, x1, x0))
        I('v_and_b32 %s, 16, %s' % (x1, lane))
        I('v_add_u32 %s, %s, %s' % (x2, x2, x1))
        I('v_lshl_add_u32 %s, %s, 1, %s' % (x0, x1, x0))
        I('v_and_b32 %s, 2, %s' % (x1, lane))
        I('v_lshl_add_u32 %s, %s, 2, %s' % (V['TrA0'], x1, x2))
        I('v_and_b32 %s, 3, %s' % (x1, lane))
        I('v_lshl_add_u32 %s, %s, 3, %s' % (V['TrB0'], x1, x0))
        for k in 'AB':
            I('v_add_u32 %s, 0x10000, %s' % (V['Tr%s1' % k], V['Tr%s0' % k]))
            I('v_add_u32 %s, 0x20000, %s' % (V['Tr%s2' % k], V['Tr%s0' % k]))
        I('v_lshrrev_b32 %s, 1, %s' % (x1, g))
        I('v_and_b32 %s, 1, %s' % (x2, g))
        I('s_lshr_b32 %s, %s, 2' % (t1, sJ))
        I('s_mul_i32 %s, %s, 5120' % (t1, t1))
        I('s_add_u32 %s, %s, %s' % (t0, t4, t1))
        I('s_add_u32 %s, %s, 0x%x' % (t0, t0, BE))
        I('s_and_b32 %s, %s, 3' % (t1, sJ))
        I('v_mul_u32_u24 %s, 20480, %s' % (x0, x2))
        I('v_lshl_add_u32 %s, %s, 4, %s' % (x0, tok, x0))
        I('s_lshl_b32 s3, %s, 10' % t1)
        I('s_add_u32 s3, s3, %s' % t0)
        I('v_add_u32 %s, s3, %s' % (x3, x0))
        I('v_lshl_add_u32 %s, %s, 8, %s' % (V['SO1'], x1, x3))
        I('s_lshl_b32 s3, %s, 8' % t1)
        I('s_add_u32 s3, s3, %s' % t0)
        I('s_add_u32 s3, s3, 4096')
        I('v_add_u32 %s, s3, %s' % (x3, x0))
        I('v_mov_b32 %s, 0x%x' % (V['SO2'], OOB))
        I('v_cmp_gt_u32 vcc, 32, %s' % lane)
        I('v_cndmask_b32 %s, %s, %s, vcc' % (V['SO2'], V['SO2'], x3))
        I('s_add_u32 %s, %s, 0x%x' % (t0, t4, BE))
        I('s_mul_i32 s3, %s, 3072' % sJ)
        I('s_add_u32 s3, s3, %s' % t0)
        I('v_add_u32 %s, s3, %s' % (V['SH1'], V['Rd0']))
        I('s_lshr_b32 s3, %s, 1' % sJ)
        I('s_add_u32 s3, s3, 48')
        I('s_lshl_b32 s3, s3, 10')
        I('s_add_u32 %s, %s, s3' % (t0, t0))
        I('s_and_b32 s3, %s, 1' % sJ)
        I('s_lshl_b32 s3, s3, 3')
        I('s_add_u32 %s, %s, s3' % (t0, t0))
        I('s_cmp_ge_u32 %s, 12' % sJ)
        I('s_cselect_b32 %s, 0x40000000, %s' % (t0, t0))
        I('v_add_u32 %s, %s, %s' % (V['SH2'], t0, V['Rd0']))
        I('s_mul_i32 %s, %s, %d' % (sOb, sC, 100 * 1024))
        I('s_add_u32 %s, %s, 0x%x' % (sOb, sOb, WOT - slotO(0) * 4096))
        I('s_mul_i32 %s, %s, %d' % (sF1b, sJ, 140 * 1024))
        I('s_add_u32 %s, %s, 0x%x' % (sF1b, sF1b, W1T - slotF1(0) * 4096))
        I('s_mul_i32 %s, %s, %d' % (sF2b, sC, 272 * 1024))
        I('s_add_u32 %s, %s, 0x%x' % (sF2b, sF2b, W2T - slotF2(0) * 4096))
        I('s_lshl_b32 %s, %s, 16' % (t0, sJ))
        I('s_add_u32 %s, %s, 0x%x' % (t0, t0, KVP))
        I('s_lshl_b32 s3, %s, 12' % sRb)
        I('s_add_u32 %s, %s, s3' % (t0, t0))
        I('s_lshr_b32 %s, %s, 1' % (t5, sW))
        I('s_and_b32 %s, %s, 1' % (t6, sW))
        I('s_mul_i32 s3, %s, %d' % (t5, 80 * KU))
        I('s_add_u32 %s, %s, s3' % (t0, t0))
        I('s_lshl_b32 s3, %s, 4' % t6)
        I('v_add_u32 %s, s3, %s' % (x0, tok))
        I('v_cmp_gt_u32 vcc, %d, %s' % (KU, x0))
        I('v_lshl_add_u32 %s, %s, 4, %s' % (x0, x0, t0))
        I('v_mov_b32 %s, 0x40000000' % x3)
        I('v_cndmask_b32 %s, %s, %s, vcc' % (x0, x3, x0))
        I('v_mul_u32_u24 %s, %d, %s' % (V['KS1'], 16 * KU, g))
        I('v_add_u32 %s, %s, %s' % (V['KS1'], V['KS1'], x0))
        I('v_lshl_add_u32 %s, %s, 3, %s' % (x0, g, x0))
        I('v_add_u32 %s, %d, %s' % (x0, 64 * KU, x0))
        I('v_cmp_gt_u32 vcc, 32, %s' % lane)
        I('v_cndmask_b32 %s, %s, %s, vcc' % (V['KS2'], x3, x0))
        I('v_lshlrev_b32 %s, 4, v0' % V['KW'])
        I('v_add_u32 %s, %d, %s' % (V['KW'], KS_Q * 4096, V['KW']))
        I('v_and_b32 %s, 31, %s' % (x0, lane))
        I('v_lshlrev_b32 %s, 7, %s' % (x0, x0))
        I('v_lshl_add_u32 %s, %s, 14, %s' % (x0, x1, x0))
        I('v_and_b32 %s, 7, %s' % (x3, lane))
        I('v_lshl_add_u32 %s, %s, 4, %s' % (x0, x3, x0))
        I('s_lshl_b32 s3, %s, 12' % sW)
        I('s_add_u32 s3, s3, %d' % (T_Q0 * 4096))
        I('v_add_u32 %s, s3, %s' % (V['TW'], x0))
        I('v_bfe_u32 %s, %s, 2, 3' % (x0, lane))
        I('v_lshl_add_u32 %s, %s, 4, %s' % (x3, x1, x0))
        I('v_lshlrev_b32 %s, 7, %s' % (x3, x3))
        I('s_lshl_b32 s3, %s, 14' % t5)
        I('s_add_u32 s3, s3, %d' % (T_Q0 * 4096))
        I('v_add_u32 %s, s3, %s' % (x3, x3))
        I('v_and_b32 %s, 1, %s' % (x2, lane))
        I('v_lshl_add_u32 %s, %s, 3, %s' % (x3, x2, x3))
        I('v_bfe_u32 %s, %s, 1, 1' % (x2, lane))
        I('v_xor_b32 %s, %s, %s' % (V['KA'], x2, x0))
        I('v_lshl_add_u32 %s, %s, 4, %s' % (V['KA'], V['KA'], x3))
        I('v_add_u32 %s, 5, %s' % (x2, x2))
        I('s_cmp_eq_u32 %s, 1' % t6)
        I('s_cselect_b64 vcc, -1, 0')
        I('v_cndmask_b32 %s, %s, 7, vcc' % (x2, x2))
        I('v_xor_b32 %s, %s, %s' % (x2, x2, x0))
        I('v_lshl_add_u32 %s, %s, 4, %s' % (V['KB'], x2, x3))
        I('v_bfe_u32 %s, %s, 3, 2' % (x0, lane))
        I('v_bfe_u32 %s, %s, 2, 1' % (x2, lane))
        I('v_cmp_gt_u32 vcc, 2, %s' % x0)
        I('v_cndmask_b32 %s, 1, %s, vcc' % (x2, x2))
        I('v_lshlrev_b32 %s, 3, %s' % (x2, x2))
        I('v_lshl_add_u32 %s, %s, 2, %s' % (x2, x0, x2))
        I('v_and_b32 %s, 3, %s' % (x0, lane))
        I('v_add_u32 %s, %s, %s' % (x2, x2, x0))
        I('v_mul_u32_u24 %s, %d, %s' % (x0, KU, x1))
        I('v_add_lshl_u32 %s, %s, %s, 4' % (x0, x0, x2))
        I('v_add_u32 %s, %d, %s' % (V['R1'], KS_Q * 4096, x0))
        I('v_cmp_gt_u32 vcc, 32, %s' % lane)
        I('v_mov_b32 %s, %d' % (x3, 6 * KU + 4))
        I('v_cndmask_b32 %s, %s, %s, vcc' % (x0, x3, x2))
        I('v_cndmask_b32 %s, %s, %d, vcc' % (x3, x2, KU + 4))
        I('v_lshlrev_b32 %s, 4, %s' % (x0, x0))
        I('v_lshlrev_b32 %s, 4, %s' % (x3, x3))
        I('v_add_u32 %s, %d, %s' % (V['R20'], KS_Q * 4096 + 64 * KU, x0))
        I('v_add_u32 %s, %d, %s' % (V['R21'], KS_Q * 4096 + 144 * KU, x3))
        I('v_lshlrev_b32 %s, 4, %s' % (x0, x1))
        I('v_add_u32 %s, %d, %s' % (V['Tb1'], PA, x0))
        I('v_lshlrev_b32 %s, 4, %s' % (x0, g))
        I('v_add_u32 %s, %d, %s' % (V['Tb4'], PA, x0))
        I('s_and_b32 %s, %s, 1' % (t0, sRb))
        I('s_lshr_b32 %s, %s, 3' % (t1, sJ))
        I('s_lshl_b32 s3, %s, 1' % t0)
        I('s_add_u32 %s, %s, s3' % (t1, t1))
        for st, r, base, wa, nA, steps, av in (('F1', t0, sF1b, 'P3', 2, 20, None),
                                               ('O', t1, sOb, 'P2', 1, 20, 'A2'), ('F2', t1, sF2b, 'P4', 1, 54, 'A4')):
            pk = 0
            for i, x in enumerate(self.rot[st]):
                pk |= x << (8 * i)
            I('s_lshl_b32 s3, %s, 3' % r)
            I('s_lshr_b32 s3, 0x%x, s3' % pk)
            I('s_and_b32 s3, s3, 0xff')
            I('s_mul_i32 %s, s3, %d' % (t5, nA))
            I('s_sub_u32 %s, %d, %s' % (sWa[wa], steps * nA, t5))
            if not av:
                I('s_lshl_b32 %s, %s, 10' % (sRa3, t5))
            if av:
                I('s_lshl_b32 %s, s3, 10' % t5)
                I('v_add_u32 %s, %s, %s' % (V[av], t5, V[av]))
            I('s_mul_i32 s3, s3, %d' % PPS[st])
            I('s_lshl_b32 %s, s3, 10' % t5)
            I('s_add_u32 %s, %s, %s' % (base, base, t5))
            I('s_add_u32 s3, s3, %s' % sW)
            I('s_sub_u32 s3, %d, s3' % (NPIECE[st] + 3))
            I('s_lshr_b32 %s, s3, 2' % sWr[st])

    def stats(self):
        T = TMP + 28
        o = ['v_pk_add_f32 %s, %s, %s' % (v(T, 2), v(RES, 2), v(RES + 2, 2)),
             'v_pk_mul_f32 %s, %s, %s' % (v(T + 2, 2), v(RES, 2), v(RES, 2))]
        for i in range(1, 10):
            if i > 1:
                o.append('v_pk_add_f32 %s, %s, %s' % (v(T, 2), v(T, 2), v(RES + 2 * i, 2)))
            o.append('v_pk_fma_f32 %s, %s, %s, %s' % (v(T + 2, 2), v(RES + 2 * i, 2), v(RES + 2 * i, 2), v(T + 2, 2)))
        o += ['v_add_f32 %s, %s, %s' % (v(T), v(T), v(T + 1)),
              'v_add_f32 %s, %s, %s' % (v(T + 2), v(T + 2), v(T + 3)),
              'v_permlane32_swap_b32 %s, %s' % (v(T), v(T + 2)),
              'v_add_f32 %s, %s, %s' % (v(T), v(T), v(T + 2)),
              'v_mov_b32 %s, %s' % (v(T + 2), v(T)),
              'v_permlane16_swap_b32 %s, %s' % (v(T), v(T + 2)),
              'v_add_f32 %s, %s, %s' % (v(T + 2), v(T), v(T + 2))]
        return o

    def pack_res(self, P, lo=0, hi=10):
        for i in range(lo, hi):
            self.I('v_cvt_pk_bf16_f32 %s, %s, %s' % (v(P + i), v(RES + 2 * i), v(RES + 2 * i + 1)))

    def publish_x(self, which, burst=(0, 0)):
        a1, a3 = (V['SX1'], V['SX3']) if which == 'XA' else (V['S11'], V['S13'])
        P = TMP + 8

        def sec(sfx):
            st = self.stats()
            self.I('.p2align 3')
            self.pack_res(P, 0, 4)
            self.vm('buffer_store_dwordx4 %s, %s, %s, 0 offen%s' % (v(P, 4), a1, srd(sST), sfx), 'pub')
            self.pack_res(P, 4, 10)
            for x in st[:6]:
                self.I(x)
            self.vm('buffer_store_dwordx4 %s, %s, %s, 0 offen offset:2048%s' % (v(P + 4, 4), a1, srd(sST), sfx), 'pub')
            for x in st[6:21]:
                self.I(x)
            self.vm('buffer_store_dwordx2 %s, %s, %s, 0 offen%s' % (v(P + 8, 2), a3, srd(sST), sfx), 'pub')
            for x in st[21:]:
                self.I(x)
            self.vm('buffer_store_dword %s, %s, %s, 0 offen%s' % (v(TMP + 30), V['SSt'], srd(sST), sfx), 'pub')
            self.bg_burst(burst[0])
            self.wait(vm=['pub'])
            self.flag_local(sFlP16, F_X, sfx)
        self.dual_section(sec)
        self.bg_burst(burst[1])

    def p0(self):
        I = self.I
        cfg = self.cfg
        XL = self.XL
        pp = cfg.get('pp_at', 0)
        self.wait(vm=['x'])
        for i in range(10):
            I('v_lshlrev_b32 %s, 16, %s' % (v(RES + 2 * i), v(XL + i)))
            I('v_and_b32 %s, 0xffff0000, %s' % (v(RES + 2 * i + 1), v(XL + i)))
        for x in self.stats():
            I(x)
        self.vm('buffer_store_dword %s, %s, %s, 0 offen sc1' % (v(TMP + 30), V['SSt'], srd(sST)), 'p0s')
        if pp == 1:
            self.prepass1_issue()
            self.small_loads(1)
        self.stamp(20)
        xs = [('X', (G, p), cfg.get('p0_gap', 70)) for G in range(10) for p in range(4)]
        n1, n2 = cfg.get('p0_x', [10, 28])
        self.bgq = xs[:n1]
        self.bg(True)
        self.addresses(2)
        lane = self.lane
        x0, x1, x2 = v(TMP + 3), v(TMP + 4), v(TMP + 5)
        I('v_and_b32 %s, 31, %s' % (x0, lane))
        I('v_bfe_u32 %s, %s, 1, 3' % (x1, lane))
        I('v_lshrrev_b32 %s, 5, %s' % (x2, lane))
        I('v_xor_b32 %s, %s, %s' % (x1, x1, x2))
        I('v_lshlrev_b32 %s, 4, %s' % (x1, x1))
        I('v_lshl_add_u32 %s, %s, 7, %s' % (x0, x0, x1))
        I('s_lshl2_add_u32 %s, %s, %d' % (t0, sW1k, xslot(0) * 4096))
        I('v_add_u32 %s, %s, %s' % (v(XR), t0, x0))
        for i in range(1, 4):
            I('v_xor_b32 %s, %d, %s' % (v(XR + i), 32 * i, v(XR)))
        for i in range(4):
            I('v_add_u32 %s, 0x10000, %s' % (v(XR + 4 + i), v(XR + i)))
        self.bg(False)
        I('s_lshl_b32 %s, %s, 7' % (t2, sRb))
        I('s_add_u32 %s, %s, 0x%x' % (t2, t2, XF))
        I('s_lshl2_add_u32 %s, %s, %s' % (t3, sJ, t2))
        self.wait(vm=['p0s'])
        self.barrier()
        self.one_wave_store(sW, 'buffer_store_dword %s, off, %s, %s sc1\nbuffer_store_dword %s, off, %s, %s sc1' %
                            (V['TagG'], srd(sWS), sKVFp, V['TagL'], srd(sWS), t3))
        self.stamp(21)
        self.bgq += xs[n1:n2]
        self.x_rest = xs[n2:]
        if pp == 1:
            self.bg_burst(cfg.get('p0_b', 8))
            self.wait(vm=['bias'])
            self.barrier()
        I('v_lshlrev_b32 %s, 16, %s' % (v(TMP + 32), v(self.B1L)))
        I('v_lshlrev_b32 %s, 16, %s' % (v(TMP + 33), v(self.B2L)))
        I('v_min_u32 %s, 127, v0' % v(TMP + 34))
        I('v_lshlrev_b32 %s, 2, %s' % (v(TMP + 34), v(TMP + 34)))
        I('v_add_u32 %s, %d, %s' % (v(TMP + 34), PA, v(TMP + 34)))
        self.lg('ds_write_b32 %s, %s offset:%d' % (v(TMP + 34), v(TMP + 32), TB1 - PA))
        self.lg('ds_write_b32 %s, %s offset:%d' % (v(TMP + 34), v(TMP + 33), TB2 - PA))
        self.prepass2()
        self.bg(True)
        self.build_phi()
        self.stream_reset('Q')
        self.bg_burst(99)
        assert not self.bgq
        self.stamp(22)
        A_, B_, C_ = v(TMP + 32), v(TMP + 33), v(TMP + 34)
        I('v_add_u32 %s, %s, %s' % (A_, sKVFc, V['Fl']))
        I('v_add_u32 %s, %s, %s' % (B_, t2, V['Fl']))
        I('v_cmp_gt_u32 vcc, 0x200, %s' % V['Rd0'])
        I('v_cndmask_b32 %s, %s, %s, vcc' % (A_, A_, B_))
        I('v_cndmask_b32 %s, %s, %s, vcc' % (C_, V['TagG'], V['TagL']))
        I('L_p0_poll:')
        I('buffer_load_dword %s, %s, %s, 0 offen sc1' % (B_, A_, srd(sWS)))
        I('s_sub_u32 %s, %s, 1' % (sTO, sTO))
        I('s_cbranch_scc1 L_end')
        self.force_wait('vmcnt(0)')
        I('v_xor_b32 %s, %s, %s' % (B_, C_, B_))
        I('v_cmp_ne_u32 vcc, 0, %s' % B_)
        I('s_cbranch_vccnz L_p0_more')
        I('L_p0_ok:')
        self.tail += [
            'L_p0_more:',
            'v_cmp_lt_u32 vcc, 15, %s' % B_,
            's_cbranch_vccnz L_p0_poll',
            's_mov_b32 %s, 1' % sSlow,
            's_mov_b32 %s, %s' % (sTagL, sTagG),
            'v_mov_b32 %s, %s' % (V['TagL'], sTagG),
            's_mov_b32 %s, 0x%x' % (sStep, ARENA),
            's_add_u32 s%d, s%d, 0x%x' % (sST, sST, ARENA),
            's_addc_u32 s%d, s%d, 0' % (sST + 1, sST + 1),
            's_mov_b32 s%d, 0' % (sTC + 2),
            's_branch L_p0_ok']

    def build_phi(self):
        I = self.I
        T = TMP
        x0, x1, x2, b0, b1, msk = v(T + 24), v(T + 25), v(T + 26), v(T + 27), v(T + 28), v(T + 29)
        R = V['Rd0']
        I('v_bfe_u32 %s, %s, 4, 1' % (x0, R))
        I('v_bfe_u32 %s, %s, 6, 2' % (x1, R))
        I('v_mul_u32_u24 %s, 40, %s' % (x1, x1))
        I('v_bfe_u32 %s, %s, 5, 1' % (x2, R))
        I('v_lshl_add_u32 %s, %s, 3, %s' % (x1, x2, x1))
        I('v_bfe_u32 %s, %s, 8, 1' % (x2, R))
        I('v_lshl_add_u32 %s, %s, 4, %s' % (x1, x2, x1))
        I('v_add_u32 %s, %d, %s' % (x1, TPHI, x1))
        I('v_mul_u32_u24 %s, 960, %s' % (x2, x0))
        I('v_add_u32 %s, %s, %s' % (b0, x1, x2))
        I('v_mul_u32_u24 %s, 160, %s' % (x2, x0))
        I('v_add_u32 %s, %s, %s' % (b1, x1, x2))
        I('v_bfe_u32 %s, %s, 6, 1' % (x0, R))
        I('v_lshrrev_b32 %s, 9, %s' % (x2, R))
        I('v_cmp_eq_u32 vcc, %s, %s' % (x0, x2))
        I('v_cndmask_b32 %s, 0, -1, vcc' % msk)
        for Tt in range(2):
            for sq in range(5):
                self.lg('ds_read_b64_tr_b16 %s, %s offset:%d' %
                        (v(T + 12 * Tt + 2 * sq, 2), b0 if sq < 4 else b1, 160 * sq + 32 * Tt), 'phir')
        self.wait(lg=['phir'])
        for Tt in range(2):
            for i in range(12):
                if i < 10:
                    I('v_and_b32 %s, %s, %s' % (v(T + 12 * Tt + i), msk, v(T + 12 * Tt + i)))
                    I('v_accvgpr_write_b32 %s, %s' % (a(aPHI + 12 * Tt + i), v(T + 12 * Tt + i)))
                else:
                    I('v_accvgpr_write_b32 %s, 0' % a(aPHI + 12 * Tt + i))

    def ln1_ops(self):
        SL, CS = TMP + 44, BF + 24
        ops = [lambda: self.wait(vm=['st1'])]
        for i in range(2):
            ops += ['v_add_f32 %s, %s, %s' % (v(SL + i), v(SL + i), v(SL + 2 + i)),
                    'v_add_f32 %s, %s, %s' % (v(SL + 4 + i), v(SL + 4 + i), v(SL + 6 + i))]
        for i in range(2):
            ops += ['v_add_f32 %s, %s, %s' % (v(SL + i), v(SL + i), v(SL + 4 + i))]
        for i in range(2):
            ops += ['v_mov_b32 %s, %s' % (v(SL + 2 + i), v(SL + i))]
        for i in range(2):
            ops += ['v_permlane32_swap_b32 %s, %s' % (v(SL + i), v(SL + 2 + i))]
        for i in range(2):
            ops += ['v_add_f32 %s, %s, %s' % (v(SL + i), v(SL + i), v(SL + 2 + i))]
        ops += self.ln_coeffs(SL, SL + 2)
        rd = []
        for q in range(15):
            rd.append(lambda q=q: self.lg('ds_read_b128 %s, %s offset:%d' % (v(CS + 4 * q, 4), V['Tb1'], TCS1 - PA + 32 * q),
                                          ('csr', q)))
        mul = []
        for q in range(15):
            mul.append(lambda q=q: self.wait(lg=[('csr', q)]))
            mul += ['v_mul_f32 %s, %s, %s' % (v(CS + 4 * q + i), v(SL + 1), v(CS + 4 * q + i)) for i in range(4)]
        return ops, rd, mul

    def p1(self, first):
        I = self.I
        cfg = self.cfg
        name = 'P1a' if first else 'P1b'
        SL = TMP + 44
        CF, SEL, CA, CB = TMP + 32, TMP + 36, TMP + 40, v(TMP + 52)

        def mf(s, f, r):
            c = v(ACC + 16 * f, 16)
            return ['v_mfma_f32_32x32x16_bf16 %s, %s, %s, %s' % (c, v(r, 4), a(4 * s, 4), c if s else '0')]

        def st_loads():
            self.vm('buffer_load_dwordx4 %s, %s, %s, 0 offen sc1' % (v(SL, 4), V['LSt1'], srd(sLD)), 'st1')
            self.vm('buffer_load_dwordx4 %s, %s, %s, 0 offen offset:1024 sc1' % (v(SL + 4, 4), V['LSt1'], srd(sLD)), 'st1')
        ops, rd, mul = self.ln1_ops()
        if not first:
            self.regap(lambda st, n: cfg.get('p1b_gap', 100))
            self.bgq += self.touches('O')
            sh = [(12, x) for x in ops + rd + mul]

            def entry():
                self.poll(V['Fl'], sLD, sFl32, F_X, sTagL)
                self.stamp(17)
            self.gemm(name, 40, 4, 'Q', lambda i: 4 * i, V['A1'], 1, mf, L=5, we=2, bars=cfg.get('p1b_bars', [0, 14, 26]),
                      a0=cfg.get('p1b_a0', 2), arate=cfg.get('p1b_arate', 2), hooks={4: st_loads}, tr=True, shadow=sh, entry=entry,
                      win=cfg.get('p1b_win', 8))
            assert not self.bgq, self.bgq
            self.wait(vm_all=True, lg_all=True)
            self.barrier()
            return

        hooks = {}
        slot = self.slotf('Q')
        seg = [0]
        PL = TMP
        s_pf, s_ld = cfg.get('pre_steps', [0, 35])
        xu_steps = cfg.get('xu_steps', [8, 12, 15])
        f_steps = cfg.get('f_steps', [])
        ftouch = []
        for w in cfg.get('first_touch', ['O', 'X1']):
            ftouch += self.touches(w, always=True)
        ftouch += [('T', 'buffer_load_dword %s, %s, %s, %s offen sc1' % (a(aDUM), V['Fl'], srd(sTC), sFl32), 0)]

        def unload(G):
            assert not any(j[0] == 'X' and j[1][0] == G for j in self.bgq), ('x group late', G)
            self.wait(vm=[('X', G)])
            off = (xslot(G) - xslot(0)) * 4096
            for i in range(4):
                tag = self.lg('ds_read_b128 %s, %s offset:%d' % (a(16 * G + 4 * i, 4), v(XR + 4 * (off >> 16) + i), off & 0xffff),
                              ('xu', G))
            for q in range(4):
                self.q_read(xslot(G) + q, ('X', G), tag, private=True)
                if G < 4 or G >= 7:
                    self.q_done(xslot(G) + q)
            self.xdone.add(('xu', G))

        def h_start():
            I('v_bfe_u32 %s, %s, 8, 1' % (v(SEL), V['Rd0']))
            I('v_bfe_u32 %s, %s, 6, 1' % (v(SEL + 1), V['Rd0']))
            I('v_cmp_eq_u32 vcc, %s, %s' % (v(SEL), v(SEL + 1)))
            I('v_mov_b32 %s, 0x3f803f80' % v(SEL + 1))
            I('v_cndmask_b32 %s, 0, %s, vcc' % (v(SEL), v(SEL + 1)))
            for i in range(1, 4):
                I('v_mov_b32 %s, %s' % (v(SEL + i), v(SEL)))
            I('s_cmp_eq_u32 %s, 3' % sW)
            I('s_cselect_b64 vcc, -1, 0')
            I('v_cndmask_b32 %s, %s, %s, vcc' % (CB, V['TrA0'], V['TrB0']))
            I('s_lshr_b32 %s, %s, 2' % (t0, sW1k))
            I('v_add_u32 %s, %s, %s' % (CB, t0, CB))
            I('s_mov_b32 %s, 0x%x' % (t1, PREF))
            self.wait(lg_all=True)

        def h_first():
            self.bg_burst(6)
            for G in (4, 5, 6, 0, 1, 2, 3):
                unload(G)
            h_start()
            self.barrier()
            self.bg_burst(cfg.get('p1a_b', 4))
        hooks[-2] = h_first

        def step_hook(s):
            def fn():
                if s in (0, 10, 20, 30):
                    self.stamp(25 + s // 10)
                if s in xu_steps:
                    unload(7 + xu_steps.index(s))
                if s == s_pf:
                    assert self.pre_bar
                    self.one_wave_store(sW, 'buffer_store_dword %s, off, %s, %s sc1' % (V['TagG'], srd(sWS), sPreP))
                if s == 16:
                    st_loads()
                if s == s_ld:
                    I('s_cmp_eq_u32 %s, 1' % sW)
                    I('s_cbranch_scc0 L_pre_nl')
                    I('buffer_load_dwordx4 %s, %s, %s, %s offen sc1' % (v(PL, 4), V['Rd0'], srd(sWS), t1))
                    I('L_pre_nl:')
                for _ in range(f_steps.count(s)):
                    self.vm(ftouch.pop(0)[1])
                if s > 0:
                    self.wait(lg=[('cs', s - 1)])
                    I('v_mfma_f32_16x16x32_bf16 %s, %s, %s, %s' %
                      (v(CA, 4), v(SEL, 4), v(CF, 4), v(CA, 4) if s > 1 else '0'))
                    base, off = self.ldsaddr(slot(s - 1) * 4096, 'RdW')
                    tag = self.lg('ds_read_b128 %s, %s offset:%d' % (a(4 * (s - 1), 4), base, off), ('cap', s - 1))
                    self.q_read(slot(s - 1), ('Q', s - 1), tag)
                    self.q_done(slot(s - 1))
                if s < 40:
                    byte = slot(s) * 4096
                    if byte >> 16 != seg[0]:
                        I('v_add_u32 %s, 0x%x, %s' % (CB, (((byte >> 16) - seg[0]) << 16) & 0xffffffff, CB))
                        seg[0] = byte >> 16
                    for ab in range(2):
                        tag = self.lg('ds_read_b64_tr_b16 %s, %s offset:%d' %
                                      (v(CF + 2 * ab, 2), CB, (byte & 0xffff) + 1024 * ab), ('cs', s))
                        self.q_read(slot(s), ('Q', s), tag)
            return fn
        for s in range(40):
            hooks[s] = step_hook(s)
        qs = [('Q', n, 0) for n in range(40)]
        order = qs[:8]
        for i, x in enumerate(self.x_rest):
            order += [(x[0], x[1], 0), qs[8 + i]]
        self.bgq = order + qs[8 + len(self.x_rest):]
        self.gemm(name, 40, 4, 'Q', None, None, 0, mf, L=5, we=2,
                  bars=cfg.get('p1a_bars', [0, 2, 4, 7, 10, 13, 16, 20, 24, 28, 32, 36]), a0=0, arate=0, hooks=hooks, tr=True,
                  shadow=[(24, x) for x in ops], jobrate=cfg.get('p1a_rate', 2))
        assert not self.bgq, self.bgq
        self.stamp(24)
        step_hook(40)()
        I('v_bfe_u32 %s, %s, 2, 7' % (v(CF), V['Rd0']))
        I('s_lshr_b32 %s, %s, 3' % (t0, sW1k))
        I('s_add_u32 %s, %s, %d' % (t0, t0, TCS1))
        I('v_add_u32 %s, %s, %s' % (v(CF), t0, v(CF)))
        self.lg('ds_write_b32 %s, %s' % (v(CF), v(CA)))
        I('s_mov_b64 s[%d:%d], s[66:67]' % (sXO, sXO + 1))
        self.wait(vm_all=True)
        I('s_cmp_eq_u32 %s, 1' % sW)
        I('s_cbranch_scc0 L_pre_ok')
        I('L_pre_ck:')
        I('s_waitcnt vmcnt(0)')
        for i in range(4):
            I('v_xor_b32 %s, %s, %s' % (v(PL + i), sTagG, v(PL + i)))
        I('v_or3_b32 %s, %s, %s, %s' % (v(PL), v(PL), v(PL + 1), v(PL + 2)))
        I('v_or_b32 %s, %s, %s' % (v(PL), v(PL), v(PL + 3)))
        I('v_cmp_ne_u32 vcc, 0, %s' % v(PL))
        I('s_cbranch_vccnz L_pre_again')
        I('L_pre_ok:')
        self.tail += ['L_pre_again:', 's_sleep 8',
                      'buffer_load_dwordx4 %s, %s, %s, %s offen sc1' % (v(PL, 4), V['Rd0'], srd(sWS), t1),
                      's_sub_u32 %s, %s, 1' % (sTO, sTO), 's_cbranch_scc1 L_end', 's_branch L_pre_ck']
        for x in ftouch:
            I(x[1])
        self.wait(lg_all=True)
        self.barrier()
        for x in rd:
            x()
        CS = BF + 24
        I('.p2align 3')
        for q in range(15):
            self.wait(lg=[('csr', q | 3)] if q < 12 else [('csr', 14)])
            for i in (0, 2):
                I('v_pk_mul_f32 %s, %s, %s op_sel:[0,1] op_sel_hi:[1,1]' % (v(CS + 4 * q + i, 2), v(CS + 4 * q + i, 2), v(SL, 2)))
        self.first = False

    def barrier(self):
        super().barrier()
        self.pre_bar = 'pre' not in self.vmq

    def ln_coeffs(self, S, n):
        x = v(n)
        return ['v_mul_f32 %s, 0x%x, %s' % (v(S), 0xbacccccd, v(S)),
                'v_mul_f32 %s, %s, %s' % (x, v(S), v(S)),
                'v_mul_f32 %s, 0x%x, %s' % (v(S + 1), 0x3acccccd, v(S + 1)),
                'v_sub_f32 %s, %s, %s' % (x, v(S + 1), x),
                'v_max_f32 %s, 0, %s' % (x, x),
                'v_add_f32 %s, 0x%x, %s' % (x, 0x3727c5ac, x),
                'v_rsq_f32 %s, %s' % (x, x),
                'v_mul_f32 %s, %s, %s' % (v(S + 1), x, v(S)),
                'v_mov_b32 %s, %s' % (v(S), x)]

    def softmax_pair(self, Pq, E, dst, after=None, mid=None):
        I = self.I
        M = TMP + 54
        mx, mn = v(M), v(M + 1)
        I('s_mov_b32 s100, 0x%x' % LOG2E)
        I('s_mov_b32 s101, 0x%x' % LOG2E)
        I('.p2align 3')
        I('v_max3_f32 %s, %s, %s, %s' % (mx, v(Pq), v(Pq + 1), v(Pq + 2)))
        I('v_min3_f32 %s, %s, %s, %s' % (mn, v(Pq), v(Pq + 1), v(Pq + 2)))
        for i in range(3, 19, 2):
            I('v_max3_f32 %s, %s, %s, %s' % (mx, mx, v(Pq + i), v(Pq + i + 1)))
            I('v_min3_f32 %s, %s, %s, %s' % (mn, mn, v(Pq + i), v(Pq + i + 1)))
        I('v_max_f32 %s, %s, %s' % (mx, mx, v(Pq + 19)))
        I('v_min_f32 %s, %s, %s' % (mn, mn, v(Pq + 19)))
        I('v_pk_mul_f32 %s, %s, s[100:101] neg_lo:[1,0]' % (v(M, 2), v(M, 2)))
        for i in range(10):
            I('v_pk_fma_f32 %s, %s, s[100:101], %s op_sel_hi:[1,1,0]' % (v(E + 2 * i, 2), v(Pq + 2 * i, 2), v(M, 2)))
            I('v_pk_fma_f32 %s, %s, s[100:101], %s op_sel:[0,0,1] op_sel_hi:[1,1,1] neg_lo:[1,0,0] neg_hi:[1,0,0]' %
              (v(E + 20 + 2 * i, 2), v(Pq + 2 * i, 2), v(M, 2)))
        for i in range(40):
            I('v_exp_f32 %s, %s' % (v(E + i), v(E + i)))
            if mid and i == mid[0]:
                mid[1]()
        S0, S1 = Pq, Pq + 2
        I('.p2align 3')
        for h, S in ((0, S0), (1, S1)):
            I('v_pk_add_f32 %s, %s, %s' % (v(S, 2), v(E + 20 * h, 2), v(E + 20 * h + 2, 2)))
        for i in range(2, 10):
            for h, S in ((0, S0), (1, S1)):
                I('v_pk_add_f32 %s, %s, %s' % (v(S, 2), v(S, 2), v(E + 20 * h + 2 * i, 2)))
        I('v_add_f32 %s, %s, %s' % (mx, v(S0), v(S0 + 1)))
        I('v_add_f32 %s, %s, %s' % (mn, v(S1), v(S1 + 1)))
        I('v_rcp_f32 %s, %s' % (mx, mx))
        I('v_rcp_f32 %s, %s' % (mn, mn))
        for u in range(5):
            for i in range(4 * u, 4 * u + 4):
                sel = 'op_sel_hi:[1,0]' if i < 10 else 'op_sel:[0,1] op_sel_hi:[1,1]'
                I('v_pk_mul_f32 %s, %s, %s %s' % (v(E + 2 * i, 2), v(E + 2 * i, 2), v(M, 2), sel))
            for i in range(4 * u, 4 * u + 4):
                I('v_cvt_pk_bf16_f32 %s, %s, %s' % (dst(i), v(E + 2 * i), v(E + 2 * i + 1)))
            if after:
                after(u)

    def phi_mfma(self, KP, D):
        out = []
        for ks in range(3):
            for Tt in range(2):
                c = v(D + 16 * Tt, 16)
                out.append('v_mfma_f32_32x32x16_bf16 %s, %s, %s, %s' %
                           (c, a(aPHI + 12 * Tt + 4 * ks, 4), v(KP + 4 * ks, 4), c if ks else '0'))
        return out

    def attention(self):
        I = self.I
        cfg = self.cfg
        SL = TMP + 44
        CS = BF + 24
        self.bgq = self.plan(cfg.get('at_plan', [['O', 25, 90], ['F1', 35, 150]]))
        self.bg_last = self.clk + cfg.get('at_delay', 0) - 90

        def ln(off, n, packed=True):
            for i in range(0, n, 2):
                if packed:
                    I('v_pk_fma_f32 %s, %s, %s, %s op_sel_hi:[1,0,1]' %
                      (v(ACC + off + i, 2), v(ACC + off + i, 2), v(SL, 2), v(CS + off + i, 2)))
                else:
                    for e in (i, i + 1):
                        I('v_fma_f32 %s, %s, %s, %s' % (v(ACC + off + e), v(ACC + off + e), v(SL), v(CS + off + e)))

        def pack20(P, main, extra):
            for i in range(8):
                I('v_cvt_pk_bf16_f32 %s, %s, %s' % (v(P + i), v(ACC + main + 2 * i), v(ACC + main + 2 * i + 1)))
            for i in range(2):
                I('v_cvt_pk_bf16_f32 %s, %s, %s' % (v(P + 8 + i), v(ACC + extra + 2 * i), v(ACC + extra + 2 * i + 1)))
        KP, D = TMP + 20, BF
        for st in ('O', 'F1', 'F2'):
            self.stream_reset(st)
        I('v_mov_b32 %s, 0' % v(KP + 10))
        I('v_mov_b32 %s, 0' % v(KP + 11))
        I('.p2align 3')
        ln(0, 16)
        ln(48, 4)
        pack20(KP, 0, 48)
        mfs = self.phi_mfma(KP, D)
        VP = ACC
        WA = TMP + 32
        side = ['v_fma_f32 %s, %s, %s, %s' % (v(ACC + e), v(ACC + e), v(SL), v(CS + e)) for e in list(range(16, 32)) + [52, 53, 54, 55]]
        side += ['v_xor_b32 %s, %d, %s' % (v(WA + u), 16 * u, V['TW']) for u in range(8)]
        side += ['v_mov_b32 %s, 0x3f80' % v(VP + 10), 'v_mov_b32 %s, 0' % v(VP + 11)]
        self.bg(True)
        for m in mfs:
            I(m)
            for _ in range(5):
                I(side.pop(0))
        assert not side
        pack20(VP, 16, 52)

        def twrite(u, r):
            tag = self.lg('ds_write_b128 %s, %s' % (v(WA + u), v(r, 4)), 'tw')
            for q in range(8):
                self.q_fill(T_Q0 + q, 'T', tag)
        for u in range(3):
            twrite(5 + u, VP + 4 * u)
        I('.p2align 3')
        ln(32, 16)
        ln(56, 4)
        E = BF + 32
        PK = ACC + 12
        self.softmax_pair(D, E, lambda i: v(PK + i), after=lambda u: twrite(u, PK + 4 * u))
        self.bg(False)
        pack20(KP, 32, 56)
        self.wait(lg_all=True)
        self.barrier()
        self.stamp(1)
        KA = TMP + 32
        I('v_xor_b32 %s, 32, %s' % (v(KA), V['KA']))
        I('v_xor_b32 %s, 64, %s' % (v(KA + 1), V['KA']))
        DK = TMP
        FR = ACC
        for ks in range(5):
            for f in range(4 if ks < 4 else 0):
                base = V['KB'] if f == 0 else (V['KA'], v(KA), v(KA + 1))[f - 1]
                for ab in range(2):
                    tag = self.lg('ds_read_b64_tr_b16 %s, %s offset:%d' %
                                  (v(FR + 16 * ks + 4 * f + 2 * ab, 2), base, 4096 * ks + 1024 * ab), ('kvr', ks, f))
                    for q in range(8):
                        self.q_read(T_Q0 + q, 'T', tag)
                if ks > 0 and f < 3:
                    self.wait(lg=[('kvr', ks - 1, f + 1)])
                    c = v(DK + 4 * f, 4)
                    I('v_mfma_f32_16x16x32_bf16 %s, %s, %s, %s' %
                      (c, v(FR + 16 * (ks - 1) + 4 * f + 4, 4), v(FR + 16 * (ks - 1), 4), c if ks > 1 else '0'))
        for q in range(8):
            self.q_done(T_Q0 + q)
        for t in range(3):
            self.wait(lg=[('kvr', 3, t + 1)])
            c = v(DK + 4 * t, 4)
            I('v_mfma_f32_16x16x32_bf16 %s, %s, %s, %s' % (c, v(FR + 52 + 4 * t, 4), v(FR + 48, 4), c))
        mfs = self.phi_mfma(KP, D)
        I(mfs.pop(0))
        PV = TMP + 12
        for i in range(6):
            I('v_cvt_pk_bf16_f32 %s, %s, %s' % (v(PV + i), v(DK + 2 * i), v(DK + 2 * i + 1)))
            I('v_min_u32 %s, -2, %s' % (v(PV + i), v(PV + i)))
        self.vm('buffer_store_dwordx4 %s, %s, %s, 0 offen sc1' % (v(PV, 4), V['KS1'], srd(sWS)), 'kvs')
        self.vm('buffer_store_dwordx2 %s, %s, %s, 0 offen sc1' % (v(PV + 4, 2), V['KS2'], srd(sWS)), 'kvs')
        self.stamp(2)
        self.bg(True)
        for m in mfs:
            I(m)
        PQ = ACC
        qpos = lambda i: v(PQ + ((4 * ((i % 8) >> 1) + 2 * (i >> 3) + (i & 1)) if i < 16 else i))

        self.barrier()
        self.softmax_pair(D, E, qpos)
        for pr in range(2):
            for i in range(4):
                I('v_permlane32_swap_b32 %s, %s' % (v(PQ + 8 * pr + i), v(PQ + 8 * pr + 4 + i)))
        self.bg(False)
        self.stamp(3)
        self.bg_burst(cfg.get('at_b1', 0))
        self.wait(vm=['kvs'])
        self.stamp(4)
        G = BF
        gl = lambda p: 'buffer_load_dwordx4 %s, %s, %s, %s offen sc1' % (v(G + 4 * p, 4), V['KG'], srd(sWS), sK4(p))
        for p in range(16):
            self.vm(gl(p), ('kg', p))
        I('s_mov_b32 %s, 0x%x' % (t0, CSP))
        self.vm('buffer_load_dwordx4 %s, v1, %s, %s offen sc1' % (v(TMP + 16, 4), srd(sWS), t0), 'csp')
        SM = TMP
        I('s_mov_b32 s100, 0x00003f80')
        I('s_mov_b32 s101, 0x3f800000')
        for i in range(8):
            I('v_mov_b32 %s, 0' % v(SM + i))
        b2 = cfg.get('at_b2', [8, 10, 12, 13, 14, 15])
        for p in range(16):
            self.bg_burst(b2.count(p))
            self.wait(vm=[('kg', p)])
            lab = self.label('L_kv')
            I('%s:' % lab)
            I('v_max3_u32 %s, %s, %s, %s' % (v(TMP + 21), v(G + 4 * p), v(G + 4 * p + 1), v(G + 4 * p + 2)))
            I('v_max_u32 %s, %s, %s' % (v(TMP + 21), v(TMP + 21), v(G + 4 * p + 3)))
            I('v_cmp_eq_u32 vcc, -1, %s' % v(TMP + 21))
            I('s_cbranch_vccnz %s_r' % lab)
            self.tail += ['%s_r:' % lab, 's_sleep %d' % cfg.get('kv_sleep', 2), gl(p), 's_sub_u32 %s, %s, 1' % (sTO, sTO),
                          's_cbranch_scc1 L_end', 's_waitcnt vmcnt(0)', 's_branch %s' % lab]
            for i in range(4):
                I('v_dot2c_f32_bf16 %s, s100, %s' % (v(SM + 2 * i), v(G + 4 * p + i)))
                I('v_dot2c_f32_bf16 %s, s101, %s' % (v(SM + 2 * i + 1), v(G + 4 * p + i)))
        for i in range(4):
            I('v_cvt_pk_bf16_f32 %s, %s, %s' % (v(SM + 8 + i), v(SM + 2 * i), v(SM + 2 * i + 1)))
        tag = self.lg('ds_write_b128 %s, %s' % (V['KW'], v(SM + 8, 4)), 'ksw')
        self.q_fill(KS_Q, 'KS', tag)
        self.wait(lg_all=True)
        self.barrier()
        self.stamp(5)
        AF = BF
        for ks in range(3):
            for hd in range(2):
                base, off = (V['R1'], 80 * KU * hd + 32 * KU * ks) if ks < 2 else (V['R2%d' % hd], 0)
                tag = self.lg('ds_read_b128 %s, %s offset:%d' % (v(AF + 8 * ks + 4 * hd, 4), base, off), ('ksr', ks))
                self.q_read(KS_Q, 'KS', tag)
        self.q_done(KS_Q)
        I('v_min_u32 %s, 127, v0' % v(TMP + 40))
        I('v_lshlrev_b32 %s, 2, %s' % (v(TMP + 40), v(TMP + 40)))
        I('v_add_u32 %s, %d, %s' % (v(TMP + 40), TCS3, v(TMP + 40)))
        self.wait(vm=['csp'])
        I('v_pk_add_f32 %s, %s, %s' % (v(TMP + 42, 2), v(TMP + 16, 2), v(TMP + 18, 2)))
        I('v_add_f32 %s, %s, %s' % (v(TMP + 42), v(TMP + 42), v(TMP + 43)))
        self.lg('ds_write_b32 %s, %s' % (v(TMP + 40), v(TMP + 42)))
        self.bg_burst(cfg.get('at_b3', 0))
        DO = TMP
        for ks in range(3):
            self.wait(lg=[('ksr', ks)])
            for hd in range(2):
                c = v(DO + 16 * hd, 16)
                b = v(PQ + 8 * ks + 4 * hd, 4) if ks < 2 else v(PQ + 16, 4)
                I('v_mfma_f32_32x32x16_bf16 %s, %s, %s, %s' % (c, v(AF + 8 * ks + 4 * hd, 4), b, c if ks else '0'))
        OP = ACC + 24
        for n in ('KS1', 'KS2', 'KG'):
            I('v_add_u32 %s, 0x100000, %s' % (V[n], V[n]))

        def sec(sfx):
            for hd in range(2):
                b = DO + 16 * hd
                I('v_add_f32 %s, 0x%x, %s' % (v(b + 12), 0x358637bd, v(b + 12)))
                I('v_rcp_f32 %s, %s' % (v(b + 12), v(b + 12)))
                I('s_nop 0')
                I('.p2align 3')
                for i in range(6):
                    I('v_pk_mul_f32 %s, %s, %s op_sel_hi:[1,0]' % (v(b + 2 * i, 2), v(b + 2 * i, 2), v(b + 12, 2)))
                for i in range(6):
                    d = OP + 4 * hd + i if i < 4 else OP + 8 + 2 * hd + (i - 4)
                    I('v_cvt_pk_bf16_f32 %s, %s, %s' % (v(d), v(b + 2 * i), v(b + 2 * i + 1)))
                    if i == 3:
                        self.vm('buffer_store_dwordx4 %s, %s, %s, 0 offen offset:%d%s' %
                                (v(OP + 4 * hd, 4), V['SO1'], srd(sST), 512 * hd, sfx), 'pub')
            self.vm('buffer_store_dwordx4 %s, %s, %s, 0 offen%s' % (v(OP + 8, 4), V['SO2'], srd(sST), sfx), 'pub')
            self.bg_burst(cfg.get('at_b4', 0))
            self.wait(vm=['pub'])
            self.flag_local(sFlP32, F_B, sfx)
        self.dual_section(sec)
        self.bg_burst(cfg.get('at_b5', 0))
        self.stamp(6)

    def plan(self, spec):
        pos = {}
        out = []
        for st, cnt, gap in spec:
            for _ in range(cnt):
                out.append((st, pos.get(st, 0), gap))
                pos[st] = pos.get(st, 0) + 1
        return out

    def regap(self, gaps):
        self.bgq = [(st, n, gaps(st, n)) for st, n, g in self.bgq]

    def mf16(self, areg):
        def mf(s, f, r):
            c = v(RES + 4 * f, 4)
            return ['v_mfma_f32_16x16x32_bf16 %s, %s, %s, %s' % (c, v(r, 4), a(areg(s), 4), c)]
        return mf

    def p2(self):
        cfg = self.cfg

        def entry():
            self.poll(V['Fl'], sLD, sFl16, F_B, sTagL)
            self.stamp(7)
        self.regap(lambda st, n: cfg.get('p2_gap', 100))
        self.bgq = self.touches('X1') + self.bgq
        ar = lambda i: aWIN + 4 * (i % 17)
        self.gemm('P2', 20, 5, 'O', ar, V['A2'], 1, self.mf16(ar), L=10, we=5, win=17,
                  bars=cfg.get('p2_bars', [0, 10, 18]), a0=cfg.get('p2_a0', 3), arate=cfg.get('p2_arate', 1.25),
                  entry=entry, hooks={-1: self.next_tag},
                  jobstart=cfg.get('p2_js', 4), jobstop=cfg.get('p2_je', 99))
        self.stamp(8)
        self.publish_x('X1', burst=cfg.get('p2_burst', [4, 4]))
        self.stamp(9)

    def p3(self):
        I = self.I
        cfg = self.cfg
        SL = TMP + 44

        def entry():
            self.poll(V['Fl'], sLD, sFl32, F_X, sTagL)
            self.stamp(10)

        def mf(s, f, r):
            out = []
            for tt in range(2):
                c = v(ACC + 28 * tt + 4 * f, 4)
                out.append('v_mfma_f32_16x16x32_bf16 %s, %s, %s, %s' % (c, v(r, 4), a(aWIN + 8 * (s % 8) + 4 * tt, 4), c if s else '0'))
            return out

        def h_start():
            for tt in range(2):
                self.vm('buffer_load_dwordx4 %s, %s, %s, 0 offen offset:%d sc1' %
                        (v(SL + 4 * tt, 4), V['LSt3'], srd(sLD), 256 * tt), 'st3')
        self.regap(lambda st, n: cfg.get('p3_gap1', 100))
        self.bgq += [('F2', n, cfg.get('p3_gap2', 200)) for n in range(68)]

        def h_touch():
            self.bgq = self.touches('H', cfg.get('p3_tgap', 64)) + self.bgq
        CS, T1, T0 = BF + 24, BF + 52, TMP + 16
        sh = [lambda: self.wait(vm=['st3'])]
        for tt in range(2):
            S = SL + 4 * tt
            sh += ['v_add_f32 %s, %s, %s' % (v(S + i), v(S + i), v(S + 2 + i)) for i in range(2)]
            for sw in ('v_permlane32_swap_b32', 'v_permlane16_swap_b32'):
                sh += ['v_mov_b32 %s, %s' % (v(S + 2 + i), v(S + i)) for i in range(2)]
                sh += ['%s %s, %s' % (sw, v(S + i), v(S + 2 + i)) for i in range(2)]
                sh += ['v_add_f32 %s, %s, %s' % (v(S + i), v(S + i), v(S + 2 + i)) for i in range(2)]
            sh += self.ln_coeffs(S, S + 2)
        for t in range(7):
            sh.append(lambda t=t: self.lg('ds_read_b128 %s, %s offset:%d' % (v(CS + 4 * t, 4), V['Tb4'], TCS3 - PA + 64 * t), ('tb', t)))
            sh.append(lambda t=t: self.lg('ds_read_b128 %s, %s offset:%d' % (v(T1 + 4 * t, 4), V['Tb4'], TB1 - PA + 64 * t), ('tb', t)))
        for t in range(7):
            sh.append(lambda t=t: self.wait(lg=[('tb', t)]))
            for i in range(4 * t, 4 * t + 4):
                sh.append('v_fma_f32 %s, %s, %s, %s' % (v(T0 + i), v(CS + i), v(SL + 1), v(T1 + i)))
                sh.append('v_fmac_f32 %s, %s, %s' % (v(T1 + i), v(CS + i), v(SL + 5)))
        self.gemm('P3', 20, 7, 'F1', lambda i: aWIN + 4 * (i % 16), V['A1'], 2, mf, L=5, we=2, win=16,
                  bars=cfg.get('p3_bars', [0, 4, 8, 12, 16, 19]), a0=cfg.get('p3_a0', 4), arate=cfg.get('p3_arate', 3),
                  hooks={1: h_start, cfg.get('p3_tstep', 12): h_touch}, jobstart=cfg.get('p3_js', 0),
                  jobstop=cfg.get('p3_je', 99), shadow=[(5, x) for x in sh], entry=entry)
        assert not [j for j in self.bgq if j[0] == 'T']
        self.regap(lambda st, n: cfg.get('e3_gap', 100))
        self.stamp(11)
        for t in range(5):
            self.lg('ds_read_b128 %s, %s offset:%d' % (v(BF + 4 * t, 4), V['Tb4'], TB2 - PA + 64 * t), 'tb')

        def sec(sfx):
            for tt in range(2):
                self.bg(cfg.get('e3_bg', 1) > tt)
                S = SL + 4 * tt
                Cc = ACC + 28 * tt
                TT = (T0, T1)[tt]
                HP = BF + 20 + 16 * tt
                so = sH54 if tt else '0'
                I('.p2align 3')
                for i in ([12, 13] + list(range(12)) if tt else range(14)):
                    I('v_pk_fma_f32 %s, %s, %s, %s op_sel_hi:[1,0,1]' % (v(Cc + 2 * i, 2), v(Cc + 2 * i, 2), v(S, 2), v(TT + 2 * i, 2)))
                    I('v_max_f32 %s, 0, %s' % (v(Cc + 2 * i), v(Cc + 2 * i)))
                    I('v_max_f32 %s, 0, %s' % (v(Cc + 2 * i + 1), v(Cc + 2 * i + 1)))
                    I('v_pk_mul_f32 %s, %s, %s' % (v(Cc + 2 * i, 2), v(Cc + 2 * i, 2), v(Cc + 2 * i, 2)))
                    I('v_cvt_pk_bf16_f32 %s, %s, %s' % (v(HP + i), v(Cc + 2 * i), v(Cc + 2 * i + 1)))
                    if i == 13:
                        self.vm('buffer_store_dwordx2 %s, %s, %s, %s offen%s' % (v(HP + 12, 2), V['SH2'], srd(sST), so, sfx), 'pub')
                    elif i % 4 == 3:
                        self.vm('buffer_store_dwordx4 %s, %s, %s, %s offen offset:%d%s' %
                                (v(HP + i - 3, 4), V['SH1'], srd(sST), so, 256 * (i - 3), sfx), 'pub')
            self.bg(False)
            self.wait(lg_all=True)
            for i in range(10):
                I('v_pk_add_f32 %s, %s, %s' % (v(RES + 2 * i, 2), v(RES + 2 * i, 2), v(BF + 2 * i, 2)))
            self.bg_burst(cfg.get('p3_burst', [4, 4])[0])
            self.wait(vm=['pub'])
            self.flag_local(sFlP32, F_B, sfx)
        self.dual_section(sec)
        self.bg_burst(cfg.get('p3_burst', [4, 4])[1])
        self.stamp(12)

    def p4(self):
        I = self.I
        cfg = self.cfg

        def entry():
            self.poll(V['Fl'], sLD, sFl16, F_B, sTagL)
            self.stamp(13)
        self.regap(lambda st, n: cfg.get('p4_gap', 70))
        self.bgq += self.touches('XA')
        ar = lambda i: aWIN + 4 * (i % 17)
        self.gemm('P4', 54, 5, 'F2', ar, V['A4'], 1, self.mf16(ar), L=10, we=5, win=17,
                  bars=cfg.get('p4_bars', [0, 6, 12, 18, 24, 30, 36, 42, 48]), a0=cfg.get('p4_a0', 3), entry=entry, hooks={-1: self.next_tag},
                  arate=cfg.get('p4_arate', 1.25), jobstart=cfg.get('p4_js', 0), jobstop=cfg.get('p4_je', 99))
        assert not self.bgq
        self.stamp(14)

    def build(self):
        I = self.I
        if self.cfg.get('stamps'):
            I('v_mov_b32 %s, 0' % V['Stamp'])
            I('s_memrealtime s[98:99]')
            self.stamp(16)
            I('v_writelane_b32 %s, s98, 30' % V['Stamp'])
        self.prologue()
        self.stamp(23)
        self.p0()
        self.stamp(17)
        self.p1(True)
        snap = self.snapshot()
        I('L_body:')
        self.stamp(0)
        self.attention()
        self.p2()
        self.p3()
        self.p4()
        I('s_cmp_eq_u32 %s, 0' % sLayer)
        I('s_cbranch_scc0 L_final')
        self.bgq = [('QW', n, 0) for n in range(40)]
        self.publish_x('XA', burst=self.cfg.get('p4_burst', [7, 9]))
        self.stamp(15)
        I('s_mov_b32 %s, 1' % sLayer)
        if self.cfg.get('stamps'):
            I('v_mov_b32 %s, %s' % (V['Stamp0'], V['Stamp']))
        self.p1(False)
        snap2 = self.snapshot()
        assert snap == snap2, (snap, snap2)
        I('s_nop 7')
        I('s_nop 3')
        I('s_branch L_body')
        I('L_final:')
        P = TMP + 8
        I('s_nop 5')
        self.pack_res(P)
        I('buffer_store_dwordx4 %s, %s, %s, 0 offen' % (v(P, 4), V['X1'], srd(sXO)))
        I('buffer_store_dwordx4 %s, %s, %s, 0 offen offset:64' % (v(P + 4, 4), V['X1'], srd(sXO)))
        I('buffer_store_dwordx2 %s, %s, %s, 0 offen offset:128' % (v(P + 8, 2), V['X3'], srd(sXO)))
        I('s_or_b32 %s, s2, %s' % (t0, sW))
        self.one_wave_store(t0, 'buffer_store_dword %s, off, %s, 0' % (V['TagG'], srd(sWS)))
        if self.cfg.get('stamps'):
            I('s_memrealtime s[98:99]')
            self.stamp(15)
            I('v_writelane_b32 %s, s98, 31' % V['Stamp'])
            I('v_lshrrev_b32 %s, 2, %s' % (v(TMP), V['Rd0']))
            I('s_lshl_b32 %s, s2, 11' % t0)
            I('s_lshr_b32 %s, %s, 1' % (t1, sW1k))
            I('s_add_u32 %s, %s, %s' % (t0, t0, t1))
            I('s_add_u32 %s, %s, 0x%x' % (t0, t0, STAMPS))
            I('buffer_store_dword %s, %s, %s, %s offen' % (V['Stamp0'], v(TMP), srd(sWS), t0))
            I('buffer_store_dword %s, %s, %s, %s offen offset:256' % (V['Stamp'], v(TMP), srd(sWS), t0))
        d = self.cfg.get('diag')
        if d:
            I('v_readfirstlane_b32 s60, %s' % V['Stamp' if d != 'clk' else 'Stamp0'])
            I('s_waitcnt vmcnt(0)')
            I('s_memrealtime s[100:101]')
            I('s_waitcnt lgkmcnt(0)')
            I('s_sub_u32 s61, s100, s60')
            if d == 'rt':
                I('s_mov_b32 s61, 20000')
            elif d == 'rtwb':
                I('buffer_wbl2 sc1')
                I('s_waitcnt vmcnt(0)')
                I('s_mov_b32 s61, 20000')
            elif d == 'probe':
                I('v_readfirstlane_b32 s61, %s' % V['Stamp0'])
                I('s_mul_i32 s61, s61, 10')
                I('s_add_u32 s61, s61, 10000')
            elif d == 'durclk':
                I('v_readfirstlane_b32 s63, %s' % V['Stamp0'])
                I('s_memtime s[100:101]')
                I('s_waitcnt lgkmcnt(0)')
                I('s_sub_u32 s61, s100, s63')
                I('s_lshr_b32 s61, s61, 2')
            elif d == 'clk':
                I('s_mov_b32 s61, 480000')
            elif d == 'slow':
                I('s_mul_i32 s61, %s, 30000' % sSlow)
            elif d == 'dur':
                I('s_mul_i32 s61, s61, 10')
            elif d == 'mark':
                I('s_sub_u32 s61, s57, s60')
                I('s_mul_i32 s61, s61, 10')
                I('s_add_u32 s61, s61, 10000')
            I('L_diag:')
            I('%s s[100:101]' % ('s_memtime' if d == 'clk' else 's_memrealtime'))
            I('s_waitcnt lgkmcnt(0)')
            I('s_sub_u32 s62, s100, s60')
            I('s_cmp_lt_u32 s62, s61')
            I('s_cbranch_scc1 L_diag')
        I('L_end:')
        I('s_endpgm')
        for x in self.tail:
            I(x)


HEADER = """; Kernarg layout for this problem (96 bytes, ptrs only, base s[0:1]):
; @launch grid=(256,1,1) block=(256,1,1) lds=163840
.amdgcn_target "amdgcn-amd-amdhsa--gfx950"
.text
.globl {n}_kernel
.p2align 8
.type {n}_kernel,@function
{n}_kernel:
"""
FOOTER = """.section .rodata,"a"
.p2align 6
.amdhsa_kernel {n}_kernel
  .amdhsa_next_free_vgpr 512
  .amdhsa_next_free_sgpr 102
  .amdhsa_accum_offset 256
  .amdhsa_group_segment_fixed_size 0
  .amdhsa_kernarg_size 96
  .amdhsa_user_sgpr_count 2
  .amdhsa_user_sgpr_kernarg_segment_ptr 1
  .amdhsa_system_sgpr_workgroup_id_x 1
.end_amdhsa_kernel
"""


def generate(cfg):
    k = K(cfg)
    k.build()
    lines, added = fix_hazards(k.L)
    body = '\n'.join(x if x.endswith(':') else '    ' + x for x in lines)
    return HEADER.format(n=NAME) + body + '\n' + FOOTER.format(n=NAME), dict(n=len(lines), nops=added, maxvm=k.maxvm, notes=k.notes)


if __name__ == '__main__':
    import json
    cfg = json.loads(sys.argv[2]) if len(sys.argv) > 2 else {}
    text, info = generate(cfg)
    out = sys.argv[1] if len(sys.argv) > 1 else 'cdna_kernels/%s.s' % NAME
    open(out, 'w').write(text)
    print(info)
```

```python
import sys
import os
sys.path.insert(0, os.path.dirname(os.path.abspath(__file__)))
from asmlib import Gen, fix_hazards

NAME = 'interleave_layers__linear_kernel_hedgehog__dense_activation_squared_relu__prompt'

EPOCH, XF, PREF, QF, KVF, CSP = 0, 0x1000, 0x2000, 0x3000, 0x4000, 0x8000
KVP, WOT, W1T, W2T, WQC, STAMPS = 0x100000, 0x300000, 0x400000, 0x700000, 0xA00000, 0xD00000
ARENA0, ARENA, PAD = 0x1000000, 0xA00000, 0x10000
TGS = 152 * 1024
AL, ST, FL, BE = 0, 40 * 1024, 42 * 1024, 44 * 1024
F_X, F_B = 0, 64
OOB = 0x7ffffff0
NQ = 39
PA = NQ * 4096
TCS1, TCS3, TB1, TB2, TPHI = PA, PA + 512, PA + 1024, PA + 1536, PA + 2048
T_Q0 = 31
KS_Q = 0
STG_Q0 = 34
slotQ = lambda i: i % NQ
slotO = lambda i: (i + 1) % NQ
slotF1 = lambda i: (i + 26) % NQ
slotF2 = lambda i: (i + 22) % NQ
sWS, sLD, sWQ, sXO, sPS, sT2 = 4, 8, 12, 16, 20, 24
sST, sTC = 48, 52
sStep = 's56'
sWr = {'O': 's59', 'F1': 's60', 'F2': 's61'}
sWa = {'P3': 's62', 'P2': 's63', 'P4': 's64'}
sRa3, sXs, sSb = 's65', 's58', 's68'
NS = 17
NPIECE = {'Q': 160, 'O': 100, 'F1': 140, 'F2': 270}
PPS = {'Q': 4, 'O': 5, 'F1': 7, 'F2': 5}
srd = lambda b: 's[%d:%d]' % (b, b + 3)
sK4 = lambda i: '0' if i == 0 else 's%d' % (31 + i)
sH54 = 's47'
(sTagG, sW, sW1k, sLayer, sSlow, sJ, sRb, sC, sTO, sTagL, sFl32, sFl16, sFlP16, sFlP32, sQoff, sKVFc, sKVFp,
 sOb, sF1b, sF2b, sPreP, sTy) = ['s%d' % i for i in range(72, 94)]
sPst = ['s28', 's29', 's30', 's31', 's94']
t0, t1, t2, t3, t4, t5, t6 = 's95', 's96', 's97', 's98', 's99', 's100', 's101'
_names = ('Rd0 Rd1 Rd2 TrA0 TrA1 TrA2 TrB0 TrB1 TrB2 A1 A2 A4 SX1 SX3 S11 S13 SSt LSt1 LSt3 SO1 SO2 SH1 SH2 X1 X3 '
          'Fl TagL TagG DO DF1 DF2 KS1 KS2 KG RdW0 RdW1 RdW2 TW KA KB R1 R20 R21 Tb1 Tb4 KW Aw DS Stamp Stamp0').split()
V = {n: 'v%d' % (i + 2) for i, n in enumerate(_names)}
assert len(_names) + 2 <= 52
RES, ACC, BF, TMP = 52, 72, 136, 200
aPHI, aWIN, aDUM = 160, 184, 255
V.update(DQ='v%d' % (BF + 24), Cs='v%d' % (BF + 25), QS='v%d' % (BF + 26))
XD, XR = BF + 28, BF + 32
xslot = lambda G: 6 + 4 * (G if G < 7 else G - 3)
KU = 21


def v(i, n=1):
    return 'v%d' % i if n == 1 else 'v[%d:%d]' % (i, i + n - 1)


def a(i, n=1):
    return 'a%d' % i if n == 1 else 'a[%d:%d]' % (i, i + n - 1)


LOG2E = 0x3fb8aa3b


class K(Gen):
    def __init__(self, cfg):
        super().__init__(NQ)
        self.cfg = cfg
        self.notes = []
        self.stream_pos = {}
        self.clk = 0
        self.mf_free = 0
        self.bgq = []
        self.bg_on = False
        self.bg_last = -10 ** 9
        self.bg_pend = None
        self.xdone = set()
        self.st_last = {}
        self.min_gap = 0
        self.wq = []
        self.wreg = {}
        self.rot = {'Q': [0, 0], 'F1': [0, 10], 'O': [0, 5, 10, 15], 'F2': [0, 14, 27, 41]}
        for st in self.rot:
            if st not in cfg.get('rot', ['F1', 'F2']):
                self.rot[st] = [0] * len(self.rot[st])
        self.first = True
        self.issued = set()
        self.reserved = set()
        self.tail = []

    def I(self, t):
        for x in t.split('\n'):
            x = x.strip()
            if not x:
                continue
            self.L.append(x)
            op = x.split()[0]
            if op.startswith('v_mfma'):
                st = max(self.clk, self.mf_free)
                self.mf_free = st + (32 if '32x32' in op else 16)
                self.clk = st + 8
            elif op.endswith(':') or op.startswith('.'):
                pass
            elif op.startswith(('v_exp', 'v_rcp', 'v_rsq', 'v_permlane')):
                self.clk += 8
            elif op.startswith('ds_write_b128'):
                self.clk += 30
            else:
                self.clk += 4
            if self.bg_on and op.startswith('v_') and not op.startswith(('v_cmp', 'v_cndmask')):
                self.bg_on = False
                self.bg_step()
                self.bg_on = True

    def vm(self, t, tag=None):
        tag = super().vm(t, tag)
        self.issued.add(tag)
        return tag

    def next_job(self, force=False):
        seen = set()
        for idx, (st, n, gap) in enumerate(self.bgq):
            if st in seen:
                continue
            seen.add(st)
            if not force and (self.clk - self.st_last.get(st, -10 ** 9) < gap or self.clk - self.bg_last < self.min_gap):
                continue
            if st == 'T':
                out = (None, (lambda: self.vm(*n)) if isinstance(n, tuple) else (lambda: self.vm(n)))
            else:
                slot, pre, issue = self.dma(st, n)
                if st == 'X':
                    ok = n[0] < 7 or (('xu', n[0] - 3) in self.xdone and ('xu', n[0] - 3) not in self.lgq)
                else:
                    ok = st == 'S' or (self.q_is_free(slot) and slot not in self.reserved)
                if not ok:
                    continue
                out = (pre, issue)
            self.bgq.pop(idx)
            self.bg_last = self.st_last[st] = self.clk
            return out
        return None

    def bg_step(self, force=False):
        if self.bg_pend is not None:
            f, self.bg_pend = self.bg_pend, None
            f()
            return
        j = self.next_job(force)
        if j:
            if j[0]:
                j[0]()
                self.bg_pend = j[1]
            else:
                j[1]()

    def w_burst(self, k):
        done = 0
        while self.wq and done < k:
            st, n, r = self.wq[0]
            slot = self.slotf(st)(n)
            if not self.q_is_free(slot):
                break
            self.wq.pop(0)
            assert st == 'Q' or not any(t == 'join' or (isinstance(t, tuple) and t[0] == 'S') for t in self.vmq)
            base, off = self.ldsaddr(slot * 4096, 'RdW')
            tag = self.lg('ds_write_b128 %s, %s offset:%d' % (base, a(r, 4), off), (st, n))
            self.q_fill(slot, (st, n), tag)
            self.wreg[r] = tag
            done += 1
        return done

    def bg(self, on):
        if not on:
            self.bg_on = False
            if self.bg_pend is not None:
                self.bg_step()
        else:
            self.bg_on = True

    def bg_burst(self, k):
        self.bg(False)
        for _ in range(k):
            if not self.bgq:
                break
            n0 = len(self.bgq)
            self.bg_step(True)
            if len(self.bgq) == n0:
                break
            self.bg(False)

    def stamp(self, idx):
        if self.cfg.get('diag') == 'mark' and self.cfg['mark'][1] == idx:
            lab = self.label('L_mk')
            self.wait(lg_all=True)
            if idx < 18:
                self.I('s_cmp_eq_u32 %s, %d' % (sLayer, self.cfg['mark'][0]))
                self.I('s_cbranch_scc0 %s' % lab)
            self.I('s_memrealtime s[100:101]')
            self.I('s_waitcnt lgkmcnt(0)')
            self.I('s_mov_b32 s57, s100')
            self.I('%s:' % lab)
        if not self.cfg.get('stamps'):
            return
        self.wait(lg_all=True)
        self.I('%s s[100:101]' % ('s_memrealtime' if self.cfg.get('rt') else 's_memtime'))
        self.I('s_waitcnt lgkmcnt(0)')
        self.I('v_writelane_b32 %s, s100, %d' % (V['Stamp'], idx))

    def note(self, name):
        self.notes.append('%s>%s%s' % ((name,) + (self.bgq[0][:2] if self.bgq else ('', ''))))

    def ldsaddr(self, byte, kind='Rd'):
        return V['%s%d' % (kind, byte >> 16)], byte & 0xffff

    def dual(self, stores):
        lab = self.label('L_st')
        self.I('s_cmp_eq_u32 %s, 0' % sSlow)
        self.I('s_cbranch_scc0 %s_s' % lab)
        tags = [self.vm(x + ' ; nopad') for x in stores]
        self.I('%s_e:' % lab)
        self.tail += ['%s_s:' % lab] + [x + ' sc1' for x in stores] + ['s_nop 0', 's_branch %s_e' % lab]
        return tags

    def dual_section(self, fn):
        import copy
        self.bg(False)
        lab = self.label('L_sec')
        self.I('s_cmp_eq_u32 %s, 0' % sSlow)
        self.I('s_cbranch_scc0 %s_s' % lab)
        keys = ('vmq', 'lgq', 'q', 'clk', 'mf_free', 'wq', 'st_last', 'bgq', 'bg_last', 'stream_pos', 'notes')
        saved = {k: copy.deepcopy(getattr(self, k)) for k in keys}
        main, self.L = self.L, []
        fn(' sc1')
        self.bg(False)
        self.tail += ['%s_s:' % lab, 's_nop 7', 's_nop 3'] + self.L + ['s_nop 7', 's_nop 3', 's_branch %s_e' % lab]
        self.L = main
        for k in keys:
            setattr(self, k, saved[k])
        fn('')
        self.bg(False)
        self.I('%s_e:' % lab)

    def one_wave_store(self, cond_reg, text):
        lab = self.label('L_ow')
        self.I('s_cmp_eq_u32 %s, 0' % cond_reg)
        self.I('s_cbranch_scc0 %s' % lab)
        self.I('s_mov_b64 exec, 1')
        self.I(text)
        self.I('s_mov_b64 exec, -1')
        self.I('%s:' % lab)

    def flag_local(self, soff, imm, sfx):
        self.I('s_mov_b64 exec, 1')
        self.vm('buffer_store_dword %s, off, %s, %s offset:%d%s' % (V['TagL'], srd(sST), soff, imm, sfx))
        self.I('s_mov_b64 exec, -1')
        self.I('s_mov_b64 s[%d:%d], s[%d:%d]' % (sLD, sLD + 1, sST, sST + 1))
        self.I('s_add_u32 s%d, s%d, %s' % (sST, sST, sStep))
        self.I('s_addc_u32 s%d, s%d, 0' % (sST + 1, sST + 1))

    def next_tag(self):
        self.I('s_add_u32 %s, %s, 32' % (sTagL, sTagL))
        self.I('v_mov_b32 %s, %s' % (V['TagL'], sTagL))

    def touches(self, which, gap=0, always=False):
        L = {'XA': [('SX1', '0', 0), ('SX1', '0', 2048), ('SX3', '0', 0), ('SSt', '0', 0)],
             'X1': [('S11', '0', 0), ('S11', '0', 2048), ('S13', '0', 0), ('SSt', '0', 0)],
             'O': [('SO1', '0', 0), ('SO1', '0', 512), ('SO2', '0', 0)],
             'H': [('SH1', so, 1024 * pr) for so in ('0', sH54) for pr in range(3)] + [('SH2', so, 0) for so in ('0', sH54)]}[which]
        if not always and which not in self.cfg.get('touch', ['O', 'X1', 'H']):
            return []
        return [('T', 'buffer_load_dword %s, %s, %s, %s offen offset:%d sc1' % (a(aDUM), V[r], srd(sTC), so, off), gap)
                for r, so, off in L]

    def poll(self, addr, sd, soff, imm, tag, width=1):
        lab = self.label('L_poll')
        T = TMP + 52
        self.I('%s:' % lab)
        if width == 1:
            self.I('buffer_load_dword %s, %s, %s, %s offen offset:%d sc1' % (v(T), addr, srd(sd), soff, imm))
        else:
            self.I('buffer_load_dwordx4 %s, %s, %s, %s offen offset:%d sc1' % (v(T, 4), addr, srd(sd), soff, imm))
        self.I('s_sub_u32 %s, %s, 1' % (sTO, sTO))
        self.I('s_cbranch_scc1 L_end')
        self.force_wait('vmcnt(0)')
        if width == 4:
            for i in range(4):
                self.I('v_xor_b32 %s, %s, %s' % (v(T + i), tag, v(T + i)))
            self.I('v_or3_b32 %s, %s, %s, %s' % (v(T), v(T), v(T + 1), v(T + 2)))
            self.I('v_or_b32 %s, %s, %s' % (v(T), v(T), v(T + 3)))
            self.I('v_cmp_ne_u32 vcc, 0, %s' % v(T))
        else:
            self.I('v_cmp_ne_u32 vcc, %s, %s' % (tag, v(T)))
        self.I('s_cbranch_vccnz %s' % lab)

    def stream_reset(self, st):
        base, slot = {'Q': (sQoff, slotQ), 'O': (sOb, slotO), 'F1': (sF1b, slotF1), 'F2': (sF2b, slotF2)}[st]
        self.I('v_add_u32 %s, %s, %s' % (V['D' + st], base, V['Rd0']))
        self.stream_pos[st] = -slot(0)

    def slotf(self, st):
        return {'Q': slotQ, 'QW': slotQ, 'O': slotO, 'F1': slotF1, 'F2': slotF2}[st]

    def dma(self, st, n):
        if st == 'X':
            G, p = n

            def prex():
                if p == 0:
                    self.I('s_mov_b32 %s, %d' % (sXs, 128 * G))
                self.I('s_lshl2_add_u32 m0, %s, %d' % (sW1k, xslot(G) * 4096 + 1024 * p))

            def issuex():
                tag = self.vm('buffer_load_dwordx4 %s, %s, %s offen lds' % (v(XD + p), srd(sXO), sXs), ('X', G))
                for q in range(4):
                    if G >= 7 and p == 0:
                        self.q[xslot(G) + q]['free'] = True
                    self.q_fill(xslot(G) + q, ('X', G), tag)
            return None, prex, issuex
        if st == 'S':

            def pres():
                self.I('v_add_u32 %s, 0x10000, %s' % (V['DS'], V['DS']))
            return None, (pres if n == 16 else None), lambda: self.vm(
                'buffer_load_dwordx4 %s, %s, %s, %s offen' % (a(aWIN + 4 * n, 4), V['DS'], srd(sWS), sK4(n & 15)), ('S', n))
        slot = self.slotf(st)(n)

        def pre():
            cand = {-(-(NPIECE[st] - PPS[st] * r - w) // 4) for r in self.rot[st] if r for w in range(4)}
            if n in cand:
                self.I('s_cmp_eq_u32 %s, %d' % (sWr[st], n))
                self.I('s_cselect_b32 s3, 0x%x, 0' % ((-NPIECE[st] * 1024) & 0xffffffff))
                self.I('v_add_u32 %s, s3, %s' % (V['D' + st], V['D' + st]))
            if n - slot != self.stream_pos[st]:
                d = (n - slot - self.stream_pos[st]) * 4096
                self.I('v_add_u32 %s, 0x%x, %s' % (V['D' + st], d, V['D' + st]))
                self.stream_pos[st] = n - slot
            self.I('s_add_u32 m0, %s, %d' % (sW1k, slot * 4096))

        def issue():
            tag = self.vm('buffer_load_dwordx4 %s, %s, m0 offen lds' % (V['D' + st], srd(sWS)), (st, n))
            self.q_fill(slot, (st, n), tag)
        return slot, pre, issue

    def dma_now(self, st, n):
        slot, pre, issue = self.dma(st, n)
        pre()
        issue()

    def gemm(self, name, steps, nfr, st, areg, avaddr, nA, mf, L, we, bars, a0, every, ahead, jobstart=0, jobstop=999,
             hooks=None, extra=None, tr=False, win=99, shadow=None, entry=None, wevery=4, more_lg=None, afile='a', wstart=0):
        hooks = hooks or {}
        extra = extra or {}
        self.bg(False)
        slotf = self.slotf(st)
        shadow = shadow if shadow is not None else []
        total = steps * nfr
        P = L + 1
        pool = lambda n: BF + 4 * (n % P)
        nAtot = steps * nA
        state = dict(cur=0, an=0, rn=0, nv=0, wlast=-99)
        acand = {nAtot - r * nA for r in self.rot[st] if r}
        if acand:
            if name == 'P3':
                self.I('v_add_u32 %s, %s, %s' % (V['Aw'], sRa3, avaddr))
            else:
                self.I('v_mov_b32 %s, %s' % (V['Aw'], avaddr))
            avaddr = V['Aw']
        vs = set()
        acc = 0.99
        for n in range(total):
            acc += 1.0 / (every(n // nfr) if callable(every) else every)
            if acc >= 1 and ((n + 1) % we != 0 or acc >= 1.7) and (n - 1) not in vs:
                vs.add(n)
                acc -= 1

        def a_ok():
            i = state['an']
            if i >= nAtot or i >= state['cur'] * nA + win:
                return False
            if afile == 'a':
                return self.wreg.get(areg(i)) not in self.lgq and not any(w[2] == areg(i) for w in self.wq)
            return True

        def quad_of(n):
            return (n // nfr) if tr else (n >> 2)

        def ajob():
            assert a_ok()
            i = state['an']
            state['an'] += 1
            assert all(areg(m) != areg(i) for m in range(state['cur'] * nA, i)), 'A window overrun'

            def pre():
                self.I('s_cmp_eq_u32 %s, %d' % (sWa[name], i))
                self.I('s_cselect_b32 s3, 0x%x, 0' % ((-nAtot * 1024) & 0xffffffff))
                self.I('v_add_u32 %s, s3, %s' % (avaddr, avaddr))
            return (pre if i in acand else None,
                    lambda: self.vm('buffer_load_dwordx4 %s, %s, %s, %s offen offset:%d sc1' %
                                    ((a if afile == 'a' else v)(areg(i), 4), avaddr, srd(sLD), sK4(i >> 2), (i & 3) * 1024), (name, 'A', i)))

        def aload():
            pre, issue = ajob()
            if pre:
                pre()
            issue()

        def read():
            n = state['rn']
            state['rn'] += 1
            s, f = divmod(n, nfr)
            if f == 0 and s in bars:
                nxt = min([b for b in bars if b > s] + [steps])
                need = {(st, quad_of(m)) for m in range(n, nxt * nfr)}
                late = [i for i, j in enumerate(self.bgq) if (j[0], j[1]) in need]
                latew = [i for i, j in enumerate(self.wq) if j[:2] in need]
                if late or latew or any(self.q[slotf(q)]['c'] != (st, q) for _, q in need):
                    self.notes.append('LATE %s@%d x%d' % (name, s, len(late + latew)))
                    self.bgq.sort(key=lambda j: (j[0], j[1]) not in need)
                    self.bg_burst(len(late))
                    self.w_burst(latew[-1] + 1 if latew else 0)
                self.wait(vm=need, lg=need)
                self.barrier()
            qn = quad_of(n)
            r = pool(n)
            if tr:
                byte = slotf(qn) * 4096 + 256 * f
                base, off = self.ldsaddr(byte, 'TrB' if f == 3 else 'TrA')
                for ab in range(2):
                    tag = self.lg('ds_read_b64_tr_b16 %s, %s offset:%d' % (v(r + 2 * ab, 2), base, off + 1024 * ab),
                                  (name, 'B', n))
                    self.q_read(slotf(qn), (st, qn), tag)
            else:
                base, off = self.ldsaddr(slotf(qn) * 4096 + (n & 3) * 1024)
                tag = self.lg('ds_read_b128 %s, %s offset:%d' % (v(r, 4), base, off), (name, 'B', n))
                self.q_read(slotf(qn), (st, qn), tag)
            if n + 1 == total or quad_of(n + 1) != qn:
                if not (name == 'P1a'):
                    self.q_done(slotf(qn))

        def run_shadow(s, res):
            while shadow and shadow[0][0] <= s:
                x = shadow[0][1]
                cost = 8 if tr and isinstance(x, str) and x.startswith(('v_rsq', 'v_perml')) else 4
                if self.clk + cost + res > self.mf_free:
                    break
                shadow.pop(0)
                x() if callable(x) else self.I(x)

        def plan(n):
            s = n // nfr
            j = None
            lead = state['an'] - n * nA / nfr
            if self.bgq and self.bgq[0][0] == 'T' and isinstance(self.bgq[0][1], tuple) and lead >= min(ahead, 5):
                j = self.next_job()
            if j is None and a_ok() and lead < ahead:
                j = ajob()
            if j is None and jobstart <= s < jobstop:
                j = self.next_job()
            if j is None and a_ok():
                j = ajob()
            if j:
                if j[0]:
                    j[0]()
                self.bg_pend = j[1]

        if -2 in hooks:
            hooks[-2]()
        for n in range(L):
            read()
        if entry:
            entry()
        if nAtot and afile == 'a':
            self.wait(lg=[self.wreg.get(areg(i)) for i in range(a0)])
        for _ in range(min(a0, nAtot)):
            aload()
        if -1 in hooks:
            hooks[-1]()
        if 0 in vs:
            plan(0)
        for n in range(total):
            s, f = divmod(n, nfr)
            if f == 0:
                state['cur'] = s
            if n % we == 0:
                sl = min(n + we - 1, total - 1) // nfr
                if state['an'] < (sl + 1) * nA or (nA and (name, 'A', (sl + 1) * nA - 1) not in self.issued):
                    self.notes.append('A late %s@%d' % (name, s))
                    self.bg(False)
                    while state['an'] < (sl + 1) * nA:
                        aload()
                vt = [(name, 'A', i) for i in range(s * nA, (sl + 1) * nA)]
                lt = [(name, 'B', m) for m in range(n, min(n + we, total))] + (more_lg(s) if more_lg and f == 0 else [])
                self.wait(vm=vt, lg=lt)
            if f == 0 and s in hooks:
                hooks[s]()
            if f == 0 and self.cfg.get('fine') and name != 'P1a' and s in [0, steps // 4, steps // 2, 3 * steps // 4]:
                self.stamp(32 + 4 * ['P1b', 'P2', 'P3', 'P4'].index(name) + [0, steps // 4, steps // 2, 3 * steps // 4].index(s))
            ms = mf(s, f, pool(n))
            self.I(ms[0])
            wrote = False
            if self.wq and s >= wstart and n not in vs and n - state['wlast'] >= wevery and state['rn'] == n + L and self.w_burst(1):
                state['wlast'] = n
                wrote = True
            while not wrote and state['rn'] <= min(n + L, total - 1):
                read()
            if len(ms) > 1:
                run_shadow(s, 0)
                self.I(ms[1])
            if n in extra:
                extra[n]()
            if n in vs and self.bg_pend is not None:
                self.bg_step()
                state['nv'] += 1
                if tr:
                    run_shadow(s, 4)
            else:
                if n + 1 in vs and self.bg_pend is None:
                    plan(n + 1)
                if not wrote:
                    run_shadow(s, 4 if (n + 1) % we == 0 else 0)
        self.bg(False)
        self.notes.append('%s vm %d/%d' % (name, state['nv'], len(vs)))
        if shadow:
            self.notes.append('%s shadow left %d' % (name, len(shadow)))
        for _, x in shadow:
            x() if callable(x) else self.I(x)

    def prologue(self):
        I = self.I
        I('s_cmp_ge_u32 s2, 256')
        I('s_cbranch_scc1 L_end')
        if self.cfg.get('diag'):
            I('s_memrealtime s[100:101]')
            I('s_memtime s[98:99]')
            I('s_waitcnt lgkmcnt(0)')
            I('v_mov_b32 %s, s100' % V['Stamp'])
            I('v_mov_b32 %s, s98' % V['Stamp0'])
        if self.cfg.get('diag') == 'probe':
            slot, off = self.cfg['probe']
            I('s_load_dwordx2 s[4:5], s[0:1], %d' % slot)
            I('s_mov_b32 s6, 0x%x' % (2048 * 1280 if slot != 88 else 0x10000000))
            I('s_mov_b32 s7, 0x20000')
            I('s_mul_i32 s3, s2, 8192')
            I('s_add_u32 s3, s3, 0x%x' % off)
            I('v_lshl_add_u32 v1, v0, 4, s3')
            I('s_mov_b32 s8, 0x%x' % (off + 0x270000))
            I('s_mov_b32 s9, 4096')
            I('s_waitcnt lgkmcnt(0)')
            I('buffer_load_dword v8, off, s[4:7], s8')
            I('s_waitcnt vmcnt(0)')
            I('s_memtime s[10:11]')
            I('s_waitcnt lgkmcnt(0)')
            I('buffer_load_dwordx4 v[8:11], v1, s[4:7], 0 offen')
            I('buffer_load_dwordx4 v[12:15], v1, s[4:7], s9 offen')
            I('s_waitcnt vmcnt(0)')
            I('s_memtime s[12:13]')
            I('s_waitcnt lgkmcnt(0)')
            I('s_sub_u32 s3, s12, s10')
            I('v_mov_b32 %s, s3' % V['Stamp0'])
        I('s_load_dwordx16 s[48:63], s[0:1], 0')
        I('s_load_dwordx8 s[64:71], s[0:1], 64')
        T = TMP
        lane, g, tok, x0, x1, x2 = v(T), v(T + 1), v(T + 2), v(T + 3), v(T + 4), v(T + 5)
        self.lane, self.g, self.tok = lane, g, tok
        NL = self.cfg.get('code_lines', 10)
        I('s_getpc_b64 s[100:101]')
        I('L_pc:')
        I('s_lshr_b32 s3, s2, 3')
        I('s_mul_i32 s3, s3, %d' % NL)
        I('v_add_lshl_u32 %s, v0, s3, 7' % x0)
        I('v_min_u32 %s, L_end-L_pc, %s' % (x0, x0))
        I('v_mov_b32 %s, s101' % x2)
        I('v_add_co_u32 %s, vcc, s100, %s' % (x1, x0))
        I('v_addc_co_u32 %s, vcc, 0, %s, vcc' % (x2, x2))
        I('v_cmp_gt_u32 vcc, %d, v0' % NL)
        I('s_and_saveexec_b64 s[100:101], vcc')
        I('s_cbranch_execz L_nopf')
        I('global_load_dword %s, %s, off' % (a(aDUM), v(T + 4, 2)))
        I('L_nopf:')
        I('s_mov_b64 exec, -1')
        I('v_lshrrev_b32 %s, 6, v0' % x0)
        I('v_and_b32 %s, 63, v0' % lane)
        I('v_readfirstlane_b32 %s, %s' % (sW, x0))
        I('s_and_b32 %s, s2, 7' % t0)
        I('s_lshr_b32 %s, s2, 7' % t1)
        I('s_lshl_b32 %s, %s, 1' % (t0, t0))
        I('s_add_u32 %s, %s, %s' % (sRb, t0, t1))
        I('s_bfe_u32 %s, s2, 0x40003' % sJ)
        I('s_and_b32 %s, %s, 7' % (sC, sJ))
        I('s_lshl_b32 %s, %s, 10' % (sW1k, sW))
        I('s_lshr_b32 %s, %s, 3' % (t2, sJ))
        I('s_lshl_b32 %s, %s, 2' % (t2, t2))
        I('s_add_u32 %s, %s, %s' % (t2, t2, sW))
        I('s_lshl_b32 %s, %s, 3' % (t3, sRb))
        I('s_add_u32 %s, %s, %s' % (t3, t3, t2))
        I('s_mul_i32 %s, %s, %d' % (t0, t3, 16 * 1280))
        I('s_mul_i32 %s, %s, 160' % (t1, sC))
        I('s_add_u32 %s, %s, %s' % (t0, t0, t1))
        I('v_lshrrev_b32 %s, 4, %s' % (g, lane))
        I('v_and_b32 %s, 15, %s' % (tok, lane))
        I('v_mul_u32_u24 %s, 1280, %s' % (x0, tok))
        I('v_add_u32 %s, %s, %s' % (x0, t0, x0))
        I('v_lshl_add_u32 %s, %s, 4, %s' % (V['X1'], g, x0))
        I('v_lshl_add_u32 %s, %s, 3, %s' % (V['X3'], g, x0))
        I('s_lshl2_add_u32 %s, %s, %s' % (t4, sRb, sW))
        I('s_mul_i32 %s, %s, 160' % (t5, t4))
        QS, QA, y0 = V['QS'], v(T + 7), v(T + 6)
        I('v_add_u32 %s, %s, %s' % (QS, t5, lane))
        I('v_bfe_u32 %s, %s, 4, 2' % (y0, QS))
        I('v_and_b32 %s, 3, %s' % (x0, lane))
        I('v_lshrrev_b32 %s, 1, %s' % (x1, x0))
        I('v_add_u32 %s, %s, %s' % (x1, x0, x1))
        I('v_cmp_eq_u32 vcc, 3, %s' % y0)
        I('v_lshrrev_b32 %s, 6, %s' % (QA, QS))
        I('v_bfe_u32 %s, %s, 2, 2' % (x2, lane))
        I('v_lshl_add_u32 %s, %s, 2, %s' % (QA, QA, x2))
        I('v_cndmask_b32 %s, %s, 2, vcc' % (x1, x1))
        I('v_cndmask_b32 %s, %s, %s, vcc' % (x0, y0, x0))
        I('v_add_u32 %s, 1, %s' % (x2, x0))
        I('v_cmp_gt_u32 vcc, 2, %s' % x0)
        I('v_mul_u32_u24 %s, 3840, %s' % (QA, QA))
        I('s_mul_i32 %s, %s, 80' % (t1, sJ))
        I('v_cndmask_b32 %s, 0, %s, vcc' % (x2, x2))
        I('v_mul_u32_u24 %s, 1280, %s' % (x2, x2))
        I('v_lshl_add_u32 %s, %s, 4, %s' % (x2, x1, x2))
        I('v_add3_u32 %s, %s, %s, %s' % (QA, QA, x2, t1))
        I('s_mov_b32 %s, 15360' % t5)
        I('s_mov_b32 %s, 30720' % t6)
        for b, size in ((sXO, 2048 * 1280), (sWQ, 640 * 3840)):
            I('s_mov_b32 s%d, 0x%x' % (b + 2, size))
            I('s_mov_b32 s%d, 0x20000' % (b + 3))
        I('s_waitcnt lgkmcnt(0)')
        I('s_mov_b64 s[%d:%d], s[50:51]' % (sWQ, sWQ + 1))
        I('s_mov_b64 s[%d:%d], s[48:49]' % (sXO, sXO + 1))
        QL = BF
        self.vm('buffer_load_dwordx4 %s, %s, %s, 0 offen' % (v(QL, 4), QA, srd(sWQ)), 'q')
        self.vm('buffer_load_dwordx4 %s, %s, %s, %s offen' % (v(QL + 4, 4), QA, srd(sWQ), t5), 'q')
        I('s_mov_b32 exec_hi, 0')
        self.vm('buffer_load_dwordx4 %s, %s, %s, %s offen' % (v(QL + 8, 4), QA, srd(sWQ), t6), 'q')
        I('s_mov_b64 exec, -1')
        I('s_load_dword %s, s[70:71], 0' % sTagG)
        XL = TMP + 40
        self.XL = XL
        self.vm('buffer_load_dwordx4 %s, %s, %s, 0 offen' % (v(XL, 4), V['X1'], srd(sXO)), 'x')
        self.vm('buffer_load_dwordx4 %s, %s, %s, 0 offen offset:64' % (v(XL + 4, 4), V['X1'], srd(sXO)), 'x')
        self.vm('buffer_load_dwordx2 %s, %s, %s, 0 offen offset:128' % (v(XL + 8, 2), V['X3'], srd(sXO)), 'x')
        I('v_lshlrev_b32 %s, 4, %s' % (V['Rd0'], lane))
        I('s_mul_i32 %s, %s, %d' % (sQoff, sJ, 160 * 1024))
        I('s_add_u32 %s, %s, 0x%x' % (sQoff, sQoff, WQC))
        I('v_lshl_add_u32 %s, %s, 4, %s' % (QS, QS, sQoff))
        I('s_mov_b64 s[%d:%d], s[70:71]' % (sWS, sWS + 1))
        I('s_mov_b32 s%d, 0x1000000' % (sWS + 2))
        I('s_mov_b32 s%d, 0x20000' % (sWS + 3))
        I('s_add_u32 s%d, s70, 0x%x' % (sLD, ARENA0))
        I('s_addc_u32 s%d, s71, 0' % (sLD + 1))
        I('s_mov_b32 s%d, 0x%x' % (sLD + 2, ARENA))
        I('s_mov_b32 s%d, 0x20000' % (sLD + 3))
        I('s_mul_i32 %s, %s, %d' % (t0, t4, 32 * 1280))
        I('v_lshrrev_b32 %s, 3, %s' % (x0, lane))
        I('v_mul_u32_u24 %s, 1280, %s' % (x0, x0))
        I('v_and_b32 %s, 7, %s' % (x1, lane))
        I('v_xor_b32 %s, %s, %s' % (x1, x1, g))
        I('v_lshlrev_b32 %s, 4, %s' % (x1, x1))
        I('v_add3_u32 %s, %s, %s, %s' % (v(XD), x0, x1, t0))
        I('v_xor_b32 %s, 64, %s' % (v(XD + 1), v(XD)))
        I('v_add_u32 %s, 10240, %s' % (v(XD + 1), v(XD + 1)))
        I('v_add_u32 %s, 20480, %s' % (v(XD + 2), v(XD)))
        I('v_add_u32 %s, 20480, %s' % (v(XD + 3), v(XD + 1)))
        self.stamp(18)
        self.prepass1()
        self.small_loads(0)
        self.addresses(1)
        pp = self.cfg.get('pp_at', 0)
        if pp == 0:
            self.prepass1_issue()
            self.small_loads(1)
        self.stamp(19)
        self.wait(vm=['q'])
        self.vm('buffer_store_dwordx4 %s, %s, %s, 0 offen sc1' % (v(QL, 4), QS, srd(sWS)), 'p0s')
        self.vm('buffer_store_dwordx4 %s, %s, %s, 0 offen offset:1024 sc1' % (v(QL + 4, 4), QS, srd(sWS)), 'p0s')
        I('s_mov_b32 exec_hi, 0')
        self.vm('buffer_store_dwordx4 %s, %s, %s, 0 offen offset:2048 sc1' % (v(QL + 8, 4), QS, srd(sWS)), 'p0s')
        I('s_mov_b64 exec, -1')
        for i in range(4):
            I('v_mov_b32 %s, -1' % v(QL + 12 + i))
        I('s_lshl_b32 %s, %s, 12' % (t0, sRb))
        I('s_add_u32 %s, %s, 0x100000' % (t1, t0))
        self.vm('buffer_store_dwordx4 %s, %s, %s, %s offen sc1' % (v(QL + 12, 4), V['KG'], srd(sWS), t0), 'p0s')
        self.vm('buffer_store_dwordx4 %s, %s, %s, %s offen sc1' % (v(QL + 12, 4), V['KG'], srd(sWS), t1), 'p0s')

    def prepass1(self):
        I = self.I
        lane = self.lane
        T = TMP + 8
        po = [v(T + i) for i in range(5)]
        e, row, u, y = v(T + 5), v(T + 6), v(T + 7), v(T + 8)
        I('s_mov_b32 s%d, 0x20000' % (sPS + 3))
        I('s_cmp_lt_u32 s2, 40')
        I('s_cbranch_scc1 L_pp_wo')
        I('s_cmp_lt_u32 s2, 148')
        I('s_cbranch_scc1 L_pp_w1')
        I('s_sub_u32 %s, s2, 148' % t0)
        I('s_lshl_b32 %s, %s, 2' % (t0, t0))
        I('s_add_u32 %s, %s, %s' % (t0, t0, sW))
        I('s_and_b32 %s, %s, 7' % (t1, t0))
        I('s_lshr_b32 %s, %s, 3' % (t0, t0))
        I('s_mul_i32 %s, %s, 272' % (t4, t1))
        I('s_mul_i32 %s, %s, 5' % (t5, t0))
        I('s_add_u32 %s, %s, %s' % (t4, t4, t5))
        I('s_lshl_b32 %s, %s, 10' % (t4, t4))
        I('s_add_u32 %s, %s, 0x%x' % (sPst[0], t4, W2T))
        I('s_lshl_b32 %s, %s, 5' % (t0, t0))
        I('s_mov_b32 %s, 4' % t4)
        I('s_mov_b32 %s, 0' % t5)
        I('s_mov_b32 %s, 16' % t6)
        I('s_mov_b32 s%d, s62' % sPS)
        I('s_mov_b32 s%d, s63' % (sPS + 1))
        I('s_mov_b32 s%d, 0x%x' % (sPS + 2, 1728 * 1280))
        I('s_branch L_pp_80')
        I('L_pp_wo:')
        I('s_lshl_b32 %s, s2, 2' % t0)
        I('s_add_u32 %s, %s, %s' % (t0, t0, sW))
        I('s_and_b32 %s, %s, 7' % (t1, t0))
        I('s_lshr_b32 %s, %s, 3' % (t0, t0))
        I('s_mul_i32 %s, %s, 100' % (t4, t1))
        I('s_mul_i32 %s, %s, 5' % (t5, t0))
        I('s_add_u32 %s, %s, %s' % (t4, t4, t5))
        I('s_lshl_b32 %s, %s, 10' % (t4, t4))
        I('s_add_u32 %s, %s, 0x%x' % (sPst[0], t4, WOT))
        I('s_mul_i32 %s, %s, 52' % (t4, t0))
        I('s_lshr_b32 %s, %s, 8' % (t4, t4))
        I('s_mul_i32 %s, %s, 5' % (t5, t4))
        I('s_sub_u32 %s, %s, %s' % (t5, t0, t5))
        I('s_mul_i32 %s, %s, 160' % (t0, t4))
        I('s_mul_i32 %s, %s, 40' % (t6, t5))
        I('s_cmp_eq_u32 %s, 4' % t5)
        I('s_cselect_b32 %s, 16, %s' % (t6, t6))
        I('s_cselect_b32 %s, 40, 8' % t4)
        I('s_cselect_b32 %s, 0, 8' % t5)
        I('s_add_u32 %s, %s, %s' % (t0, t0, t6))
        I('s_mov_b32 %s, 4' % t6)
        I('s_mov_b32 s%d, s54' % sPS)
        I('s_mov_b32 s%d, s55' % (sPS + 1))
        I('s_mov_b32 s%d, 0x%x' % (sPS + 2, 640 * 1280))
        I('L_pp_80:')
        I('s_mul_i32 %s, %s, 160' % (t1, t1))
        I('s_mov_b32 %s, 0' % sTy)
        for n in range(5):
            I('v_add_u32 %s, %d, %s' % (e, 64 * n, lane))
            I('v_mul_u32_u24 %s, 6554, %s' % (row, e))
            I('v_lshrrev_b32 %s, 16, %s' % (row, row))
            I('v_mul_u32_u24 %s, 10, %s' % (u, row))
            I('v_sub_u32 %s, %s, %s' % (u, e, u))
            I('v_and_b32 %s, 3, %s' % (e, row))
            I('v_add_u32 %s, %s, %s' % (e, t0, e))
            I('v_lshrrev_b32 %s, 3, %s' % (y, row))
            I('v_mad_u32_u24 %s, %s, %s, %s' % (e, y, t4, e))
            I('v_lshrrev_b32 %s, 4, %s' % (y, row))
            I('v_mad_u32_u24 %s, %s, %s, %s' % (e, y, t5, e))
            I('v_bfe_u32 %s, %s, 2, 1' % (y, row))
            I('v_mad_u32_u24 %s, %s, %s, %s' % (e, y, t6, e))
            I('v_mul_u32_u24 %s, 1280, %s' % (e, e))
            I('v_lshl_add_u32 %s, %s, 4, %s' % (e, u, e))
            I('v_add_u32 %s, %s, %s' % (po[n], t1, e))
        I('s_mov_b32 %s, 1024' % t0)
        I('v_mov_b32 %s, 0x%x' % (V['Cs'], OOB))
        I('s_branch L_pp_go')
        I('L_pp_w1:')
        I('s_sub_u32 %s, s2, 40' % t0)
        I('s_and_b32 %s, %s, 3' % (t1, t0))
        I('s_lshr_b32 %s, %s, 2' % (t0, t0))
        I('s_lshl_b32 %s, %s, 2' % (t4, t0))
        I('s_add_u32 %s, %s, %s' % (t4, t4, sW))
        I('s_lshl_b32 %s, %s, 8' % (t5, t4))
        I('s_lshl_b32 %s, %s, 2' % (t6, t1))
        I('s_add_u32 %s, %s, %s' % (t5, t5, t6))
        I('s_add_u32 %s, %s, 0x%x' % (t5, t5, CSP))
        I('v_add_u32 %s, %s, %s' % (e, t5, V['Rd0']))
        I('v_mov_b32 %s, 0x%x' % (V['Cs'], OOB))
        I('v_cmp_gt_u32 vcc, 16, %s' % lane)
        I('v_cndmask_b32 %s, %s, %s, vcc' % (V['Cs'], V['Cs'], e))
        I('s_mul_i32 %s, %s, 43' % (t5, t4))
        I('s_lshr_b32 %s, %s, 8' % (t5, t5))
        I('s_mul_i32 %s, %s, 6' % (t6, t5))
        I('s_sub_u32 %s, %s, %s' % (t6, t4, t6))
        I('s_sub_u32 s3, %s, 96' % t4)
        I('s_cmp_ge_u32 %s, 96' % t4)
        I('s_cselect_b32 %s, s3, %s' % (t5, t5))
        I('s_cselect_b32 %s, 6, %s' % (t6, t6))
        I('s_mul_i32 %s, %s, 140' % (t5, t5))
        I('s_mul_i32 s3, %s, 35' % t1)
        I('s_add_u32 %s, %s, s3' % (t5, t5))
        I('s_add_u32 %s, %s, %s' % (t5, t5, t6))
        I('s_lshl_b32 %s, %s, 10' % (t5, t5))
        I('s_add_u32 %s, %s, 0x%x' % (sPst[0], t5, W1T))
        I('s_mul_i32 %s, %s, 160' % (t1, t1))
        I('s_mul_i32 %s, %s, 40' % (t5, sW))
        I('s_add_u32 %s, %s, %s' % (t1, t1, t5))
        I('s_mul_i32 %s, %s, 3456' % (t1, t1))
        I('s_lshl_b32 %s, %s, 7' % (t0, t0))
        I('s_add_u32 %s, %s, %s' % (t1, t1, t0))
        I('v_lshrrev_b32 %s, 3, %s' % (row, lane))
        I('v_mul_u32_u24 %s, 3456, %s' % (row, row))
        I('v_and_b32 %s, 7, %s' % (u, lane))
        I('v_lshl_add_u32 %s, %s, 4, %s' % (row, u, row))
        I('v_add_u32 %s, %s, %s' % (po[0], t1, row))
        for n in range(1, 5):
            I('v_add_u32 %s, %d, %s' % (po[n], 8 * 3456 * n, po[0]))
        I('s_mov_b32 s%d, s58' % sPS)
        I('s_mov_b32 s%d, s59' % (sPS + 1))
        I('s_mov_b32 s%d, 0x%x' % (sPS + 2, 640 * 3456))
        I('s_mov_b32 %s, 1' % sTy)
        I('s_mov_b32 %s, 7168' % t0)
        I('L_pp_go:')
        for n in range(1, 5):
            I('s_add_u32 %s, %s, %s' % (sPst[n], sPst[n - 1], t0))
        self.po = po

    def prepass1_issue(self):
        I = self.I
        po = self.po
        I('s_mul_i32 %s, %s, 5' % (t0, sW1k))
        for n in range(5):
            I('s_add_u32 m0, %s, %d' % (t0, STG_Q0 * 4096 + 1024 * n))
            tag = self.vm('buffer_load_dwordx4 %s, %s, 0 offen lds' % (po[n], srd(sPS)), ('stg', n))
            for q in range(5):
                self.q_fill(STG_Q0 + q, 'stg', tag)

    def prepass2(self):
        I = self.I
        T = TMP
        fr = T
        bA, bB, x0, x1, one, cs = v(T + 20), v(T + 21), v(T + 22), v(T + 23), T + 24, T + 28
        I('v_lshrrev_b32 %s, 8, %s' % (x0, V['Rd0']))
        I('v_bfe_u32 %s, %s, 6, 2' % (x1, V['Rd0']))
        for i in range(4):
            I('v_mov_b32 %s, 0x3f803f80' % v(one + i))
        I('s_cmp_eq_u32 %s, 1' % sTy)
        I('s_cbranch_scc1 L_p2_w1')
        I('v_lshl_add_u32 %s, %s, 3, %s' % (x0, x0, x1))
        I('v_mul_u32_u24 %s, 160, %s' % (x0, x0))
        I('s_mul_i32 %s, %s, 5' % (t0, sW1k))
        I('s_add_u32 %s, %s, %d' % (t0, t0, STG_Q0 * 4096))
        I('v_add_u32 %s, %s, %s' % (x0, t0, x0))
        I('v_and_b32 %s, 48, %s' % (x1, V['Rd0']))
        I('v_add_u32 %s, %s, %s' % (bA, x0, x1))
        I('v_lshrrev_b32 %s, 1, %s' % (x1, x1))
        I('v_add_u32 %s, %s, %s' % (bB, x0, x1))
        for t in range(5):
            for ab in range(2):
                off = 640 * ab + (64 * (t >> 1) + 8 * (t & 1) if t < 4 else 128)
                I('ds_read_b64_tr_b16 %s, %s offset:%d' % (v(fr + 4 * t + 2 * ab, 2), bA if t < 4 else bB, off))
        I('s_branch L_p2_go')
        I('L_p2_w1:')
        I('v_lshl_add_u32 %s, %s, 3, %s' % (bA, x0, x1))
        I('v_lshl_add_u32 %s, %s, 2, %s' % (bB, x0, x1))
        I('v_and_b32 %s, 48, %s' % (x1, V['Rd0']))
        I('v_lshrrev_b32 %s, 1, %s' % (x1, x1))
        I('s_lshl_b32 %s, %s, 5' % (t0, sW))
        I('s_add_u32 %s, %s, %d' % (t0, t0, STG_Q0 * 4096))
        I('v_add_u32 %s, %s, %s' % (x1, t0, x1))
        I('v_lshl_add_u32 %s, %s, 7, %s' % (bA, bA, x1))
        I('v_lshl_add_u32 %s, %s, 7, %s' % (bB, bB, x1))
        for i in range(5):
            for ab in range(2):
                off = ((80 * (i >> 1) + 32 * (i & 1) + 4 * ab) if i < 4 else (80 * ab + 64)) * 128
                tag = self.lg('ds_read_b64_tr_b16 %s, %s offset:%d' % (v(fr + 4 * i + 2 * ab, 2), bA if i < 4 else bB, off),
                              'stgr')
                for q in range(5):
                    self.q_read(STG_Q0 + q, 'stg', tag)
        I('L_p2_go:')
        for q in range(5):
            self.q_done(STG_Q0 + q)
        self.wait(lg=['stgr'])
        for i in range(5):
            self.vm('buffer_store_dwordx4 %s, %s, %s, %s offen sc1' % (v(fr + 4 * i, 4), V['Rd0'], srd(sWS), sPst[i]), 'pre')
            I('v_mfma_f32_16x16x32_bf16 %s, %s, %s, %s' % (v(cs, 4), v(one, 4), v(fr + 4 * i, 4), v(cs, 4) if i else '0'))
        self.vm('buffer_store_dword %s, %s, %s, 0 offen sc1' % (v(cs), V['Cs'], srd(sWS)), 'pre')

    def small_loads(self, part):
        I = self.I
        T = TMP + 20
        x0, x1, x2, x3 = v(T), v(T + 1), v(T + 2), v(T + 5)
        self.B1L, self.B2L = T + 3, T + 4
        if part == 1:
            I('s_lshr_b32 %s, %s, 2' % (t1, sW1k))
            I('s_add_u32 m0, %s, %d' % (t1, TPHI))
            I('s_mov_b64 s[%d:%d], s[60:61]' % (sPS, sPS + 1))
            I('s_mov_b32 s%d, %d' % (sPS + 2, 1728 * 2))
            self.vm('buffer_load_dword %s, %s, 0 offen lds' % (x2, srd(sT2)), 'phi')
            self.vm('buffer_load_dword %s, %s, 0 offen offset:1024 lds' % (x2, srd(sT2)), 'phi')
            self.vm('buffer_load_ushort %s, %s, %s, 0 offen' % (v(self.B1L), x3, srd(sPS)), 'bias')
            I('s_mov_b64 s[%d:%d], s[64:65]' % (sT2, sT2 + 1))
            I('s_mov_b32 s%d, %d' % (sT2 + 2, 640 * 2))
            self.vm('buffer_load_ushort %s, %s, %s, 0 offen' % (v(self.B2L), x0, srd(sT2)), 'bias')
            return
        I('s_mov_b64 s[%d:%d], s[52:53]' % (sT2, sT2 + 1))
        I('s_mov_b32 s%d, %d' % (sT2 + 2, 32 * 800))
        I('s_mov_b32 s%d, 0x20000' % (sT2 + 3))
        I('s_mul_i32 %s, %s, 1600' % (t0, sJ))
        I('v_lshl_add_u32 %s, v0, 2, %s' % (x2, t0))
        I('s_mul_i32 %s, %s, 96' % (t0, sJ))
        I('s_lshl_b32 %s, %s, 4' % (t1, sJ))
        I('s_add_u32 %s, %s, %d' % (t1, t1, 1536 - 96))
        I('v_add_u32 %s, %s, v0' % (x0, t0))
        I('v_add_u32 %s, %s, v0' % (x1, t1))
        I('v_cmp_gt_u32 vcc, 96, v0')
        I('v_cndmask_b32 %s, %s, %s, vcc' % (x0, x1, x0))
        I('v_lshlrev_b32 v1, 4, %s' % x0)
        I('v_lshlrev_b32 %s, 1, %s' % (x3, x0))
        I('v_bfe_u32 %s, v0, 2, 2' % x0)
        I('v_lshlrev_b32 %s, 3, %s' % (x0, x0))
        I('v_bfe_u32 %s, v0, 4, 1' % x1)
        I('v_lshl_add_u32 %s, %s, 2, %s' % (x0, x1, x0))
        I('v_and_b32 %s, 0x23, v0' % x1)
        I('v_add_u32 %s, %s, %s' % (x0, x0, x1))
        I('v_cmp_gt_u32 vcc, 64, v0')
        I('v_cndmask_b32 %s, v0, %s, vcc' % (x0, x0))
        I('s_mul_i32 %s, %s, 80' % (t0, sC))
        I('v_add_lshl_u32 %s, %s, %s, 1' % (x0, x0, t0))

    def addresses(self, part):
        I = self.I
        lane, g, tok = self.lane, self.g, self.tok
        T = TMP + 3
        x0, x1, x2, x3 = v(T), v(T + 1), v(T + 2), v(T + 3)
        if part == 1:
            for i in range(1, 16):
                I('s_mov_b32 %s, %d' % (sK4(i), 4096 * i))
            I('s_mov_b32 %s, %d' % (sH54, 54 * 1024))
            for b in (sST, sTC):
                I('s_mov_b64 s[%d:%d], s[%d:%d]' % (b, b + 1, sLD, sLD + 1))
                I('s_mov_b32 s%d, 0x%x' % (b + 2, ARENA))
                I('s_mov_b32 s%d, 0x20000' % (b + 3))
            I('s_mov_b32 %s, 0' % sStep)
            I('s_mov_b32 %s, 0' % sLayer)
            I('s_mov_b32 %s, 0' % sSlow)
            I('s_mov_b32 %s, 0x%x' % (sTO, self.cfg.get('timeout', 0x20000)))
            I('s_lshl_b32 %s, %s, 2' % (t4, sRb))
            I('s_add_u32 %s, %s, %s' % (t4, t4, sW))
            I('s_lshr_b32 %s, %s, 1' % (t5, t3))
            I('s_and_b32 %s, %s, 1' % (t6, t2))
            I('s_lshl_b32 %s, %s, 2' % (sKVFp, sRb))
            I('s_mul_i32 %s, %s, %d' % (t4, t4, TGS))
            I('s_add_u32 %s, %s, 0x%x' % (t4, t4, PAD))
            I('s_mul_i32 %s, %s, %d' % (t5, t5, TGS))
            I('s_add_u32 %s, %s, 0x%x' % (t5, t5, PAD))
            I('v_add_u32 %s, %s, %s' % (V['A1'], t4, V['Rd0']))
            I('s_mul_i32 %s, %s, 20480' % (t0, t6))
            I('s_add_u32 %s, %s, %s' % (t0, t0, t5))
            I('s_add_u32 %s, %s, 0x%x' % (t0, t0, BE))
            I('v_add_u32 %s, %s, %s' % (V['A2'], t0, V['Rd0']))
            I('s_mul_i32 %s, %s, %d' % (t0, t6, 54 * 1024))
            I('s_add_u32 %s, %s, %s' % (t0, t0, t5))
            I('s_add_u32 %s, %s, 0x%x' % (t0, t0, BE))
            I('v_add_u32 %s, %s, %s' % (V['A4'], t0, V['Rd0']))
            I('s_mov_b32 %s, %s' % (t0, t5))
            I('s_mul_i32 %s, %s, %d' % (t1, sC, 5120))
            I('s_add_u32 %s, %s, %s' % (t1, t1, t0))
            I('s_lshl_b32 s3, %s, 8' % t6)
            I('s_add_u32 %s, %s, s3' % (t1, t1))
            I('v_lshl_add_u32 %s, %s, 4, %s' % (x0, tok, t1))
            I('v_lshl_add_u32 %s, %s, 9, %s' % (V['SX1'], g, x0))
            I('v_lshrrev_b32 %s, 1, %s' % (x1, g))
            I('v_lshl_add_u32 %s, %s, 9, %s' % (x0, x1, x0))
            I('v_and_b32 %s, 1, %s' % (x2, g))
            I('v_lshl_add_u32 %s, %s, 3, %s' % (x0, x2, x0))
            I('v_add_u32 %s, 4096, %s' % (V['SX3'], x0))
            I('s_lshr_b32 %s, %s, 1' % (t1, sC))
            I('s_mul_i32 %s, %s, 10' % (t1, t1))
            I('s_add_u32 %s, %s, %s' % (t1, t1, t6))
            I('s_lshl_b32 %s, %s, 10' % (t1, t1))
            I('s_add_u32 %s, %s, %s' % (t0, t0, t1))
            I('s_and_b32 %s, %s, 1' % (t1, sC))
            I('s_lshl_b32 s3, %s, 12' % t1)
            I('s_add_u32 s3, s3, %s' % t0)
            I('v_add_u32 %s, s3, %s' % (V['S11'], V['Rd0']))
            I('s_lshl_b32 s3, %s, 3' % t1)
            I('s_add_u32 s3, s3, %s' % t0)
            I('s_add_u32 s3, s3, 8192')
            I('v_add_u32 %s, s3, %s' % (V['S13'], V['Rd0']))
            I('s_lshl_b32 s3, %s, 3' % t1)
            I('s_add_u32 %s, %s, s3' % (t0, t5))
            I('s_lshr_b32 s3, %s, 1' % sC)
            I('s_lshl_b32 s3, s3, 9')
            I('s_add_u32 %s, %s, s3' % (t0, t0))
            I('s_lshl_b32 s3, %s, 8' % t6)
            I('s_add_u32 %s, %s, s3' % (t0, t0))
            I('s_add_u32 %s, %s, 0x%x' % (t0, t0, ST))
            I('v_lshl_add_u32 %s, %s, 4, %s' % (x0, tok, t0))
            I('v_lshl_add_u32 %s, %s, 2, %s' % (V['SSt'], x1, x0))
            I('s_add_u32 %s, %s, 0x%x' % (t0, t4, ST))
            I('v_add_u32 %s, %s, %s' % (V['LSt1'], t0, V['Rd0']))
            I('v_lshl_add_u32 %s, %s, 4, %s' % (x0, tok, t0))
            I('v_lshl_add_u32 %s, %s, 9, %s' % (V['LSt3'], g, x0))
            I('s_add_u32 %s, %s, 0x%x' % (sFl32, t4, FL))
            I('s_add_u32 %s, %s, 0x%x' % (sFl16, t5, FL))
            I('s_lshl_b32 s3, %s, 3' % t6)
            I('s_add_u32 s3, s3, %s' % sC)
            I('s_lshl_b32 s3, s3, 2')
            I('s_add_u32 %s, %s, s3' % (sFlP16, sFl16))
            I('s_lshl_b32 s3, %s, 2' % sJ)
            I('s_add_u32 %s, %s, s3' % (sFlP32, sFl32))
            I('v_lshlrev_b32 %s, 2, %s' % (V['Fl'], tok))
            I('s_lshl_b32 %s, %s, 7' % (sKVFc, sJ))
            I('s_add_u32 %s, %s, 0x%x' % (sKVFc, sKVFc, QF))
            I('s_add_u32 %s, %s, %s' % (sKVFp, sKVFp, sKVFc))
            I('s_lshl_b32 %s, s2, 2' % sPreP)
            I('s_add_u32 %s, %s, 0x%x' % (sPreP, sPreP, PREF))
            I('s_lshl_b32 %s, %s, 16' % (t0, sJ))
            I('s_add_u32 %s, %s, 0x%x' % (t0, t0, KVP))
            I('v_lshl_add_u32 %s, v0, 4, %s' % (x0, t0))
            I('v_mov_b32 %s, 0x40000000' % V['KG'])
            I('v_cmp_gt_u32 vcc, %d, v0' % (10 * KU))
            I('v_cndmask_b32 %s, %s, %s, vcc' % (V['KG'], V['KG'], x0))
            self.force_wait('lgkmcnt(0)')
            I('s_add_u32 %s, %s, 0x9e377900' % (sTagG, sTagG))
            I('s_and_b32 %s, %s, 0xffffff00' % (sTagG, sTagG))
            I('s_getreg_b32 s3, hwreg(HW_REG_XCC_ID)')
            I('s_and_b32 s3, s3, 15')
            I('s_or_b32 s3, s3, 16')
            I('s_or_b32 %s, %s, s3' % (sTagL, sTagG))
            I('v_mov_b32 %s, %s' % (V['TagG'], sTagG))
            I('v_mov_b32 %s, %s' % (V['TagL'], sTagL))
            return
        I('v_add_u32 %s, 0x10000, %s' % (V['Rd1'], V['Rd0']))
        I('v_add_u32 %s, 0x20000, %s' % (V['Rd2'], V['Rd0']))
        for k in range(3):
            I('v_add_u32 %s, %s, %s' % (V['RdW%d' % k], sW1k, V['Rd%d' % k]))
        I('v_lshrrev_b32 %s, 5, %s' % (x0, lane))
        I('v_lshlrev_b32 %s, 11, %s' % (x0, x0))
        I('v_bfe_u32 %s, %s, 2, 2' % (x1, lane))
        I('v_lshl_add_u32 %s, %s, 6, %s' % (x0, x1, x0))
        I('v_and_b32 %s, 1, %s' % (x1, lane))
        I('v_lshl_add_u32 %s, %s, 5, %s' % (x2, x1, x0))
        I('v_and_b32 %s, 16, %s' % (x1, lane))
        I('v_add_u32 %s, %s, %s' % (x2, x2, x1))
        I('v_lshl_add_u32 %s, %s, 1, %s' % (x0, x1, x0))
        I('v_and_b32 %s, 2, %s' % (x1, lane))
        I('v_lshl_add_u32 %s, %s, 2, %s' % (V['TrA0'], x1, x2))
        I('v_and_b32 %s, 3, %s' % (x1, lane))
        I('v_lshl_add_u32 %s, %s, 3, %s' % (V['TrB0'], x1, x0))
        for k in 'AB':
            I('v_add_u32 %s, 0x10000, %s' % (V['Tr%s1' % k], V['Tr%s0' % k]))
            I('v_add_u32 %s, 0x20000, %s' % (V['Tr%s2' % k], V['Tr%s0' % k]))
        I('v_lshrrev_b32 %s, 1, %s' % (x1, g))
        I('v_and_b32 %s, 1, %s' % (x2, g))
        I('s_lshr_b32 %s, %s, 2' % (t1, sJ))
        I('s_mul_i32 %s, %s, 5120' % (t1, t1))
        I('s_add_u32 %s, %s, %s' % (t0, t4, t1))
        I('s_add_u32 %s, %s, 0x%x' % (t0, t0, BE))
        I('s_and_b32 %s, %s, 3' % (t1, sJ))
        I('v_mul_u32_u24 %s, 20480, %s' % (x0, x2))
        I('v_lshl_add_u32 %s, %s, 4, %s' % (x0, tok, x0))
        I('s_lshl_b32 s3, %s, 10' % t1)
        I('s_add_u32 s3, s3, %s' % t0)
        I('v_add_u32 %s, s3, %s' % (x3, x0))
        I('v_lshl_add_u32 %s, %s, 8, %s' % (V['SO1'], x1, x3))
        I('s_lshl_b32 s3, %s, 8' % t1)
        I('s_add_u32 s3, s3, %s' % t0)
        I('s_add_u32 s3, s3, 4096')
        I('v_add_u32 %s, s3, %s' % (x3, x0))
        I('v_mov_b32 %s, 0x%x' % (V['SO2'], OOB))
        I('v_cmp_gt_u32 vcc, 32, %s' % lane)
        I('v_cndmask_b32 %s, %s, %s, vcc' % (V['SO2'], V['SO2'], x3))
        I('s_add_u32 %s, %s, 0x%x' % (t0, t4, BE))
        I('s_mul_i32 s3, %s, 3072' % sJ)
        I('s_add_u32 s3, s3, %s' % t0)
        I('v_add_u32 %s, s3, %s' % (V['SH1'], V['Rd0']))
        I('s_lshr_b32 s3, %s, 1' % sJ)
        I('s_add_u32 s3, s3, 48')
        I('s_lshl_b32 s3, s3, 10')
        I('s_add_u32 %s, %s, s3' % (t0, t0))
        I('s_and_b32 s3, %s, 1' % sJ)
        I('s_lshl_b32 s3, s3, 3')
        I('s_add_u32 %s, %s, s3' % (t0, t0))
        I('s_cmp_ge_u32 %s, 12' % sJ)
        I('s_cselect_b32 %s, 0x40000000, %s' % (t0, t0))
        I('v_add_u32 %s, %s, %s' % (V['SH2'], t0, V['Rd0']))
        I('s_mul_i32 %s, %s, %d' % (sOb, sC, 100 * 1024))
        I('s_add_u32 %s, %s, 0x%x' % (sOb, sOb, WOT - slotO(0) * 4096))
        I('s_mul_i32 %s, %s, %d' % (sF1b, sJ, 140 * 1024))
        I('s_add_u32 %s, %s, 0x%x' % (sF1b, sF1b, W1T - slotF1(0) * 4096))
        I('s_mul_i32 %s, %s, %d' % (sF2b, sC, 272 * 1024))
        I('s_add_u32 %s, %s, 0x%x' % (sF2b, sF2b, W2T - slotF2(0) * 4096))
        I('s_lshl_b32 %s, %s, 16' % (t0, sJ))
        I('s_add_u32 %s, %s, 0x%x' % (t0, t0, KVP))
        I('s_lshl_b32 s3, %s, 12' % sRb)
        I('s_add_u32 %s, %s, s3' % (t0, t0))
        I('s_lshr_b32 %s, %s, 1' % (t5, sW))
        I('s_and_b32 %s, %s, 1' % (t6, sW))
        I('s_mul_i32 s3, %s, %d' % (t5, 80 * KU))
        I('s_add_u32 %s, %s, s3' % (t0, t0))
        I('s_lshl_b32 s3, %s, 4' % t6)
        I('v_add_u32 %s, s3, %s' % (x0, tok))
        I('v_cmp_gt_u32 vcc, %d, %s' % (KU, x0))
        I('v_lshl_add_u32 %s, %s, 4, %s' % (x0, x0, t0))
        I('v_mov_b32 %s, 0x40000000' % x3)
        I('v_cndmask_b32 %s, %s, %s, vcc' % (x0, x3, x0))
        I('v_mul_u32_u24 %s, %d, %s' % (V['KS1'], 16 * KU, g))
        I('v_add_u32 %s, %s, %s' % (V['KS1'], V['KS1'], x0))
        I('v_lshl_add_u32 %s, %s, 3, %s' % (x0, g, x0))
        I('v_add_u32 %s, %d, %s' % (x0, 64 * KU, x0))
        I('v_cmp_gt_u32 vcc, 32, %s' % lane)
        I('v_cndmask_b32 %s, %s, %s, vcc' % (V['KS2'], x3, x0))
        I('v_lshlrev_b32 %s, 4, v0' % V['KW'])
        I('v_add_u32 %s, %d, %s' % (V['KW'], KS_Q * 4096, V['KW']))
        I('v_and_b32 %s, 31, %s' % (x0, lane))
        I('v_lshlrev_b32 %s, 7, %s' % (x0, x0))
        I('v_lshl_add_u32 %s, %s, 14, %s' % (x0, x1, x0))
        I('v_and_b32 %s, 7, %s' % (x3, lane))
        I('v_lshl_add_u32 %s, %s, 4, %s' % (x0, x3, x0))
        I('s_lshl_b32 s3, %s, 12' % sW)
        I('s_add_u32 s3, s3, %d' % (T_Q0 * 4096))
        I('v_add_u32 %s, s3, %s' % (V['TW'], x0))
        I('v_bfe_u32 %s, %s, 2, 3' % (x0, lane))
        I('v_lshl_add_u32 %s, %s, 4, %s' % (x3, x1, x0))
        I('v_lshlrev_b32 %s, 7, %s' % (x3, x3))
        I('s_lshl_b32 s3, %s, 14' % t5)
        I('s_add_u32 s3, s3, %d' % (T_Q0 * 4096))
        I('v_add_u32 %s, s3, %s' % (x3, x3))
        I('v_and_b32 %s, 1, %s' % (x2, lane))
        I('v_lshl_add_u32 %s, %s, 3, %s' % (x3, x2, x3))
        I('v_bfe_u32 %s, %s, 1, 1' % (x2, lane))
        I('v_xor_b32 %s, %s, %s' % (V['KA'], x2, x0))
        I('v_lshl_add_u32 %s, %s, 4, %s' % (V['KA'], V['KA'], x3))
        I('v_add_u32 %s, 5, %s' % (x2, x2))
        I('s_cmp_eq_u32 %s, 1' % t6)
        I('s_cselect_b64 vcc, -1, 0')
        I('v_cndmask_b32 %s, %s, 7, vcc' % (x2, x2))
        I('v_xor_b32 %s, %s, %s' % (x2, x2, x0))
        I('v_lshl_add_u32 %s, %s, 4, %s' % (V['KB'], x2, x3))
        I('v_bfe_u32 %s, %s, 3, 2' % (x0, lane))
        I('v_bfe_u32 %s, %s, 2, 1' % (x2, lane))
        I('v_cmp_gt_u32 vcc, 2, %s' % x0)
        I('v_cndmask_b32 %s, 1, %s, vcc' % (x2, x2))
        I('v_lshlrev_b32 %s, 3, %s' % (x2, x2))
        I('v_lshl_add_u32 %s, %s, 2, %s' % (x2, x0, x2))
        I('v_and_b32 %s, 3, %s' % (x0, lane))
        I('v_add_u32 %s, %s, %s' % (x2, x2, x0))
        I('v_mul_u32_u24 %s, %d, %s' % (x0, KU, x1))
        I('v_add_lshl_u32 %s, %s, %s, 4' % (x0, x0, x2))
        I('v_add_u32 %s, %d, %s' % (V['R1'], KS_Q * 4096, x0))
        I('v_cmp_gt_u32 vcc, 32, %s' % lane)
        I('v_mov_b32 %s, %d' % (x3, 6 * KU + 4))
        I('v_cndmask_b32 %s, %s, %s, vcc' % (x0, x3, x2))
        I('v_cndmask_b32 %s, %s, %d, vcc' % (x3, x2, KU + 4))
        I('v_lshlrev_b32 %s, 4, %s' % (x0, x0))
        I('v_lshlrev_b32 %s, 4, %s' % (x3, x3))
        I('v_add_u32 %s, %d, %s' % (V['R20'], KS_Q * 4096 + 64 * KU, x0))
        I('v_add_u32 %s, %d, %s' % (V['R21'], KS_Q * 4096 + 144 * KU, x3))
        I('v_lshlrev_b32 %s, 4, %s' % (x0, x1))
        I('v_add_u32 %s, %d, %s' % (V['Tb1'], PA, x0))
        I('v_lshlrev_b32 %s, 4, %s' % (x0, g))
        I('v_add_u32 %s, %d, %s' % (V['Tb4'], PA, x0))
        I('s_and_b32 %s, %s, 1' % (t0, sRb))
        I('s_lshr_b32 %s, %s, 3' % (t1, sJ))
        I('s_lshl_b32 s3, %s, 1' % t0)
        I('s_add_u32 %s, %s, s3' % (t1, t1))
        for st, r, base, wa, nA, steps, av in (('F1', t0, sF1b, 'P3', 2, 20, None),
                                               ('O', t1, sOb, 'P2', 1, 20, 'A2'), ('F2', t1, sF2b, 'P4', 1, 54, 'A4')):
            pk = 0
            for i, x in enumerate(self.rot[st]):
                pk |= x << (8 * i)
            I('s_lshl_b32 s3, %s, 3' % r)
            I('s_lshr_b32 s3, 0x%x, s3' % pk)
            I('s_and_b32 s3, s3, 0xff')
            I('s_mul_i32 %s, s3, %d' % (t5, nA))
            I('s_sub_u32 %s, %d, %s' % (sWa[wa], steps * nA, t5))
            if not av:
                I('s_lshl_b32 %s, %s, 10' % (sRa3, t5))
            if av:
                I('s_lshl_b32 %s, s3, 10' % t5)
                I('v_add_u32 %s, %s, %s' % (V[av], t5, V[av]))
            I('s_mul_i32 s3, s3, %d' % PPS[st])
            I('s_lshl_b32 %s, s3, 10' % t5)
            if st == 'F1':
                I('s_sub_u32 %s, %s, %s' % (sSb, base, t5))
                I('s_add_u32 %s, %s, 0x%x' % (sSb, sSb, (slotF1(0) + 35 - NS) * 4096))
            I('s_add_u32 %s, %s, %s' % (base, base, t5))
            I('s_add_u32 s3, s3, %s' % sW)
            I('s_sub_u32 s3, %d, s3' % (NPIECE[st] + 3))
            I('s_lshr_b32 %s, s3, 2' % sWr[st])

    def stats(self):
        T = TMP + 28
        o = ['v_pk_add_f32 %s, %s, %s' % (v(T, 2), v(RES, 2), v(RES + 2, 2)),
             'v_pk_mul_f32 %s, %s, %s' % (v(T + 2, 2), v(RES, 2), v(RES, 2))]
        for i in range(1, 10):
            if i > 1:
                o.append('v_pk_add_f32 %s, %s, %s' % (v(T, 2), v(T, 2), v(RES + 2 * i, 2)))
            o.append('v_pk_fma_f32 %s, %s, %s, %s' % (v(T + 2, 2), v(RES + 2 * i, 2), v(RES + 2 * i, 2), v(T + 2, 2)))
        o += ['v_add_f32 %s, %s, %s' % (v(T), v(T), v(T + 1)),
              'v_add_f32 %s, %s, %s' % (v(T + 2), v(T + 2), v(T + 3)),
              'v_permlane32_swap_b32 %s, %s' % (v(T), v(T + 2)),
              'v_add_f32 %s, %s, %s' % (v(T), v(T), v(T + 2)),
              'v_mov_b32 %s, %s' % (v(T + 2), v(T)),
              'v_permlane16_swap_b32 %s, %s' % (v(T), v(T + 2)),
              'v_add_f32 %s, %s, %s' % (v(T + 2), v(T), v(T + 2))]
        return o

    def pack_res(self, P, lo=0, hi=10):
        for i in range(lo, hi):
            self.I('v_cvt_pk_bf16_f32 %s, %s, %s' % (v(P + i), v(RES + 2 * i), v(RES + 2 * i + 1)))

    def publish_x(self, which, burst=(0, 0), bar=False):
        a1, a3 = (V['SX1'], V['SX3']) if which == 'XA' else (V['S11'], V['S13'])
        P = TMP + 8

        def sec(sfx):
            st = self.stats()
            self.I('.p2align 3')
            self.pack_res(P, 0, 4)
            self.vm('buffer_store_dwordx4 %s, %s, %s, 0 offen%s' % (v(P, 4), a1, srd(sST), sfx), 'pub')
            self.pack_res(P, 4, 10)
            for x in st[:6]:
                self.I(x)
            self.vm('buffer_store_dwordx4 %s, %s, %s, 0 offen offset:2048%s' % (v(P + 4, 4), a1, srd(sST), sfx), 'pub')
            for x in st[6:21]:
                self.I(x)
            self.vm('buffer_store_dwordx2 %s, %s, %s, 0 offen%s' % (v(P + 8, 2), a3, srd(sST), sfx), 'pub')
            for x in st[21:]:
                self.I(x)
            self.vm('buffer_store_dword %s, %s, %s, 0 offen%s' % (v(TMP + 30), V['SSt'], srd(sST), sfx), 'pub')
            if bar:
                self.barrier()
            self.bg_burst(burst[0])
            self.w_burst(burst[0])
            self.wait(vm=['pub'])
            self.flag_local(sFlP16, F_X, sfx)
        self.dual_section(sec)
        self.bg_burst(burst[1])
        self.w_burst(burst[1])

    def p0(self):
        I = self.I
        cfg = self.cfg
        XL = self.XL
        pp = cfg.get('pp_at', 0)
        self.wait(vm=['x'])
        for i in range(10):
            I('v_lshlrev_b32 %s, 16, %s' % (v(RES + 2 * i), v(XL + i)))
            I('v_and_b32 %s, 0xffff0000, %s' % (v(RES + 2 * i + 1), v(XL + i)))
        for x in self.stats():
            I(x)
        self.vm('buffer_store_dword %s, %s, %s, 0 offen sc1' % (v(TMP + 30), V['SSt'], srd(sST)), 'p0s')
        if pp == 1:
            self.prepass1_issue()
            self.small_loads(1)
        self.stamp(20)
        xs = [('X', (G, p), cfg.get('p0_gap', 70)) for G in range(10) for p in range(4)]
        n1, n2 = cfg.get('p0_x', [10, 28])
        self.bgq = xs[:n1]
        self.bg(True)
        self.addresses(2)
        lane = self.lane
        x0, x1, x2 = v(TMP + 3), v(TMP + 4), v(TMP + 5)
        I('v_and_b32 %s, 31, %s' % (x0, lane))
        I('v_bfe_u32 %s, %s, 1, 3' % (x1, lane))
        I('v_lshrrev_b32 %s, 5, %s' % (x2, lane))
        I('v_xor_b32 %s, %s, %s' % (x1, x1, x2))
        I('v_lshlrev_b32 %s, 4, %s' % (x1, x1))
        I('v_lshl_add_u32 %s, %s, 7, %s' % (x0, x0, x1))
        I('s_lshl2_add_u32 %s, %s, %d' % (t0, sW1k, xslot(0) * 4096))
        I('v_add_u32 %s, %s, %s' % (v(XR), t0, x0))
        for i in range(1, 4):
            I('v_xor_b32 %s, %d, %s' % (v(XR + i), 32 * i, v(XR)))
        for i in range(4):
            I('v_add_u32 %s, 0x10000, %s' % (v(XR + 4 + i), v(XR + i)))
        self.bg(False)
        I('s_lshl_b32 %s, %s, 7' % (t2, sRb))
        I('s_add_u32 %s, %s, 0x%x' % (t2, t2, XF))
        I('s_lshl2_add_u32 %s, %s, %s' % (t3, sJ, t2))
        self.wait(vm=['p0s'])
        self.barrier()
        self.one_wave_store(sW, 'buffer_store_dword %s, off, %s, %s sc1\nbuffer_store_dword %s, off, %s, %s sc1' %
                            (V['TagG'], srd(sWS), sKVFp, V['TagL'], srd(sWS), t3))
        self.stamp(21)
        self.bgq += xs[n1:n2]
        self.x_rest = xs[n2:]
        if pp == 1:
            self.bg_burst(cfg.get('p0_b', 8))
            self.wait(vm=['bias'])
            self.barrier()
        I('v_lshlrev_b32 %s, 16, %s' % (v(TMP + 32), v(self.B1L)))
        I('v_lshlrev_b32 %s, 16, %s' % (v(TMP + 33), v(self.B2L)))
        I('v_min_u32 %s, 127, v0' % v(TMP + 34))
        I('v_lshlrev_b32 %s, 2, %s' % (v(TMP + 34), v(TMP + 34)))
        I('v_add_u32 %s, %d, %s' % (v(TMP + 34), PA, v(TMP + 34)))
        self.lg('ds_write_b32 %s, %s offset:%d' % (v(TMP + 34), v(TMP + 32), TB1 - PA))
        self.lg('ds_write_b32 %s, %s offset:%d' % (v(TMP + 34), v(TMP + 33), TB2 - PA))
        self.prepass2()
        self.bg(True)
        self.build_phi()
        self.stream_reset('Q')
        self.bg_burst(99)
        assert not self.bgq
        self.stamp(22)
        A_, B_, C_ = v(TMP + 32), v(TMP + 33), v(TMP + 34)
        I('v_add_u32 %s, %s, %s' % (A_, sKVFc, V['Fl']))
        I('v_add_u32 %s, %s, %s' % (B_, t2, V['Fl']))
        I('v_cmp_gt_u32 vcc, 0x200, %s' % V['Rd0'])
        I('v_cndmask_b32 %s, %s, %s, vcc' % (A_, A_, B_))
        I('v_cndmask_b32 %s, %s, %s, vcc' % (C_, V['TagG'], V['TagL']))
        I('L_p0_poll:')
        I('buffer_load_dword %s, %s, %s, 0 offen sc1' % (B_, A_, srd(sWS)))
        I('s_sub_u32 %s, %s, 1' % (sTO, sTO))
        I('s_cbranch_scc1 L_end')
        self.force_wait('vmcnt(0)')
        I('v_xor_b32 %s, %s, %s' % (B_, C_, B_))
        I('v_cmp_ne_u32 vcc, 0, %s' % B_)
        I('s_cbranch_vccnz L_p0_more')
        I('L_p0_ok:')
        self.tail += [
            'L_p0_more:',
            'v_cmp_lt_u32 vcc, 15, %s' % B_,
            's_cbranch_vccnz L_p0_poll',
            's_mov_b32 %s, 1' % sSlow,
            's_mov_b32 %s, %s' % (sTagL, sTagG),
            'v_mov_b32 %s, %s' % (V['TagL'], sTagG),
            's_mov_b32 %s, 0x%x' % (sStep, ARENA),
            's_add_u32 s%d, s%d, 0x%x' % (sST, sST, ARENA),
            's_addc_u32 s%d, s%d, 0' % (sST + 1, sST + 1),
            's_mov_b32 s%d, 0' % (sTC + 2),
            's_branch L_p0_ok']

    def build_phi(self):
        I = self.I
        T = TMP
        x0, x1, x2, b0, b1, msk = v(T + 24), v(T + 25), v(T + 26), v(T + 27), v(T + 28), v(T + 29)
        R = V['Rd0']
        I('v_bfe_u32 %s, %s, 4, 1' % (x0, R))
        I('v_bfe_u32 %s, %s, 6, 2' % (x1, R))
        I('v_mul_u32_u24 %s, 40, %s' % (x1, x1))
        I('v_bfe_u32 %s, %s, 5, 1' % (x2, R))
        I('v_lshl_add_u32 %s, %s, 3, %s' % (x1, x2, x1))
        I('v_bfe_u32 %s, %s, 8, 1' % (x2, R))
        I('v_lshl_add_u32 %s, %s, 4, %s' % (x1, x2, x1))
        I('v_add_u32 %s, %d, %s' % (x1, TPHI, x1))
        I('v_mul_u32_u24 %s, 960, %s' % (x2, x0))
        I('v_add_u32 %s, %s, %s' % (b0, x1, x2))
        I('v_mul_u32_u24 %s, 160, %s' % (x2, x0))
        I('v_add_u32 %s, %s, %s' % (b1, x1, x2))
        I('v_bfe_u32 %s, %s, 6, 1' % (x0, R))
        I('v_lshrrev_b32 %s, 9, %s' % (x2, R))
        I('v_cmp_eq_u32 vcc, %s, %s' % (x0, x2))
        I('v_cndmask_b32 %s, 0, -1, vcc' % msk)
        for Tt in range(2):
            for sq in range(5):
                self.lg('ds_read_b64_tr_b16 %s, %s offset:%d' %
                        (v(T + 12 * Tt + 2 * sq, 2), b0 if sq < 4 else b1, 160 * sq + 32 * Tt), 'phir')
        self.wait(lg=['phir'])
        for Tt in range(2):
            for i in range(12):
                if i < 10:
                    I('v_and_b32 %s, %s, %s' % (v(T + 12 * Tt + i), msk, v(T + 12 * Tt + i)))
                    I('v_accvgpr_write_b32 %s, %s' % (a(aPHI + 12 * Tt + i), v(T + 12 * Tt + i)))
                else:
                    I('v_accvgpr_write_b32 %s, 0' % a(aPHI + 12 * Tt + i))

    def ln1_ops(self):
        SL, CS = TMP + 44, BF + 24
        def st1_wait():
            assert not [j for j in self.bgq if j[0] == 'T' and isinstance(j[1], tuple)]
            self.wait(vm=['st1'])
        ops = [st1_wait]
        for i in range(2):
            ops += ['v_add_f32 %s, %s, %s' % (v(SL + i), v(SL + i), v(SL + 2 + i)),
                    'v_add_f32 %s, %s, %s' % (v(SL + 4 + i), v(SL + 4 + i), v(SL + 6 + i))]
        for i in range(2):
            ops += ['v_add_f32 %s, %s, %s' % (v(SL + i), v(SL + i), v(SL + 4 + i))]
        for i in range(2):
            ops += ['v_mov_b32 %s, %s' % (v(SL + 2 + i), v(SL + i))]
        for i in range(2):
            ops += ['v_permlane32_swap_b32 %s, %s' % (v(SL + i), v(SL + 2 + i))]
        for i in range(2):
            ops += ['v_add_f32 %s, %s, %s' % (v(SL + i), v(SL + i), v(SL + 2 + i))]
        ops += self.ln_coeffs(SL, SL + 2)
        rd = []
        for q in range(15):
            rd.append(lambda q=q: self.lg('ds_read_b128 %s, %s offset:%d' % (v(CS + 4 * q, 4), V['Tb1'], TCS1 - PA + 32 * q),
                                          ('csr', q)))
        mul = []
        for q in range(15):
            mul.append(lambda q=q: self.wait(lg=[('csr', q)]))
            mul += ['v_mul_f32 %s, %s, %s' % (v(CS + 4 * q + i), v(SL + 1), v(CS + 4 * q + i)) for i in range(4)]
        return ops, rd, mul

    def p1(self, first):
        I = self.I
        cfg = self.cfg
        name = 'P1a' if first else 'P1b'
        SL = TMP + 44
        CF, SEL, CA, CB = TMP + 32, TMP + 36, TMP + 40, v(TMP + 52)

        def mf(s, f, r):
            c = v(ACC + 16 * f, 16)
            return ['v_mfma_f32_32x32x16_bf16 %s, %s, %s, %s' % (c, v(r, 4), a(4 * s, 4), c if s else '0')]

        st_jobs = [('T', ('buffer_load_dwordx4 %s, %s, %s, 0 offen offset:%d sc1' % (v(SL + 4 * i, 4), V['LSt1'], srd(sLD), 1024 * i),
                          'st1'), 0) for i in range(2)]
        o_jobs = [('O', n, cfg.get('p1_ogap', 0)) for n in range(cfg.get('p1_o', 25))]
        ops, rd, mul = self.ln1_ops()
        self.stream_reset('O')
        I('v_add_u32 %s, %s, %s' % (V['DS'], sSb, V['RdW0']))
        ns = cfg.get('p1_s', 8)
        if not first:
            self.bgq = st_jobs + [('S', k, cfg.get('p1b_sgap', 400)) for k in range(ns)] + o_jobs
            sh = [(14, x) for x in ops + rd + mul]

            def entry():
                self.poll(V['Fl'], sLD, sFl32, F_X, sTagL)
                self.stamp(17)
            self.gemm(name, 40, 4, 'Q', lambda i: 4 * i, V['A1'], 1, mf, L=5, we=2,
                      bars=cfg.get('p1b_bars', [0, 6, 12, 18, 24, 30]), a0=cfg.get('p1b_a0', 5), every=cfg.get('p1b_ev', 2),
                      ahead=cfg.get('p1b_ah', 8), tr=True, shadow=sh, entry=entry, wevery=cfg.get('p1b_we', 4))
            assert not self.bgq and not self.wq, (self.bgq, self.wq)
            self.wait(lg_all=True)
            self.barrier()
            return

        hooks = {}
        slot = self.slotf('Q')
        seg = [0]
        PL = TMP
        s_pf, s_ld, s_ck = cfg.get('pre_steps', [0, 16, 21])
        xu_steps = cfg.get('xu_steps', [8, 12, 15])
        ftouch = []
        for w in cfg.get('first_touch', []):
            ftouch += self.touches(w, always=True)
        ftouch += [('T', 'buffer_load_dword %s, %s, %s, %s offen sc1' % (a(aDUM), V['Fl'], srd(sTC), sFl32), 0)]

        def unload(G):
            assert not any(j[0] == 'X' and j[1][0] == G for j in self.bgq), ('x group late', G)
            self.wait(vm=[('X', G)])
            off = (xslot(G) - xslot(0)) * 4096
            for i in range(4):
                tag = self.lg('ds_read_b128 %s, %s offset:%d' % (a(16 * G + 4 * i, 4), v(XR + 4 * (off >> 16) + i), off & 0xffff),
                              ('xu', G))
            for q in range(4):
                self.q_read(xslot(G) + q, ('X', G), tag, private=True)
                if G < 4 or G >= 7:
                    self.q_done(xslot(G) + q)
            self.xdone.add(('xu', G))

        def h_start():
            I('v_bfe_u32 %s, %s, 8, 1' % (v(SEL), V['Rd0']))
            I('v_bfe_u32 %s, %s, 6, 1' % (v(SEL + 1), V['Rd0']))
            I('v_cmp_eq_u32 vcc, %s, %s' % (v(SEL), v(SEL + 1)))
            I('v_mov_b32 %s, 0x3f803f80' % v(SEL + 1))
            I('v_cndmask_b32 %s, 0, %s, vcc' % (v(SEL), v(SEL + 1)))
            for i in range(1, 4):
                I('v_mov_b32 %s, %s' % (v(SEL + i), v(SEL)))
            I('s_cmp_eq_u32 %s, 3' % sW)
            I('s_cselect_b64 vcc, -1, 0')
            I('v_cndmask_b32 %s, %s, %s, vcc' % (CB, V['TrA0'], V['TrB0']))
            I('s_lshr_b32 %s, %s, 2' % (t0, sW1k))
            I('v_add_u32 %s, %s, %s' % (CB, t0, CB))
            I('s_cmp_eq_u32 %s, 1' % sW)
            I('s_cselect_b32 %s, 0x%x, 0x40000000' % (t1, PREF))
            I('v_add_u32 %s, %s, %s' % (v(PL + 4), t1, V['Rd0']))
            self.wait(lg_all=True)

        def h_first():
            self.bg_burst(6)
            for G in (4, 5, 6, 0, 1, 2, 3):
                unload(G)
            h_start()
            self.barrier()
            self.bg_burst(cfg.get('p1a_b', 4))
        hooks[-2] = h_first

        def pre_check():
            self.bg(False)
            self.wait(vm=['pref'])
            I('s_cmp_eq_u32 %s, 1' % sW)
            I('s_cbranch_scc1 L_pre_ck')
            I('L_pre_ok:')
            self.tail += ['L_pre_ck:']
            self.tail += ['v_xor_b32 %s, %s, %s' % (v(PL + i), sTagG, v(PL + i)) for i in range(4)]
            self.tail += ['v_or3_b32 %s, %s, %s, %s' % (v(PL), v(PL), v(PL + 1), v(PL + 2)),
                          'v_or_b32 %s, %s, %s' % (v(PL), v(PL), v(PL + 3)),
                          'v_cmp_ne_u32 vcc, 0, %s' % v(PL),
                          's_cbranch_vccz L_pre_ok',
                          's_sleep 8',
                          'buffer_load_dwordx4 %s, %s, %s, 0 offen sc1' % (v(PL, 4), v(PL + 4), srd(sWS)),
                          's_sub_u32 %s, %s, 1' % (sTO, sTO), 's_cbranch_scc1 L_end', 's_waitcnt vmcnt(0)', 's_branch L_pre_ck']
            self.barrier()
            self.bgq += [('S', k, cfg.get('p1a_sgap', 260)) for k in range(ns)] + o_jobs + ftouch

        def step_hook(s):
            def fn():
                if s in (0, 10, 20, 30):
                    self.stamp(25 + s // 10)
                if s == s_pf:
                    assert self.pre_bar
                    self.bg(False)
                    self.one_wave_store(sW, 'buffer_store_dword %s, off, %s, %s sc1' % (V['TagG'], srd(sWS), sPreP))
                if s == s_ld:
                    self.bgq = [('T', ('buffer_load_dwordx4 %s, %s, %s, 0 offen sc1' % (v(PL, 4), v(PL + 4), srd(sWS)), 'pref'), 0)] \
                        + st_jobs + self.bgq
                if s == s_ck:
                    pre_check()
                if s > 0:
                    I('v_mfma_f32_16x16x32_bf16 %s, %s, %s, %s' %
                      (v(CA, 4), v(SEL, 4), v(CF, 4), v(CA, 4) if s > 1 else '0'))
                    capture(s - 1)
            return fn

        def capture(s):
            base, off = self.ldsaddr(slot(s) * 4096, 'RdW')
            tag = self.lg('ds_read_b128 %s, %s offset:%d' % (a(4 * s, 4), base, off), ('cap', s))
            self.q_read(slot(s), ('Q', s), tag)
            self.q_done(slot(s))

        def cs_read(s):
            def fn():
                byte = slot(s) * 4096
                if byte >> 16 != seg[0]:
                    I('v_add_u32 %s, 0x%x, %s' % (CB, (((byte >> 16) - seg[0]) << 16) & 0xffffffff, CB))
                    seg[0] = byte >> 16
                for ab in range(2):
                    tag = self.lg('ds_read_b64_tr_b16 %s, %s offset:%d' %
                                  (v(CF + 2 * ab, 2), CB, (byte & 0xffff) + 1024 * ab), ('cs', s))
                    self.q_read(slot(s), ('Q', s), tag)
            return fn
        extra = {}
        for s in range(40):
            hooks[s] = step_hook(s)
            extra[4 * s + 1] = cs_read(s)
        for i, s in enumerate(xu_steps):
            extra[4 * s + 3] = lambda i=i: unload(7 + i)
        qs = [('Q', n, 0) for n in range(40)]
        order = qs[:8]
        for i, x in enumerate(self.x_rest):
            order += [(x[0], x[1], 0), qs[8 + i]]
        self.bgq = order + qs[8 + len(self.x_rest):]
        self.gemm(name, 40, 4, 'Q', None, None, 0, mf, L=5, we=2,
                  bars=cfg.get('p1a_bars', [0, 2, 4, 7, 10, 13, 17, 25, 30]), a0=0, every=2, ahead=0, hooks=hooks, extra=extra,
                  tr=True, shadow=[(26, x) for x in ops], more_lg=lambda s: [('cs', s - 1), ('xu', s >> 2)])
        self.bg_burst(99)
        assert not self.bgq, self.bgq
        self.stamp(24)
        self.wait(lg=[('cs', 39)])
        step_hook(40)()
        I('v_bfe_u32 %s, %s, 2, 7' % (v(CF), V['Rd0']))
        I('s_lshr_b32 %s, %s, 3' % (t0, sW1k))
        I('s_add_u32 %s, %s, %d' % (t0, t0, TCS1))
        I('v_add_u32 %s, %s, %s' % (v(CF), t0, v(CF)))
        self.lg('ds_write_b32 %s, %s' % (v(CF), v(CA)))
        I('s_mov_b64 s[%d:%d], s[66:67]' % (sXO, sXO + 1))
        self.wait(lg_all=True)
        self.barrier()
        for x in rd:
            x()
        CS = BF + 24
        I('.p2align 3')
        for q in range(15):
            self.wait(lg=[('csr', q | 3)] if q < 12 else [('csr', 14)])
            for i in (0, 2):
                I('v_pk_mul_f32 %s, %s, %s op_sel:[0,1] op_sel_hi:[1,1]' % (v(CS + 4 * q + i, 2), v(CS + 4 * q + i, 2), v(SL, 2)))
        self.first = False

    def barrier(self):
        super().barrier()
        self.pre_bar = 'pre' not in self.vmq

    def ln_coeffs(self, S, n):
        x = v(n)
        return ['v_mul_f32 %s, 0x%x, %s' % (v(S), 0xbacccccd, v(S)),
                'v_mul_f32 %s, %s, %s' % (x, v(S), v(S)),
                'v_mul_f32 %s, 0x%x, %s' % (v(S + 1), 0x3acccccd, v(S + 1)),
                'v_sub_f32 %s, %s, %s' % (x, v(S + 1), x),
                'v_max_f32 %s, 0, %s' % (x, x),
                'v_add_f32 %s, 0x%x, %s' % (x, 0x3727c5ac, x),
                'v_rsq_f32 %s, %s' % (x, x),
                'v_mul_f32 %s, %s, %s' % (v(S + 1), x, v(S)),
                'v_mov_b32 %s, %s' % (v(S), x)]

    def softmax_pair(self, Pq, E, dst, after=None, mid=None):
        I = self.I
        M = TMP + 54
        mx, mn = v(M), v(M + 1)
        I('s_mov_b32 s100, 0x%x' % LOG2E)
        I('s_mov_b32 s101, 0x%x' % LOG2E)
        I('.p2align 3')
        I('v_max3_f32 %s, %s, %s, %s' % (mx, v(Pq), v(Pq + 1), v(Pq + 2)))
        I('v_min3_f32 %s, %s, %s, %s' % (mn, v(Pq), v(Pq + 1), v(Pq + 2)))
        for i in range(3, 19, 2):
            I('v_max3_f32 %s, %s, %s, %s' % (mx, mx, v(Pq + i), v(Pq + i + 1)))
            I('v_min3_f32 %s, %s, %s, %s' % (mn, mn, v(Pq + i), v(Pq + i + 1)))
        I('v_max_f32 %s, %s, %s' % (mx, mx, v(Pq + 19)))
        I('v_min_f32 %s, %s, %s' % (mn, mn, v(Pq + 19)))
        I('v_pk_mul_f32 %s, %s, s[100:101] neg_lo:[1,0]' % (v(M, 2), v(M, 2)))
        for i in range(10):
            I('v_pk_fma_f32 %s, %s, s[100:101], %s op_sel_hi:[1,1,0]' % (v(E + 2 * i, 2), v(Pq + 2 * i, 2), v(M, 2)))
            I('v_pk_fma_f32 %s, %s, s[100:101], %s op_sel:[0,0,1] op_sel_hi:[1,1,1] neg_lo:[1,0,0] neg_hi:[1,0,0]' %
              (v(E + 20 + 2 * i, 2), v(Pq + 2 * i, 2), v(M, 2)))
        for i in range(40):
            I('v_exp_f32 %s, %s' % (v(E + i), v(E + i)))
            if mid and i == mid[0]:
                mid[1]()
        S0, S1 = Pq, Pq + 2
        I('.p2align 3')
        for h, S in ((0, S0), (1, S1)):
            I('v_pk_add_f32 %s, %s, %s' % (v(S, 2), v(E + 20 * h, 2), v(E + 20 * h + 2, 2)))
        for i in range(2, 10):
            for h, S in ((0, S0), (1, S1)):
                I('v_pk_add_f32 %s, %s, %s' % (v(S, 2), v(S, 2), v(E + 20 * h + 2 * i, 2)))
        I('v_add_f32 %s, %s, %s' % (mx, v(S0), v(S0 + 1)))
        I('v_add_f32 %s, %s, %s' % (mn, v(S1), v(S1 + 1)))
        I('v_rcp_f32 %s, %s' % (mx, mx))
        I('v_rcp_f32 %s, %s' % (mn, mn))
        for u in range(5):
            for i in range(4 * u, 4 * u + 4):
                sel = 'op_sel_hi:[1,0]' if i < 10 else 'op_sel:[0,1] op_sel_hi:[1,1]'
                I('v_pk_mul_f32 %s, %s, %s %s' % (v(E + 2 * i, 2), v(E + 2 * i, 2), v(M, 2), sel))
            for i in range(4 * u, 4 * u + 4):
                I('v_cvt_pk_bf16_f32 %s, %s, %s' % (dst(i), v(E + 2 * i), v(E + 2 * i + 1)))
            if after:
                after(u)

    def phi_mfma(self, KP, D):
        out = []
        for ks in range(3):
            for Tt in range(2):
                c = v(D + 16 * Tt, 16)
                out.append('v_mfma_f32_32x32x16_bf16 %s, %s, %s, %s' %
                           (c, a(aPHI + 12 * Tt + 4 * ks, 4), v(KP + 4 * ks, 4), c if ks else '0'))
        return out

    def attention(self):
        I = self.I
        cfg = self.cfg
        SL = TMP + 44
        CS = BF + 24
        self.bgq = [('S', k, cfg.get('at_gap', 300)) for k in range(cfg.get('p1_s', 8), NS)]
        self.bgq += [('O', n, 100) for n in range(cfg.get('p1_o', 25), 25)]
        self.st_last = {}
        self.bg_last = self.clk + cfg.get('at_delay', 0) - 90
        self.reserved = set(range(T_Q0, T_Q0 + 8)) | {KS_Q}

        def ln(off, n, packed=True):
            for i in range(0, n, 2):
                if packed:
                    I('v_pk_fma_f32 %s, %s, %s, %s op_sel_hi:[1,0,1]' %
                      (v(ACC + off + i, 2), v(ACC + off + i, 2), v(SL, 2), v(CS + off + i, 2)))
                else:
                    for e in (i, i + 1):
                        I('v_fma_f32 %s, %s, %s, %s' % (v(ACC + off + e), v(ACC + off + e), v(SL), v(CS + off + e)))

        def pack20(P, main, extra):
            for i in range(8):
                I('v_cvt_pk_bf16_f32 %s, %s, %s' % (v(P + i), v(ACC + main + 2 * i), v(ACC + main + 2 * i + 1)))
            for i in range(2):
                I('v_cvt_pk_bf16_f32 %s, %s, %s' % (v(P + 8 + i), v(ACC + extra + 2 * i), v(ACC + extra + 2 * i + 1)))
        KP, D = TMP + 20, BF
        for st in ('F1', 'F2'):
            self.stream_reset(st)
        I('v_mov_b32 %s, 0' % v(KP + 10))
        I('v_mov_b32 %s, 0' % v(KP + 11))
        I('.p2align 3')
        ln(0, 16)
        ln(48, 4)
        pack20(KP, 0, 48)
        mfs = self.phi_mfma(KP, D)
        VP = ACC
        WA = TMP + 32
        side = ['v_fma_f32 %s, %s, %s, %s' % (v(ACC + e), v(ACC + e), v(SL), v(CS + e)) for e in list(range(16, 32)) + [52, 53, 54, 55]]
        side += ['v_xor_b32 %s, %d, %s' % (v(WA + u), 16 * u, V['TW']) for u in range(8)]
        side += ['v_mov_b32 %s, 0x3f80' % v(VP + 10), 'v_mov_b32 %s, 0' % v(VP + 11)]
        self.bg(True)
        for m in mfs:
            I(m)
            for _ in range(5):
                I(side.pop(0))
        assert not side
        pack20(VP, 16, 52)

        def twrite(u, r):
            tag = self.lg('ds_write_b128 %s, %s' % (v(WA + u), v(r, 4)), 'tw')
            for q in range(8):
                self.q_fill(T_Q0 + q, 'T', tag)
        for u in range(3):
            twrite(5 + u, VP + 4 * u)
        I('.p2align 3')
        ln(32, 16)
        ln(56, 4)
        E = BF + 32
        PK = ACC + 12
        self.softmax_pair(D, E, lambda i: v(PK + i), after=lambda u: twrite(u, PK + 4 * u))
        self.bg(False)
        pack20(KP, 32, 56)
        self.wait(lg_all=True)
        self.barrier()
        self.stamp(1)
        KA = TMP + 32
        I('v_xor_b32 %s, 32, %s' % (v(KA), V['KA']))
        I('v_xor_b32 %s, 64, %s' % (v(KA + 1), V['KA']))
        DK = TMP
        FR = ACC
        for ks in range(5):
            for f in range(4 if ks < 4 else 0):
                base = V['KB'] if f == 0 else (V['KA'], v(KA), v(KA + 1))[f - 1]
                for ab in range(2):
                    tag = self.lg('ds_read_b64_tr_b16 %s, %s offset:%d' %
                                  (v(FR + 16 * ks + 4 * f + 2 * ab, 2), base, 4096 * ks + 1024 * ab), ('kvr', ks, f))
                    for q in range(8):
                        self.q_read(T_Q0 + q, 'T', tag)
                if ks > 0 and f < 3:
                    self.wait(lg=[('kvr', ks - 1, f + 1)])
                    c = v(DK + 4 * f, 4)
                    I('v_mfma_f32_16x16x32_bf16 %s, %s, %s, %s' %
                      (c, v(FR + 16 * (ks - 1) + 4 * f + 4, 4), v(FR + 16 * (ks - 1), 4), c if ks > 1 else '0'))
        for q in range(8):
            self.q_done(T_Q0 + q)
        for t in range(3):
            self.wait(lg=[('kvr', 3, t + 1)])
            c = v(DK + 4 * t, 4)
            I('v_mfma_f32_16x16x32_bf16 %s, %s, %s, %s' % (c, v(FR + 52 + 4 * t, 4), v(FR + 48, 4), c))
        mfs = self.phi_mfma(KP, D)
        I(mfs.pop(0))
        PV = TMP + 12
        for i in range(6):
            I('v_cvt_pk_bf16_f32 %s, %s, %s' % (v(PV + i), v(DK + 2 * i), v(DK + 2 * i + 1)))
            I('v_min_u32 %s, -2, %s' % (v(PV + i), v(PV + i)))
        self.vm('buffer_store_dwordx4 %s, %s, %s, 0 offen sc1' % (v(PV, 4), V['KS1'], srd(sWS)), 'kvs')
        self.vm('buffer_store_dwordx2 %s, %s, %s, 0 offen sc1' % (v(PV + 4, 2), V['KS2'], srd(sWS)), 'kvs')
        self.stamp(2)
        self.bg(True)
        for m in mfs:
            I(m)
        PQ = ACC
        qpos = lambda i: v(PQ + ((4 * ((i % 8) >> 1) + 2 * (i >> 3) + (i & 1)) if i < 16 else i))

        self.barrier()
        self.reserved = {KS_Q}
        self.regap(lambda st, n: cfg.get('at_gap2', 250))
        if cfg.get('ot_at', 0) == 0:
            self.bgq += self.touches('O', 150)
        self.softmax_pair(D, E, qpos)
        for pr in range(2):
            for i in range(4):
                I('v_permlane32_swap_b32 %s, %s' % (v(PQ + 8 * pr + i), v(PQ + 8 * pr + 4 + i)))
        self.bg(False)
        self.stamp(3)
        self.bg_burst(99)
        self.bgq = (self.touches('O') if cfg.get('ot_at', 0) == 1 else []) + [('F1', n, 0) for n in range(35 - NS)]
        if cfg.get('x1_at', 2) == 1:
            self.bgq += self.touches('X1')
        G = BF
        SM = TMP
        ga, gb, gm = v(TMP + 22), v(TMP + 23), v(TMP + 21)
        I('s_and_b32 %s, %s, %d' % (t0, sRb, 1 if cfg.get('g_rot', 1) else 0))
        I('s_lshl_b32 %s, %s, 15' % (t0, t0))
        I('v_add_u32 %s, %s, %s' % (ga, t0, V['KG']))
        I('v_xor_b32 %s, 0x8000, %s' % (gb, ga))
        I('s_mov_b32 %s, 0x%x' % (t0, CSP))
        I('s_mov_b32 %s, 0' % t2)
        for i in range(8):
            I('v_mov_b32 %s, 0' % v(SM + i))
        self.wait(vm=['kvs'])
        for _ in range(cfg.get('g_delay', 0)):
            I('s_sleep 4')
        self.stamp(4)
        I('s_mov_b32 s100, 0x00003f80')
        I('s_mov_b32 s101, 0x3f800000')
        gl = lambda p: 'buffer_load_dwordx4 %s, %s, %s, %s offen sc1' % (v(G + 4 * p, 4), ga if p < 8 else gb, srd(sWS), sK4(p & 7))
        chk = lambda p: ['v_max3_u32 %s, %s, %s, %s' % (gm, v(G + 4 * p), v(G + 4 * p + 1), v(G + 4 * p + 2)),
                         'v_max_u32 %s, %s, %s' % (gm, gm, v(G + 4 * p + 3)),
                         'v_cmp_eq_u32 vcc, -1, %s' % gm]
        add = lambda p: ['v_dot2c_f32_bf16 %s, s%d, %s' % (v(SM + 2 * i + e), 100 + e, v(G + 4 * p + i)) for i in range(4) for e in range(2)]

        def consume(p):
            self.wait(vm=[('kg', p)])
            lab = self.label('L_kv')
            for x in chk(p):
                I(x)
            I('s_cbranch_vccnz %s_r' % lab)
            for x in add(p):
                I(x)
            I('%s:' % lab)
            self.tail += ['%s_r:' % lab, gl(p), 's_bitset1_b32 %s, %d' % (t2, p), 's_branch %s' % lab]
        order = cfg.get('g_order', 'mmfmffmhfmhffmhfmhffmhfhfhfhf')
        lag = cfg.get('g_lag', 7)
        nm, nh, pend = 0, 8, []
        for k, ch in enumerate(order):
            if ch == 'f':
                self.bg_burst(1)
            else:
                p = nm if ch == 'm' else nh
                nm, nh = nm + (ch == 'm'), nh + (ch == 'h')
                self.vm(gl(p), ('kg', p))
                pend.append((k, p))
            if pend and k - pend[0][0] >= lag:
                consume(pend.pop(0)[1])
        assert (nm, nh) == (8, 16)
        self.vm('buffer_load_dwordx4 %s, v1, %s, %s offen sc1' % (v(TMP + 16, 4), srd(sWS), t0), 'csp')
        for k, p in pend:
            consume(p)
        if cfg.get('stamps'):
            I('s_bcnt1_i32_b32 s3, %s' % t2)
            I('v_writelane_b32 %s, s3, 50' % V['Stamp'])
            I('v_writelane_b32 %s, %s, 51' % (V['Stamp'], sTO))
            I('s_mov_b64 s[98:99], s[100:101]')
            self.stamp(29)
            I('s_mov_b64 s[100:101], s[98:99]')
        I('s_cmp_lg_u32 %s, 0' % t2)
        I('s_cbranch_scc1 L_kv_late')
        I('L_kv_done:')
        if cfg.get('stamps'):
            I('v_writelane_b32 %s, %s, 52' % (V['Stamp'], sTO))
        self.tail += ['L_kv_again:', 's_sleep %d' % cfg.get('kv_sleep', 4), 'L_kv_late:', 's_sub_u32 %s, %s, 1' % (sTO, sTO),
                      's_cbranch_scc1 L_end', 's_waitcnt vmcnt(0)']
        for p in range(16):
            self.tail += ['s_bitcmp1_b32 %s, %d' % (t2, p), 's_cbranch_scc0 L_kvl_%d' % p] + chk(p)
            self.tail += ['s_cbranch_vccnz L_kvl_%dr' % p] + add(p) + ['s_bitset0_b32 %s, %d' % (t2, p), 'L_kvl_%d:' % p]
        self.tail += ['s_cmp_lg_u32 %s, 0' % t2, 's_cbranch_scc1 L_kv_again', 's_nop 1', 's_branch L_kv_done']
        for p in range(16):
            self.tail += ['L_kvl_%dr:' % p, gl(p), 's_branch L_kvl_%d' % p]
        for i in range(4):
            I('v_cvt_pk_bf16_f32 %s, %s, %s' % (v(SM + 8 + i), v(SM + 2 * i), v(SM + 2 * i + 1)))
        tag = self.lg('ds_write_b128 %s, %s' % (V['KW'], v(SM + 8, 4)), 'ksw')
        self.q_fill(KS_Q, 'KS', tag)
        self.reserved = set()
        self.wait(lg_all=True)
        self.barrier()
        self.stamp(5)
        AF = BF
        for ks in range(3):
            for hd in range(2):
                base, off = (V['R1'], 80 * KU * hd + 32 * KU * ks) if ks < 2 else (V['R2%d' % hd], 0)
                tag = self.lg('ds_read_b128 %s, %s offset:%d' % (v(AF + 8 * ks + 4 * hd, 4), base, off), ('ksr', ks))
                self.q_read(KS_Q, 'KS', tag)
        self.q_done(KS_Q)
        I('v_min_u32 %s, 127, v0' % v(TMP + 40))
        I('v_lshlrev_b32 %s, 2, %s' % (v(TMP + 40), v(TMP + 40)))
        I('v_add_u32 %s, %d, %s' % (v(TMP + 40), TCS3, v(TMP + 40)))
        self.wait(vm=['csp'])
        I('v_pk_add_f32 %s, %s, %s' % (v(TMP + 42, 2), v(TMP + 16, 2), v(TMP + 18, 2)))
        I('v_add_f32 %s, %s, %s' % (v(TMP + 42), v(TMP + 42), v(TMP + 43)))
        self.lg('ds_write_b32 %s, %s' % (v(TMP + 40), v(TMP + 42)))
        self.bg_burst(cfg.get('at_b3', 0))
        DO = TMP
        for ks in range(3):
            self.wait(lg=[('ksr', ks)])
            for hd in range(2):
                c = v(DO + 16 * hd, 16)
                b = v(PQ + 8 * ks + 4 * hd, 4) if ks < 2 else v(PQ + 16, 4)
                I('v_mfma_f32_32x32x16_bf16 %s, %s, %s, %s' % (c, v(AF + 8 * ks + 4 * hd, 4), b, c if ks else '0'))
        OP = ACC + 24
        for n in ('KS1', 'KS2', 'KG'):
            I('v_add_u32 %s, 0x100000, %s' % (V[n], V[n]))

        def sec(sfx):
            for hd in range(2):
                b = DO + 16 * hd
                I('v_add_f32 %s, 0x%x, %s' % (v(b + 12), 0x358637bd, v(b + 12)))
                I('v_rcp_f32 %s, %s' % (v(b + 12), v(b + 12)))
                I('s_nop 0')
                I('.p2align 3')
                for i in range(6):
                    I('v_pk_mul_f32 %s, %s, %s op_sel_hi:[1,0]' % (v(b + 2 * i, 2), v(b + 2 * i, 2), v(b + 12, 2)))
                for i in range(6):
                    d = OP + 4 * hd + i if i < 4 else OP + 8 + 2 * hd + (i - 4)
                    I('v_cvt_pk_bf16_f32 %s, %s, %s' % (v(d), v(b + 2 * i), v(b + 2 * i + 1)))
                    if i == 3:
                        self.vm('buffer_store_dwordx4 %s, %s, %s, 0 offen offset:%d%s' %
                                (v(OP + 4 * hd, 4), V['SO1'], srd(sST), 512 * hd, sfx), 'pub')
            self.vm('buffer_store_dwordx4 %s, %s, %s, 0 offen%s' % (v(OP + 8, 4), V['SO2'], srd(sST), sfx), 'pub')
            self.bg_burst(cfg.get('at_b4', 0))
            self.wait(vm=['pub'])
            self.flag_local(sFlP32, F_B, sfx)
        self.dual_section(sec)
        self.bg_burst(cfg.get('at_b5', 0))
        self.stamp(6)

    def plan(self, spec):
        pos = {}
        out = []
        for st, cnt, gap in spec:
            for _ in range(cnt):
                out.append((st, pos.get(st, 0), gap))
                pos[st] = pos.get(st, 0) + 1
        return out

    def regap(self, gaps):
        self.bgq = [(st, n, gaps(st, n)) for st, n, g in self.bgq]

    def mf16(self, areg, a=a):
        def mf(s, f, r):
            c = v(RES + 4 * f, 4)
            return ['v_mfma_f32_16x16x32_bf16 %s, %s, %s, %s' % (c, v(r, 4), a(areg(s), 4), c)]
        return mf

    def p2(self):
        cfg = self.cfg

        def entry():
            self.poll(V['Fl'], sLD, sFl16, F_B, sTagL)
            self.stamp(7)
        self.regap(lambda st, n: cfg.get('p2_gap', 0))
        if cfg.get('x1_at', 2) == 2:
            self.bgq = self.touches('X1') + self.bgq
        ar = lambda i: ACC + 4 * (i % 16)
        self.gemm('P2', 20, 5, 'O', ar, V['A2'], 1, self.mf16(ar, v), L=10, we=5, win=16, afile='v',
                  bars=cfg.get('p2_bars', [0, 8]), a0=cfg.get('p2_a0', 5), every=cfg.get('p2_ev', 4), ahead=cfg.get('p2_ah', 7),
                  entry=entry, hooks={-1: self.next_tag},
                  jobstart=cfg.get('p2_js', 4), jobstop=cfg.get('p2_je', 99))
        self.stamp(8)
        assert not self.bgq
        self.wq = [('F1', 35 - NS + k, aWIN + 4 * k) for k in range(NS)]
        self.publish_x('X1', burst=cfg.get('p2_burst', [6, 6]), bar=True)
        self.stamp(9)

    def p3(self):
        I = self.I
        cfg = self.cfg
        SL = TMP + 44

        def entry():
            self.poll(V['Fl'], sLD, sFl32, F_X, sTagL)
            self.stamp(10)

        def mf(s, f, r):
            out = []
            for tt in range(2):
                c = v(ACC + 28 * tt + 4 * f, 4)
                out.append('v_mfma_f32_16x16x32_bf16 %s, %s, %s, %s' % (c, v(r, 4), a(aWIN + 8 * (s % 8) + 4 * tt, 4), c if s else '0'))
            return out

        self.regap(lambda st, n: cfg.get('p3_gap1', 0))
        self.bgq += [('F2', n, cfg.get('p3_gap2', 190) if n < 18 else 0) for n in range(68)]

        def h_start():
            self.bgq = [('T', ('buffer_load_dwordx4 %s, %s, %s, 0 offen offset:%d sc1' %
                               (v(SL + 4 * tt, 4), V['LSt3'], srd(sLD), 256 * tt), 'st3'), 0) for tt in range(2)] + self.bgq

        def h_touch():
            self.bgq += self.touches('H', cfg.get('p3_tgap', 350))
        CS, T1, T0 = BF + 24, BF + 52, TMP + 16
        def st3_wait():
            assert not [j for j in self.bgq if j[0] == 'T' and isinstance(j[1], tuple)] and 'st3' in self.issued
            self.wait(vm=['st3'])
        sh = [st3_wait]
        for tt in range(2):
            S = SL + 4 * tt
            sh += ['v_add_f32 %s, %s, %s' % (v(S + i), v(S + i), v(S + 2 + i)) for i in range(2)]
            for sw in ('v_permlane32_swap_b32', 'v_permlane16_swap_b32'):
                sh += ['v_mov_b32 %s, %s' % (v(S + 2 + i), v(S + i)) for i in range(2)]
                sh += ['%s %s, %s' % (sw, v(S + i), v(S + 2 + i)) for i in range(2)]
                sh += ['v_add_f32 %s, %s, %s' % (v(S + i), v(S + i), v(S + 2 + i)) for i in range(2)]
            sh += self.ln_coeffs(S, S + 2)
        for t in range(7):
            sh.append(lambda t=t: self.lg('ds_read_b128 %s, %s offset:%d' % (v(CS + 4 * t, 4), V['Tb4'], TCS3 - PA + 64 * t), ('tb', t)))
            sh.append(lambda t=t: self.lg('ds_read_b128 %s, %s offset:%d' % (v(T1 + 4 * t, 4), V['Tb4'], TB1 - PA + 64 * t), ('tb', t)))
        for t in range(7):
            sh.append(lambda t=t: self.wait(lg=[('tb', t)]))
            for i in range(4 * t, 4 * t + 4):
                sh.append('v_fma_f32 %s, %s, %s, %s' % (v(T0 + i), v(CS + i), v(SL + 1), v(T1 + i)))
                sh.append('v_fmac_f32 %s, %s, %s' % (v(T1 + i), v(CS + i), v(SL + 5)))
        self.gemm('P3', 20, 7, 'F1', lambda i: aWIN + 4 * (i % 16), V['A1'], 2, mf, L=5, we=2, win=16,
                  bars=cfg.get('p3_bars', [0, 4, 8, 12, 16, 19]), a0=cfg.get('p3_a0', 6), every=cfg.get('p3_ev', 2), ahead=cfg.get('p3_ah', 8),
                  hooks={1: h_start, cfg.get('p3_tstep', 3): h_touch}, jobstart=cfg.get('p3_js', 0),
                  jobstop=cfg.get('p3_je', 99), shadow=[(cfg.get('p3_sh', 5), x) for x in sh], entry=entry)
        assert not [j for j in self.bgq if j[0] == 'T']
        self.regap(lambda st, n: cfg.get('e3_gap', 80))
        self.stamp(11)
        for t in range(5):
            self.lg('ds_read_b128 %s, %s offset:%d' % (v(BF + 4 * t, 4), V['Tb4'], TB2 - PA + 64 * t), 'tb')

        def sec(sfx):
            for tt in range(2):
                self.bg(cfg.get('e3_bg', 2) > tt)
                S = SL + 4 * tt
                Cc = ACC + 28 * tt
                TT = (T0, T1)[tt]
                HP = BF + 20 + 16 * tt
                so = sH54 if tt else '0'
                I('.p2align 3')
                for i in ([12, 13] + list(range(12)) if tt else range(14)):
                    I('v_pk_fma_f32 %s, %s, %s, %s op_sel_hi:[1,0,1]' % (v(Cc + 2 * i, 2), v(Cc + 2 * i, 2), v(S, 2), v(TT + 2 * i, 2)))
                    I('v_max_f32 %s, 0, %s' % (v(Cc + 2 * i), v(Cc + 2 * i)))
                    I('v_max_f32 %s, 0, %s' % (v(Cc + 2 * i + 1), v(Cc + 2 * i + 1)))
                    I('v_pk_mul_f32 %s, %s, %s' % (v(Cc + 2 * i, 2), v(Cc + 2 * i, 2), v(Cc + 2 * i, 2)))
                    I('v_cvt_pk_bf16_f32 %s, %s, %s' % (v(HP + i), v(Cc + 2 * i), v(Cc + 2 * i + 1)))
                    if i == 13:
                        self.vm('buffer_store_dwordx2 %s, %s, %s, %s offen%s' % (v(HP + 12, 2), V['SH2'], srd(sST), so, sfx), 'pub')
                    elif i % 4 == 3:
                        self.vm('buffer_store_dwordx4 %s, %s, %s, %s offen offset:%d%s' %
                                (v(HP + i - 3, 4), V['SH1'], srd(sST), so, 256 * (i - 3), sfx), 'pub')
            self.bg(False)
            self.wait(lg_all=True)
            for i in range(10):
                I('v_pk_add_f32 %s, %s, %s' % (v(RES + 2 * i, 2), v(RES + 2 * i, 2), v(BF + 2 * i, 2)))
            self.bg_burst(cfg.get('p3_burst', [4, 4])[0])
            self.wait(vm=['pub'])
            self.flag_local(sFlP32, F_B, sfx)
        self.dual_section(sec)
        self.bg_burst(cfg.get('p3_burst', [4, 4])[1])
        self.stamp(12)

    def p4(self):
        I = self.I
        cfg = self.cfg

        def entry():
            self.poll(V['Fl'], sLD, sFl16, F_B, sTagL)
            self.stamp(13)
        self.regap(lambda st, n: cfg.get('p4_gap', 0))
        self.bgq += self.touches('XA')
        ar = lambda i: aWIN + 4 * (i % 17)
        self.gemm('P4', 54, 5, 'F2', ar, V['A4'], 1, self.mf16(ar), L=10, we=5, win=17,
                  bars=cfg.get('p4_bars', [0, 6, 12, 18, 24, 30, 36, 42, 48]), a0=cfg.get('p4_a0', 5), entry=entry, hooks={-1: self.next_tag},
                  every=cfg.get('p4_ev', 2.8), ahead=cfg.get('p4_ah', 8), jobstart=cfg.get('p4_js', 0), jobstop=cfg.get('p4_je', 99))
        assert not self.bgq
        self.stamp(14)

    def join(self):
        self.vmq = ['join']
        for q in self.q:
            if q['c'] and q['c'][0] == 'O' and not q['done']:
                q.update(tag=['join'], vis=False)

    def build(self):
        I = self.I
        if self.cfg.get('stamps'):
            I('v_mov_b32 %s, 0' % V['Stamp'])
            I('s_memrealtime s[98:99]')
            self.stamp(16)
            I('v_writelane_b32 %s, s98, 30' % V['Stamp'])
        self.prologue()
        self.stamp(23)
        self.p0()
        self.stamp(17)
        self.p1(True)
        self.join()
        snap = self.snapshot()
        I('L_body:')
        self.stamp(0)
        self.attention()
        self.p2()
        self.p3()
        self.p4()
        I('s_cmp_eq_u32 %s, 0' % sLayer)
        I('s_cbranch_scc0 L_final')
        self.wq = [('Q', n, 4 * n) for n in range(40)]
        self.publish_x('XA', burst=self.cfg.get('p4_burst', [6, 6]), bar=True)
        self.stamp(15)
        I('s_mov_b32 %s, 1' % sLayer)
        if self.cfg.get('stamps'):
            I('v_mov_b32 %s, %s' % (V['Stamp0'], V['Stamp']))
        self.p1(False)
        self.join()
        snap2 = self.snapshot()
        assert snap == snap2, (snap, snap2)
        I('s_nop 7')
        I('s_nop 3')
        I('s_branch L_body')
        I('L_final:')
        P = TMP + 8
        I('s_nop 5')
        self.pack_res(P)
        I('buffer_store_dwordx4 %s, %s, %s, 0 offen' % (v(P, 4), V['X1'], srd(sXO)))
        I('buffer_store_dwordx4 %s, %s, %s, 0 offen offset:64' % (v(P + 4, 4), V['X1'], srd(sXO)))
        I('buffer_store_dwordx2 %s, %s, %s, 0 offen offset:128' % (v(P + 8, 2), V['X3'], srd(sXO)))
        I('s_or_b32 %s, s2, %s' % (t0, sW))
        self.one_wave_store(t0, 'buffer_store_dword %s, off, %s, 0' % (V['TagG'], srd(sWS)))
        if self.cfg.get('stamps'):
            I('s_memrealtime s[98:99]')
            self.stamp(15)
            I('v_writelane_b32 %s, s98, 31' % V['Stamp'])
            I('v_lshrrev_b32 %s, 2, %s' % (v(TMP), V['Rd0']))
            I('s_lshl_b32 %s, s2, 11' % t0)
            I('s_lshr_b32 %s, %s, 1' % (t1, sW1k))
            I('s_add_u32 %s, %s, %s' % (t0, t0, t1))
            I('s_add_u32 %s, %s, 0x%x' % (t0, t0, STAMPS))
            I('buffer_store_dword %s, %s, %s, %s offen' % (V['Stamp0'], v(TMP), srd(sWS), t0))
            I('buffer_store_dword %s, %s, %s, %s offen offset:256' % (V['Stamp'], v(TMP), srd(sWS), t0))
        d = self.cfg.get('diag')
        if d:
            I('v_readfirstlane_b32 s60, %s' % V['Stamp' if d != 'clk' else 'Stamp0'])
            I('s_waitcnt vmcnt(0)')
            I('s_memrealtime s[100:101]')
            I('s_waitcnt lgkmcnt(0)')
            I('s_sub_u32 s61, s100, s60')
            if d == 'rt':
                I('s_mov_b32 s61, 20000')
            elif d == 'rtwb':
                I('buffer_wbl2 sc1')
                I('s_waitcnt vmcnt(0)')
                I('s_mov_b32 s61, 20000')
            elif d == 'probe':
                I('v_readfirstlane_b32 s61, %s' % V['Stamp0'])
                I('s_mul_i32 s61, s61, 10')
                I('s_add_u32 s61, s61, 10000')
            elif d == 'durclk':
                I('v_readfirstlane_b32 s63, %s' % V['Stamp0'])
                I('s_memtime s[100:101]')
                I('s_waitcnt lgkmcnt(0)')
                I('s_sub_u32 s61, s100, s63')
                I('s_lshr_b32 s61, s61, 2')
            elif d == 'clk':
                I('s_mov_b32 s61, 480000')
            elif d == 'slow':
                I('s_mul_i32 s61, %s, 30000' % sSlow)
            elif d == 'dur':
                I('s_mul_i32 s61, s61, 10')
            elif d == 'mark':
                I('s_sub_u32 s61, s57, s60')
                I('s_mul_i32 s61, s61, 10')
                I('s_add_u32 s61, s61, 10000')
            I('L_diag:')
            I('%s s[100:101]' % ('s_memtime' if d == 'clk' else 's_memrealtime'))
            I('s_waitcnt lgkmcnt(0)')
            I('s_sub_u32 s62, s100, s60')
            I('s_cmp_lt_u32 s62, s61')
            I('s_cbranch_scc1 L_diag')
        I('L_end:')
        I('s_endpgm')
        for x in self.tail:
            I(x)


HEADER = """; Kernarg layout for this problem (96 bytes, ptrs only, base s[0:1]):
; @launch grid=(256,1,1) block=(256,1,1) lds=163840
.amdgcn_target "amdgcn-amd-amdhsa--gfx950"
.text
.globl {n}_kernel
.p2align 8
.type {n}_kernel,@function
{n}_kernel:
"""
FOOTER = """.section .rodata,"a"
.p2align 6
.amdhsa_kernel {n}_kernel
  .amdhsa_next_free_vgpr 512
  .amdhsa_next_free_sgpr 102
  .amdhsa_accum_offset 256
  .amdhsa_group_segment_fixed_size 0
  .amdhsa_kernarg_size 96
  .amdhsa_user_sgpr_count 2
  .amdhsa_user_sgpr_kernarg_segment_ptr 1
  .amdhsa_system_sgpr_workgroup_id_x 1
.end_amdhsa_kernel
"""


def generate(cfg):
    k = K(cfg)
    k.build()
    lines, added = fix_hazards(k.L)
    body = '\n'.join(x if x.endswith(':') else '    ' + x for x in lines)
    return HEADER.format(n=NAME) + body + '\n' + FOOTER.format(n=NAME), dict(n=len(lines), nops=added, maxvm=k.maxvm, notes=k.notes)


if __name__ == '__main__':
    import json
    cfg = json.loads(sys.argv[2]) if len(sys.argv) > 2 else {}
    text, info = generate(cfg)
    out = sys.argv[1] if len(sys.argv) > 1 else 'cdna_kernels/%s.s' % NAME
    open(out, 'w').write(text)
    print(info)
```
